```python
import torch

def _softmax(x, axis=-1):
    return torch.softmax(x, dim=axis)
def _gelu(x):
    return torch.nn.functional.gelu(x, approximate="tanh")
def _silu(x):
    return torch.nn.functional.silu(x)
def _sigmoid(x):
    return torch.sigmoid(x)
def _layernorm(x, axis=-1, eps=1e-5):
    m = x.mean(dim=axis, keepdim=True)
    v = x.var(dim=axis, keepdim=True, unbiased=False)
    return (x - m) / torch.sqrt(v + eps)
def _scatter_add(tgt, idx, src, axis=0):
    return tgt.clone().index_add_(axis, idx, src)
def _segment_sum(src, seg, n):
    out = torch.zeros((n,) + src.shape[1:], dtype=src.dtype)
    return out.index_add_(0, seg, src)
def _pad(x, pw):
    flat = tuple(v for pair in reversed(pw) for v in pair)
    return torch.nn.functional.pad(x, flat)

kernel_name = 'parallel_sum__ssm_conv_s4__dense_activation_gelu__prompt'

def setup_inputs():

    _w = (lambda a: (lambda t: t.to(torch.bfloat16) if t.is_floating_point() else t)(torch.as_tensor(a)))
    def _A_setup():
        B, L, D, N = 1, 2048, 576, 128
        A_re = -(lambda _x: torch.exp(torch.as_tensor(_x)))((lambda *s: torch.randn(*s, dtype=torch.bfloat16) * 6.4)(D, N))
        A_im = torch.pi * (lambda *s: torch.randn(*s, dtype=torch.bfloat16) * 0.05)(D, N)
        B_re = (lambda *s: torch.randn(*s, dtype=torch.bfloat16) * 0.1)(D, N)
        B_im = (lambda *s: torch.randn(*s, dtype=torch.bfloat16) * 0.1)(D, N)
        C_re = (lambda *s: torch.randn(*s, dtype=torch.bfloat16) * 0.1)(D, N)
        C_im = (lambda *s: torch.randn(*s, dtype=torch.bfloat16) * 0.1)(D, N)
        log_dt = (lambda *s: torch.randn(*s, dtype=torch.bfloat16) * 0.05)(D) * 0.5 - 4.0
        Dskip = (lambda *s: torch.randn(*s, dtype=torch.bfloat16) * 0.05)(D)
        return {
            "u": _w((lambda *s: torch.randn(*s, dtype=torch.bfloat16) * 0.05)(B, L, D)),
            "A_re": _w(A_re),
            "A_im": _w(A_im),
            "B_re": _w(B_re),
            "B_im": _w(B_im),
            "C_re": _w(C_re),
            "C_im": _w(C_im),
            "log_dt": _w(log_dt),
            "Dskip": _w(Dskip),
        }
    _A_in = _A_setup()

    def _B_setup():
        B, S, D, F = 1, 2048, 576, 4608
        return {
            "x": _w((lambda *s: torch.randn(*s, dtype=torch.bfloat16) * 0.05)(B, S, D)),
            "w1": _w((lambda *s: torch.randn(*s, dtype=torch.bfloat16) * 0.8)(D, F) * (D ** -0.5)),
            "b1": _w((lambda *s: torch.randn(*s, dtype=torch.bfloat16) * 0.2)(F) * 0.01),
            "w2": _w((lambda *s: torch.randn(*s, dtype=torch.bfloat16) * 0.2)(F, D) * (F ** -0.5)),
            "b2": _w((lambda *s: torch.randn(*s, dtype=torch.bfloat16) * 0.2)(D) * 0.01),
        }
    _B_in = _B_setup()

    return {
        "A_u": _A_in["u"],
        "A_A_re": _A_in["A_re"],
        "A_A_im": _A_in["A_im"],
        "A_B_re": _A_in["B_re"],
        "A_B_im": _A_in["B_im"],
        "A_C_re": _A_in["C_re"],
        "A_C_im": _A_in["C_im"],
        "A_log_dt": _A_in["log_dt"],
        "A_Dskip": _A_in["Dskip"],
        "B_x": _B_in["x"],
        "B_w1": _B_in["w1"],
        "B_b1": _B_in["b1"],
        "B_w2": _B_in["w2"],
        "B_b2": _B_in["b2"],
    }

def reference(A_u, A_A_re, A_A_im, A_B_re, A_B_im, A_C_re, A_C_im, A_log_dt, A_Dskip, B_x, B_w1, B_b1, B_w2, B_b2):
    def _A_ref(u, A_re, A_im, B_re, B_im, C_re, C_im, log_dt, Dskip):
        Bsz, L, D = u.shape
        dt = torch.exp(log_dt)[:, None]
        A = A_re + 1j * A_im
        Bc = B_re + 1j * B_im
        Cc = C_re + 1j * C_im
        logdA = dt * A
        dB = dt * Bc
        l = (lambda x, dt: x.to(dt))(torch.arange(L), A_re.dtype)
        P = torch.exp(logdA[:, :, None] * l[None, None, :])
        K = torch.einsum("dn,dnl,dn->dl", Cc, P, dB).real
        L2 = 2 * L
        Kp = _pad(K, ((0, 0), (0, L)))
        up = (lambda x, *d: x.permute(*d))(u, 0, 2, 1)
        up = _pad(up, ((0, 0), (0, 0), (0, L)))
        Kf = (lambda x, axes=(-2,-1): torch.fft.rfft2(x.float(), dim=axes))(Kp[:, None, :], axes=(-2, -1))
        Uf = (lambda x, axes=(-2,-1): torch.fft.rfft2(x.float(), dim=axes))(up[:, :, None, :], axes=(-2, -1))
        Yf = Uf * Kf[None, :, :, :]
        y = (lambda x, s, axes=(-2,-1): torch.fft.irfft2(x, s=s, dim=axes).to(torch.bfloat16))(Yf, (1, L2), axes=(-2, -1))[:, :, 0, :L]
        y = (lambda x, *d: x.permute(*d))(y, 0, 2, 1) + u * Dskip[None, None, :]
        return y

    def _B_ref(x, w1, b1, w2, b2):
        h = torch.einsum("bsd,df->bsf", x, w1) + b1
        h = _gelu(h)
        return torch.einsum("bsf,fd->bsd", h, w2) + b2

    x = A_u
    xn = _layernorm(x, axis=-1)
    return x + _A_ref(xn, A_A_re, A_A_im, A_B_re, A_B_im, A_C_re, A_C_im, A_log_dt, A_Dskip) + _B_ref(xn, B_w1, B_b1, B_w2, B_b2)
```

```python
import struct
def f2u(x): return struct.unpack("<I", struct.pack("<f", x))[0]
def fl(x): return "0x%08x" % f2u(x)

XF_OFF = 0
XU_OFF = 0x240000
KG_OFF = 0x6C0000
KG_STRIDE = 4112
KS_OFF = 0x904000
PART_OFF = 0xA00000
WS_BYTES = 268435456

class Asm:
    def __init__(self):
        self.L = []
        self.n = 0
        self.vm = 0; self.ds = 0
        self.vm_done = 0; self.ds_done = 0
        self.mfma_w = {}
    def raw(self, s): self.L.append(s)
    def i(self, s):
        self.L.append("  " + s); self.n += 1
    def nop(self, k):
        while k > 0:
            c = min(k, 16); self.L.append("  s_nop %d" % (c - 1)); self.n += c; k -= c
    def vmem(self, s):
        self.i(s); self.vm += 1; return self.vm
    def dsop(self, s):
        self.i(s); self.ds += 1; return self.ds
    def wait_vm(self, idn):
        if idn <= self.vm_done: return
        n = self.vm - idn
        assert n <= 63, "vmcnt overflow %d" % n
        self.i("s_waitcnt vmcnt(%d)" % n); self.vm_done = idn
    def wait_ds(self, idn):
        if idn <= self.ds_done: return
        n = min(self.ds - idn, 15)
        self.i("s_waitcnt lgkmcnt(%d)" % n); self.ds_done = self.ds - n
    def wait_all(self):
        self.i("s_waitcnt vmcnt(0) lgkmcnt(0)"); self.vm_done = self.vm; self.ds_done = self.ds
    def mfma_wrote(self, base, cnt):
        for r in range(base, base + cnt): self.mfma_w[r] = self.n
    def need_mfma(self, regs, dist=14):
        last = max([self.mfma_w.get(r, -1000) for r in regs])
        gap = self.n - last
        if gap < dist: self.nop(dist - gap)
    def text(self): return "\n".join(self.L) + "\n"

def kd(name, nv, acc_off, ns=102):
    return f""".p2align 6
.amdhsa_kernel {name}
  .amdhsa_next_free_vgpr {nv}
  .amdhsa_next_free_sgpr {ns}
  .amdhsa_accum_offset {acc_off}
  .amdhsa_group_segment_fixed_size 0
  .amdhsa_kernarg_size 136
  .amdhsa_user_sgpr_count 2
  .amdhsa_user_sgpr_kernarg_segment_ptr 1
  .amdhsa_system_sgpr_workgroup_id_x 1
  .amdhsa_float_denorm_mode_32 3
  .amdhsa_float_denorm_mode_16_64 3
.end_amdhsa_kernel
"""
def srd(a, d, b, nbytes):
    a.i(f"s_mov_b32 s{d}, s{b}")
    a.i(f"s_mov_b32 s{d+1}, s{b+1}")
    a.i(f"s_mov_b32 s{d+2}, {nbytes}")
    a.i(f"s_mov_b32 s{d+3}, 0x00020000")
def header(a, name):
    a.raw(f".globl {name}\n.p2align 8\n.type {name},@function\n{name}:")
```

```python
from common import *
import math
NKG = 288; NLN = 128
K1_GRID = NKG + NLN
CHB = 29776
BT = 11088
TT = 27984
K1_LDS = 2 * CHB
L2E = math.log2(math.e)
L2E_hi = struct.unpack("<f", struct.pack("<f", L2E))[0]
L2E_lo = L2E - L2E_hi

def cmul(a, d, z, w, t):
    a.i(f"v_pk_mul_f32 v[{t}:{t+1}], v[{z}:{z+1}], v[{w}:{w+1}] op_sel:[0,0] op_sel_hi:[0,1]")
    a.i(f"v_pk_fma_f32 v[{d}:{d+1}], v[{z}:{z+1}], v[{w}:{w+1}], v[{t}:{t+1}] op_sel:[1,1,0] op_sel_hi:[1,0,1] neg_lo:[1,0,0]")

def gen(code_pf_label, code_pf_bytes):
    a = Asm(); name = "k1_kernel"
    header(a, name)
    a.i(f"s_cmp_ge_u32 s2, {K1_GRID}")
    a.i("s_cbranch_scc1 k1_end")
    a.i("s_load_dwordx16 s[32:47], s[0:1], 0")
    a.i("s_load_dwordx2 s[48:49], s[0:1], 128")
    a.i("s_load_dwordx2 s[50:51], s[0:1], 80")
    a.i("s_load_dwordx2 s[52:53], s[0:1], 96")
    a.i("v_lshrrev_b32 v1, 6, v0")
    a.i("v_and_b32 v2, 63, v0")
    a.i("v_readfirstlane_b32 s20, v1")
    a.i(f"s_cmp_ge_u32 s2, {NKG}")
    a.i("s_cbranch_scc1 k1_ln")
    a.i("s_lshr_b32 s21, s20, 1")
    a.i("s_and_b32 s22, s20, 1")
    a.i("s_lshl_b32 s23, s2, 1")
    a.i("s_add_u32 s23, s23, s21")
    a.i("s_lshl_b32 s24, s23, 8")
    a.i("v_lshl_add_u32 v3, v2, 2, s24")
    a.i("s_lshl_b32 s24, s23, 1")
    a.i("v_mov_b32 v4, s24")
    a.i(f"s_mul_i32 s25, s21, {CHB}")
    a.i("s_waitcnt lgkmcnt(0)")
    for k, sb in enumerate((34, 36, 38, 40, 42, 44)):
        a.vmem(f"global_load_dword v{10+k}, v3, s[{sb}:{sb+1}]")
    a.vmem("global_load_ushort v16, v4, s[46:47]")
    a.i("s_lshl_b32 s24, s22, 10")
    a.i("s_sub_u32 s24, 2047, s24")
    a.i("v_lshlrev_b32 v5, 4, v2")
    a.i("v_sub_u32 v5, s24, v5")
    a.i(f"s_add_u32 s26, s25, {TT}")
    for e in range(0, 16, 2):
        a.i(f"v_subrev_u32 v6, {e}, v5")
        a.i(f"v_subrev_u32 v7, {e+1}, v5")
        a.i("v_cvt_f32_u32 v8, v6")
        a.i("v_cvt_f32_u32 v9, v7")
        a.i("v_cvt_pk_bf16_f32 v8, v8, v9")
        a.i("v_min_u32 v6, 256, v6")
        a.i("v_min_u32 v7, 256, v7")
        a.i("v_lshrrev_b32 v9, 16, v8")
        a.i("v_and_b32 v8, 0xffff, v8")
        a.i(f"v_add_u32 v8, {(-0x4280) & 0xffffffff}, v8")
        a.i(f"v_add_u32 v9, {(-0x4280) & 0xffffffff}, v9")
        a.i("v_max_i32 v6, v6, v8")
        a.i("v_max_i32 v7, v7, v9")
        a.i(f"v_lshl_add_u32 v{64+e}, v6, 1, s26")
        a.i(f"v_lshl_add_u32 v{65+e}, v7, 1, s26")
    a.i("v_and_b32 v6, 15, v2")
    a.i("s_lshl_b32 s24, s22, 4")
    a.i("v_add_u32 v6, s24, v6")
    a.i("v_lshrrev_b32 v7, 4, v2")
    a.i("v_max_u32 v8, 1, v7")
    a.i("v_sub_u32 v8, 4, v8")
    a.i("v_lshlrev_b32 v8, v8, v6")
    a.i("v_lshlrev_b32 v9, 2, v7")
    a.i("v_lshlrev_b32 v17, 7, v7")
    a.i("v_cmp_gt_u32 vcc, 2, v7")
    a.i("s_nop 1")
    a.i("v_cndmask_b32 v9, v17, v9, vcc")
    a.i("v_add_u32 v8, v8, v9")
    a.i("v_lshl_add_u32 v80, v8, 1, s26")
    a.i("v_cmp_eq_u32 vcc, 3, v7")
    a.i("v_mov_b32 v9, 4")
    a.i("v_mov_b32 v17, 128")
    a.i("v_cndmask_b32 v9, v9, v17, vcc")
    a.i("v_add_u32 v81, v80, v9")
    a.i("v_min_u32 v9, 2, v7")
    a.i("v_lshlrev_b32 v9, 7, v9")
    a.i("v_add3_u32 v9, v9, v6, 0")
    a.i("v_add_u32 v9, 512, v9")
    a.i("v_lshl_add_u32 v82, v9, 1, s26")
    a.i("v_and_b32 v8, 15, v2")
    a.i("v_mul_u32_u24 v8, 528, v8")
    a.i("v_lshl_add_u32 v8, v7, 4, v8")
    a.i("v_add_u32 v83, s25, v8")
    a.i(f"s_mul_i32 s24, s22, {16*528}")
    a.i(f"s_add_u32 s24, s24, {BT}")
    a.i("v_add_u32 v84, s24, v83")
    a.i("v_lshl_add_u32 v85, v2, 3, s25")
    a.wait_vm(a.vm)
    a.i("v_lshlrev_b32 v16, 16, v16")
    a.i(f"v_mul_f32 v17, {fl(L2E_hi)}, v16")
    a.i(f"v_mov_b32 v18, {fl(L2E_hi)}")
    a.i("v_fma_f32 v18, v16, v18, -v17")
    a.i(f"v_fmac_f32 v18, {fl(L2E_lo)}, v16")
    a.i("v_exp_f32 v17, v17")
    a.i(f"v_mul_f32 v18, {fl(math.log(2.0))}, v18")
    a.i("v_fmac_f32 v17, v17, v18")
    a.i("v_cvt_pk_bf16_f32 v17, v17, v17")
    a.i("v_lshlrev_b32 v16, 16, v17")
    a.i("v_lshlrev_b32 v20, 16, v10"); a.i("v_and_b32 v21, 0xffff0000, v10")
    a.i("v_lshlrev_b32 v22, 16, v11"); a.i("v_and_b32 v23, 0xffff0000, v11")
    for r in (20, 21, 22, 23): a.i(f"v_mul_f32 v{r}, v16, v{r}")
    for r in (20, 21): a.i(f"v_mul_f32 v{r}, {fl(L2E)}, v{r}")
    for r in (22, 23): a.i(f"v_mul_f32 v{r}, 0.15915494, v{r}")
    def direct(dst, vv):
        for m in range(2):
            a.i(f"v_mul_f32 v{24+m}, {fl(float(vv))}, v{20+m}")
            a.i(f"v_mul_f32 v{26+m}, {fl(float(vv))}, v{22+m}")
        for m in range(2):
            a.i(f"v_exp_f32 v{24+m}, v{24+m}")
            a.i(f"v_fract_f32 v{26+m}, v{26+m}")
        for m in range(2):
            a.i(f"v_cos_f32 v{28+m}, v{26+m}")
            a.i(f"v_sin_f32 v{30+m}, v{26+m}")
        a.i("s_nop 0")
        for m in range(2):
            a.i(f"v_mul_f32 v{dst+2*m}, v{24+m}, v{28+m}")
            a.i(f"v_mul_f32 v{dst+2*m+1}, v{24+m}, v{30+m}")
    def put(z, off, t):
        a.i(f"v_cvt_pk_f16_f32 v{t}, v{z}, v{z+1}")
        a.i(f"v_cvt_pk_f16_f32 v{t+1}, v{z+2}, v{z+3}")
        a.dsop(f"ds_write_b64 v85, v[{t}:{t+1}] offset:{off}")
    def cm2(d, z, w, t):
        for m in range(2): a.i(f"v_pk_mul_f32 v[{t+2*m}:{t+2*m+1}], v[{z+2*m}:{z+2*m+1}], v[{w+2*m}:{w+2*m+1}] op_sel:[0,0] op_sel_hi:[0,1]")
        for m in range(2): a.i(f"v_pk_fma_f32 v[{d+2*m}:{d+2*m+1}], v[{z+2*m}:{z+2*m+1}], v[{w+2*m}:{w+2*m+1}], v[{t+2*m}:{t+2*m+1}] op_sel:[1,1,0] op_sel_hi:[1,0,1] neg_lo:[1,0,0]")
    a.i("s_cmp_eq_u32 s22, 1")
    a.i("s_cbranch_scc1 k1_hi")
    direct(32, 8)
    direct(40, 128)
    a.i("v_mov_b32 v36, 1.0"); a.i("v_mov_b32 v37, 0"); a.i("v_mov_b32 v38, 1.0"); a.i("v_mov_b32 v39, 0")
    for r in range(16):
        put(36, BT + r * 528, 52 + 4 * (r & 1))
        put(40, BT + (16 + r) * 528, 54 + 4 * (r & 1))
        if r < 15:
            cm2(36, 36, 32, 44)
            cm2(40, 40, 32, 48)
    a.i("s_branch k1_join")
    a.raw("k1_hi:")
    a.i("v_xor_b32 v22, 0x80000000, v22"); a.i("v_xor_b32 v23, 0x80000000, v23")
    for k, src in enumerate((12, 13, 14, 15)):
        a.i(f"v_lshlrev_b32 v{40+2*k}, 16, v{src}"); a.i(f"v_and_b32 v{41+2*k}, 0xffff0000, v{src}")
    for r in (40, 41, 42, 43): a.i(f"v_mul_f32 v{r}, v16, v{r}")
    for m in range(2):
        a.i(f"v_mul_f32 v{36+2*m}, v{44+m}, v{40+m}")
        a.i(f"v_fma_f32 v{36+2*m}, -v{46+m}, v{42+m}, v{36+2*m}")
        a.i(f"v_mul_f32 v{37+2*m}, v{44+m}, v{42+m}")
        a.i(f"v_fma_f32 v{37+2*m}, -v{46+m}, v{40+m}, -v{37+2*m}")
    a.i("v_max3_f32 v48, abs(v36), abs(v37), abs(v38)")
    a.i("v_max_f32 v49, abs(v39), abs(v39)")
    a.i("v_max_f32 v48, v48, v49")
    for rr in (8, 4, 2, 1):
        a.i("s_nop 1")
        a.i(f"v_max_f32_dpp v48, v48, v48 row_ror:{rr} row_mask:0xf bank_mask:0xf")
    a.i("s_nop 1")
    for k, ln in enumerate((0, 16, 32, 48)): a.i(f"v_readlane_b32 s{54+k}, v48, {ln}")
    a.i("s_nop 3")
    a.i("s_max_u32 s54, s54, s55"); a.i("s_max_u32 s56, s56, s57"); a.i("s_max_u32 s54, s54, s56")
    a.i("s_lshr_b32 s54, s54, 23")
    a.i("s_max_u32 s54, s54, 1"); a.i("s_min_u32 s54, s54, 253")
    a.i("s_sub_u32 s55, 254, s54"); a.i("s_lshl_b32 s55, s55, 23")
    a.i("s_lshl_b32 s54, s54, 23")
    for r in (36, 37, 38, 39): a.i(f"v_mul_f32 v{r}, s55, v{r}")
    direct(32, 1)
    direct(40, 256)
    cm2(56, 36, 40, 44)
    cm2(60, 32, 32, 48)
    put(36, 0, 52)
    cm2(86, 60, 60, 48)
    put(56, 8 * 528, 54)
    cm2(94, 56, 60, 44)
    cm2(36, 36, 32, 48); put(94, 9 * 528, 90); put(36, 1 * 528, 52)
    cm2(94, 94, 60, 44); cm2(36, 36, 32, 48); put(94, 10 * 528, 90); put(36, 2 * 528, 52)
    cm2(94, 94, 60, 44); cm2(36, 36, 32, 48); put(94, 11 * 528, 90); put(36, 3 * 528, 52)
    cm2(56, 56, 40, 44); cm2(36, 36, 32, 48); put(56, 12 * 528, 90); put(36, 4 * 528, 52)
    cm2(94, 56, 86, 44); cm2(36, 36, 32, 48); put(94, 13 * 528, 90); put(36, 5 * 528, 52)
    cm2(56, 56, 40, 44); cm2(36, 36, 32, 48); put(56, 14 * 528, 90); put(36, 6 * 528, 52)
    cm2(94, 56, 86, 44); cm2(36, 36, 32, 48); put(94, 15 * 528, 90); put(36, 7 * 528, 52)
    for row in range(16, 21):
        cm2(56, 56, 40, 44); put(56, row * 528, 52 + 2 * (row & 1))
    a.i("v_cmp_eq_u32 vcc, 0, v2")
    a.i("s_and_saveexec_b64 s[58:59], vcc")
    a.i("v_mov_b32 v44, 0"); a.i("v_mov_b32 v45, 0"); a.i("v_mov_b32 v46, 0"); a.i("v_mov_b32 v47, 0")
    a.i("v_mov_b32 v48, s54")
    a.i(f"s_mul_i32 s24, s23, {KG_STRIDE}"); a.i(f"s_add_u32 s24, s24, {KG_OFF + 4096}")
    a.i("v_mov_b32 v49, s24")
    a.i("s_lshl_b32 s24, s23, 2"); a.i(f"s_add_u32 s24, s24, {KS_OFF}")
    a.i("v_mov_b32 v50, s24")
    a.i("global_store_dwordx4 v49, v[44:47], s[48:49]")
    a.i("global_store_dword v50, v48, s[48:49]")
    a.i("s_mov_b64 exec, s[58:59]")
    a.raw("k1_join:")
    a.i("s_waitcnt lgkmcnt(0)"); a.ds_done = a.ds
    a.i("s_barrier")
    ids = []
    for k in range(8):
        b = 96 + 12 * k
        a.dsop(f"ds_read_b128 v[{b}:{b+3}], v83 offset:{k*64}")
        a.dsop(f"ds_read_b128 v[{b+4}:{b+7}], v83 offset:{k*64 + 16*528}")
        ids.append(a.dsop(f"ds_read_b128 v[{b+8}:{b+11}], v84 offset:{k*64}"))
    for k in range(8):
        b = 96 + 12 * k
        a.wait_ds(ids[k])
        c0 = "0" if k == 0 else "v[40:43]"; c1 = "0" if k == 0 else "v[44:47]"
        a.i(f"v_mfma_f32_16x16x32_f16 v[40:43], v[{b}:{b+3}], v[{b+8}:{b+11}], {c0}")
        a.i(f"v_mfma_f32_16x16x32_f16 v[44:47], v[{b+4}:{b+7}], v[{b+8}:{b+11}], {c1}")
    a.nop(10)
    a.i("v_cvt_pk_f16_f32 v48, v40, v41"); a.i("v_cvt_pk_f16_f32 v49, v42, v43")
    a.i("v_cvt_pk_f16_f32 v50, v44, v45"); a.i("v_cvt_pk_f16_f32 v51, v46, v47")
    a.dsop("ds_write_b32 v80, v48"); a.dsop("ds_write_b32 v81, v49")
    a.dsop("ds_write_b16 v82, v50"); a.dsop("ds_write_b16_d16_hi v82, v50 offset:64")
    a.dsop("ds_write_b16 v82, v51 offset:128"); a.dsop("ds_write_b16_d16_hi v82, v51 offset:192")
    a.i("s_waitcnt lgkmcnt(0)"); a.ds_done = a.ds
    a.i("s_barrier")
    for e in range(16):
        a.dsop(f"ds_read_u16 v{96 + e}, v{64+e}")
    a.i(f"s_mul_i32 s24, s23, {KG_STRIDE}"); a.i(f"s_add_u32 s24, s24, {KG_OFF}")
    a.i("s_lshl_b32 s27, s22, 11"); a.i("s_add_u32 s24, s24, s27")
    a.i("v_lshl_add_u32 v3, v2, 5, s24")
    a.i("s_waitcnt lgkmcnt(0)")
    for e in range(8): a.i(f"v_lshl_or_b32 v{40+e}, v{97+2*e}, 16, v{96+2*e}")
    a.i("global_store_dwordx4 v3, v[40:43], s[48:49]")
    a.i("global_store_dwordx4 v3, v[44:47], s[48:49] offset:16")
    a.i("s_endpgm")
    a.raw("k1_ln:")
    a.i(f"s_sub_u32 s21, s2, {NKG}")
    a.i("s_lshl_b32 s22, s21, 4"); a.i("s_lshl_b32 s23, s20, 2"); a.i("s_add_u32 s22, s22, s23")
    a.i("v_lshrrev_b32 v3, 4, v2"); a.i("v_add_u32 v3, s22, v3")
    a.i("v_and_b32 v4, 15, v2")
    a.i("v_mul_u32_u24 v5, 1152, v3"); a.i("v_lshl_add_u32 v5, v4, 3, v5")
    a.i("s_waitcnt lgkmcnt(0)")
    xl = []
    for j in range(9):
        xl.append(a.vmem(f"global_load_dwordx2 v[{16+4*j}:{17+4*j}], v5, s[32:33] offset:{128*j}"))
    a.i("s_and_b32 s24, s21, 7"); a.i("s_lshr_b32 s25, s21, 3"); a.i("s_lshl_b32 s25, s25, 2"); a.i("s_add_u32 s25, s25, s20")
    a.i(f"s_mul_i32 s26, s25, {9*9216}"); a.i("s_mul_i32 s27, s24, 1152"); a.i("s_add_u32 s26, s26, s27")
    a.i("s_mul_i32 s27, s24, 663552"); a.i("s_mul_i32 s28, s25, 10368"); a.i("s_add_u32 s27, s27, s28")
    for j in range(3):
        a.i(f"v_add_u32 v6, {64*j}, v2"); a.i("v_min_u32 v6, 161, v6")
        a.i("v_mul_u32_u24 v7, 3641, v6"); a.i("v_lshrrev_b32 v7, 16, v7")
        a.i(f"v_mul_u32_u24 v8, {9216 - 18*64}, v7"); a.i("v_lshl_add_u32 v8, v6, 6, v8")
        a.i("v_add_u32 v8, s26, v8")
        a.i("v_lshl_add_u32 v9, v6, 6, s27")
        a.vmem(f"global_load_dword v{100+2*j}, v8, s[50:51]")
        a.vmem(f"global_load_dword v{101+2*j}, v9, s[52:53]")
    nun = (code_pf_bytes + 4095) // 4096
    a.i(f"s_cmp_ge_u32 s25, {nun}")
    a.i("s_cbranch_scc1 k1_nopf")
    a.i("s_getpc_b64 s[28:29]")
    a.raw("k1_pc:")
    a.i(f"s_add_u32 s28, s28, {code_pf_label}-k1_pc")
    a.i("s_addc_u32 s29, s29, 0")
    a.i("s_lshl_b32 s30, s25, 12")
    a.i("v_lshl_add_u32 v6, v2, 6, s30")
    a.i(f"v_min_u32 v6, k_code_end-{code_pf_label}, v6")
    a.i("v_mov_b32 v7, s29")
    a.i("v_add_co_u32 v6, vcc, s28, v6")
    a.i("s_nop 1")
    a.i("v_addc_co_u32 v7, vcc, 0, v7, vcc")
    a.i("global_load_dword v106, v[6:7], off")
    a.raw("k1_nopf:")
    a.i("v_lshrrev_b32 v6, 6, v3"); a.i("v_mul_u32_u24 v6, 73728, v6")
    a.i("v_bfe_u32 v7, v3, 5, 1"); a.i("v_mul_u32_u24 v7, 36864, v7"); a.i("v_add_u32 v6, v6, v7")
    a.i("v_lshrrev_b32 v7, 2, v4"); a.i("v_lshl_add_u32 v6, v7, 10, v6")
    a.i("v_and_b32 v7, 31, v3"); a.i("v_lshl_add_u32 v6, v7, 4, v6")
    a.i("v_bfe_u32 v7, v4, 1, 1"); a.i("v_lshl_add_u32 v6, v7, 9, v6")
    a.i("v_and_b32 v7, 1, v4"); a.i("v_lshl_add_u32 v10, v7, 3, v6")
    a.i("v_lshlrev_b32 v6, 15, v4"); a.i("v_lshl_add_u32 v11, v3, 4, v6"); a.i(f"v_add_u32 v11, {XU_OFF}, v11")
    a.i("s_waitcnt vmcnt(6)")
    def X(j, e): return 56 + 4 * j + e
    for j in range(9):
        for h in range(2):
            a.i(f"v_lshlrev_b32 v{X(j,2*h)}, 16, v{16+4*j+h}")
            a.i(f"v_and_b32 v{X(j,2*h+1)}, 0xffff0000, v{16+4*j+h}")
    a.i(f"v_add_f32 v12, v{X(0,0)}, v{X(0,1)}"); a.i(f"v_add_f32 v13, v{X(0,2)}, v{X(0,3)}")
    for j in range(1, 9):
        a.i(f"v_add_f32 v12, v12, v{X(j,0)}"); a.i(f"v_add_f32 v13, v13, v{X(j,1)}")
        a.i(f"v_add_f32 v12, v12, v{X(j,2)}"); a.i(f"v_add_f32 v13, v13, v{X(j,3)}")
    a.i("v_add_f32 v12, v12, v13")
    def rowsum(r):
        for rr in (8, 4, 2, 1):
            a.i("s_nop 1"); a.i(f"v_add_f32_dpp v{r}, v{r}, v{r} row_ror:{rr} row_mask:0xf bank_mask:0xf")
    rowsum(12)
    a.i(f"v_mul_f32 v12, {fl(1.0/576)}, v12")
    a.i("v_mov_b32 v13, 0"); a.i("v_mov_b32 v14, 0")
    for j in range(9):
        for e in range(4):
            a.i(f"v_sub_f32 v{92 + (e&3)}, v{X(j,e)}, v12")
        for e in range(4):
            a.i(f"v_fmac_f32 v{13 + (e&1)}, v{92+e}, v{92+e}")
    a.i("v_add_f32 v13, v13, v14")
    rowsum(13)
    a.i(f"v_mul_f32 v13, {fl(1.0/576)}, v13")
    a.i("v_cvt_pk_bf16_f32 v14, v12, v13")
    a.i("v_lshlrev_b32 v12, 16, v14")
    a.i("v_and_b32 v13, 0xffff0000, v14")
    a.i(f"v_add_f32 v13, {fl(1e-5)}, v13")
    a.i("v_cvt_pk_bf16_f32 v13, v13, v13"); a.i("v_lshlrev_b32 v13, 16, v13")
    a.i("v_sqrt_f32 v14, v13")
    a.i("s_nop 0")
    a.i("v_rcp_f32 v15, v14"); a.i("v_fma_f32 v92, -v14, v14, v13"); a.i("v_mul_f32 v15, 0.5, v15"); a.i("v_fmac_f32 v14, v92, v15")
    a.i("v_cvt_pk_bf16_f32 v13, v14, v14"); a.i("v_lshlrev_b32 v13, 16, v13")
    a.i("v_rcp_f32 v14, v13")
    a.i("s_nop 0")
    for j in range(9):
        for e in range(4): a.i(f"v_sub_f32 v{X(j,e)}, v{X(j,e)}, v12")
        a.i(f"v_cvt_pk_bf16_f32 v92, v{X(j,0)}, v{X(j,1)}"); a.i(f"v_cvt_pk_bf16_f32 v93, v{X(j,2)}, v{X(j,3)}")
        a.i(f"v_lshlrev_b32 v{X(j,0)}, 16, v92"); a.i(f"v_and_b32 v{X(j,1)}, 0xffff0000, v92")
        a.i(f"v_lshlrev_b32 v{X(j,2)}, 16, v93"); a.i(f"v_and_b32 v{X(j,3)}, 0xffff0000, v93")
        for e in range(4): a.i(f"v_mul_f32 v{94+e}, v{X(j,e)}, v14")
        for e in range(4): a.i(f"v_fma_f32 v{X(j,e)}, -v{94+e}, v13, v{X(j,e)}")
        for e in range(4): a.i(f"v_fmac_f32 v{94+e}, v{X(j,e)}, v14")
        a.i(f"v_cvt_pk_bf16_f32 v{18+4*j}, v94, v95"); a.i(f"v_cvt_pk_bf16_f32 v{19+4*j}, v96, v97")
        a.i(f"global_store_dwordx2 v10, v[{18+4*j}:{19+4*j}], s[48:49]")
        a.i(f"global_store_dwordx4 v11, v[{16+4*j}:{19+4*j}], s[48:49]")
        if j < 8:
            a.i("v_add_u32 v10, 4096, v10"); a.i("v_add_u32 v11, 524288, v11")
    a.raw("k1_end:")
    a.i("s_endpgm")
    return a.text(), kd(name, 192, 192)
```

```python
from common import *
import math
NR = 10
RING = NR * 2048
XH = 73728
BIAS_OFF = XH + 4 * RING
K2_LDS = BIAS_OFF + 2304
R1, R2, R3 = 64, 128, 192
C0 = -2.0 * math.sqrt(2.0 / math.pi) * math.log2(math.e)
C1 = C0 * 0.044715
SLOTS = 6
vW1a, vW1b, vW2a, vW2b = 4, 5, 6, 7
vT = {1: (8, 9), 2: (10, 11)}
vX = (12, 13, 14, 15)
vHo = (16, 17, 18, 19)
vSw, vSr, vB, vBo, vP, vC1, vHw = 20, 21, 22, 23, 24, 25, 26
GT = 28
PK = 36
sW1, sW2, sWS, sB1 = 8, 12, 16, 20
sK1 = (24, 25, 26, 27); sA2 = (28, 29, 30, 31); sB2 = (32, 33, 34, 35)
sO1, sA2o, sB2o, sP, sPo, sRing, sOff, sQ, sTmp = 36, 37, 38, 39, 40, 41, 42, 43, 44

def breg(phase, sigma, tt):
    if phase == 1:
        n = sigma * 2 + tt
        if n < 56: return f"a[{4*n}:{4*n+3}]"
        b = R3 + 4 * (n - 56); return f"v[{b}:{b+3}]"
    kind, k = sigma
    if kind == 's1':
        n = 2 * k + tt; return f"a[{4*n}:{4*n+3}]"
    n = 2 * k + tt
    if n < 16: return f"a[{160+4*n}:{160+4*n+3}]"
    b = R2 + 4 * (n - 16); return f"v[{b}:{b+3}]"

def gen():
    a = Asm(); name = "k2_kernel"
    header(a, name)
    a.i("s_cmp_ge_u32 s2, 256"); a.i("s_cbranch_scc1 k2_end")
    a.i("s_load_dwordx4 s[48:51], s[0:1], 80")
    a.i("s_load_dwordx2 s[52:53], s[0:1], 96")
    a.i("s_load_dwordx2 s[54:55], s[0:1], 128")
    a.i("v_lshrrev_b32 v1, 6, v0"); a.i("v_and_b32 v2, 63, v0")
    a.i(f"v_readfirstlane_b32 s{sQ}, v1")
    a.i("s_and_b32 s3, s2, 7")
    a.i("s_lshr_b32 s4, s2, 3")
    a.i("v_lshlrev_b32 v3, 4, v2")
    a.i("s_waitcnt lgkmcnt(0)")
    srd(a, sWS, 54, WS_BYTES)
    a.i(f"s_mul_i32 s5, s{sQ}, 18432")
    a.i("s_mul_i32 s6, s4, 73728"); a.i("s_add_u32 s6, s6, s5")
    if XF_OFF: a.i(f"s_add_u32 s6, s6, {XF_OFF}")
    for n in range(0, 18, 4):
        a.i(f"s_add_u32 m0, s5, {n*1024}")
        a.i(f"s_add_u32 s7, s6, {n*1024}")
        for k in range(min(4, 18 - n)):
            xid = a.vmem(f"buffer_load_dwordx4 v3, s[{sWS}:{sWS+3}], s7 offen offset:{k*1024} lds")
    srd(a, sW1, 48, 5308416); srd(a, sW2, 52, 5308416); srd(a, sB1, 50, 9216)
    a.i("v_min_u32 v27, 143, v0")
    a.i("s_mul_i32 s7, s3, 1152")
    a.i("v_lshlrev_b32 v28, 3, v27")
    bid = a.vmem(f"buffer_load_dwordx2 v[30:31], v28, s[{sB1}:{sB1+3}], s7 offen")
    a.i(f"s_lshl_b32 s{sTmp}, s{sQ}, 8")
    for g in range(4):
        a.i(f"s_add_u32 s5, s{sQ}, {g}"); a.i("s_and_b32 s5, s5, 3")
        a.i(f"s_mul_i32 s{sK1[g]}, s5, {144*9216}"); a.i(f"s_add_u32 s{sK1[g]}, s{sK1[g]}, s7")
        a.i("s_mul_i32 s6, s3, 663552")
        a.i(f"s_mul_i32 s{sA2[g]}, s5, {128*1152}"); a.i(f"s_add_u32 s{sA2[g]}, s{sA2[g]}, s6")
        a.i(f"s_mul_i32 s{sB2[g]}, s5, {16*1152}"); a.i(f"s_add_u32 s{sB2[g]}, s{sB2[g]}, s6"); a.i(f"s_add_u32 s{sB2[g]}, s{sB2[g]}, {512*1152}")
        a.i("s_mul_i32 s6, s5, 9216"); a.i(f"v_add_u32 v{vX[g]}, s6, v3")
        a.i("s_lshl_b32 s6, s5, 10"); a.i("s_add_u32 s6, s6, 32768"); a.i(f"v_add_u32 v{vHo[g]}, s6, v3")
    for d, s_ in ((sO1, sK1[0]), (sA2o, sA2[0]), (sB2o, sB2[0])):
        a.i(f"s_add_u32 s{d}, s{s_}, 1024"); a.i(f"s_sub_u32 s{d}, s{d}, s{sTmp}")
    a.i(f"s_mul_i32 s{sRing}, s{sQ}, {RING}"); a.i(f"s_add_u32 s{sRing}, s{sRing}, {XH}")
    a.i("v_lshrrev_b32 v28, 3, v2")
    a.i("v_bfe_u32 v29, v2, 4, 1"); a.i("v_lshlrev_b32 v29, 2, v29")
    a.i("v_and_b32 v32, 7, v2"); a.i("v_xor_b32 v29, v29, v32")
    a.i(f"v_lshl_add_u32 v29, v29, 4, s{sTmp}")
    a.i(f"v_mul_u32_u24 v{vW1a}, 9216, v28"); a.i(f"v_add_u32 v{vW1a}, v{vW1a}, v29")
    a.i(f"v_add_u32 v{vW1b}, {8*9216-1024}, v{vW1a}")
    a.i(f"v_mul_u32_u24 v{vW2a}, 1152, v28"); a.i(f"v_add_u32 v{vW2a}, v{vW2a}, v29")
    a.i(f"v_add_u32 v{vW2b}, {8*1152-1024}, v{vW2a}")

    steps = []
    def add(ph, sbase, imm, sigma, acc, cinit, tag):
        steps.append(dict(ph=ph, sbase=sbase, imm=imm, sigma=sigma, acc=acc, cinit=cinit, tag=tag))
    for i in range(9): add(1, sO1, i * 16 * 9216, i, R2, 'zero' if i == 0 else None, ('O1', i))
    for p, acc in ((0, R1), (1, R2)):
        for sg in range(36):
            add(1, sK1[sg // 9], (sg % 9) * 16 * 9216 + 128 * p, sg, acc, 'bias' if sg == 0 else None, ('P%d' % p, sg))
    def s1(n):
        g, i = divmod(n, 5)
        return (sA2[g], i * 16 * 1152) if i < 4 else (sB2[g], 0)
    def s2(n):
        g, i = divmod(n, 4); return (sA2[g], (4 + i) * 16 * 1152)
    for p, acc in ((0, R1), (1, R3)):
        for n in range(20):
            sb, im = s1(n); add(2, sb, im + 128 * p, ('s1', n), acc, 'zero' if n == 0 else None, ('D%ds1' % p, n))
    for n in range(16):
        sb, im = s2(n); add(2, sb, im, ('s2', n), R1, None, ('D0s2', n))
    for n in range(8):
        sb, im = s2(n); add(2, sb, im + 128, ('s2', n), R3, None, ('D1s2', n))
    odd2 = [(sA2o, i * 16 * 1152, ('s1', i)) for i in range(4)] + [(sB2o, 0, ('s1', 4))] + [(sA2o, (4 + i) * 16 * 1152, ('s2', i)) for i in range(4)]
    for i, (sb, im, sg) in enumerate(odd2): add(2, sb, im, sg, R1, 'zero' if i == 0 else None, ('O2', i))
    for n in range(8, 16):
        sb, im = s2(n); add(2, sb, im + 128, ('s2', n), R3, None, ('D1s2', n))
    NS = len(steps); assert NS == 162
    dma_id = {}
    def dma(k):
        st = steps[k]
        srdr = sW1 if st['ph'] == 1 else sW2
        va, vb = (vW1a, vW1b) if st['ph'] == 1 else (vW2a, vW2b)
        a.i(f"s_add_u32 m0, s{sRing}, {(k % NR) * 2048}")
        a.i(f"s_add_u32 s{sOff}, s{st['sbase']}, {st['imm']}")
        a.vmem(f"buffer_load_dwordx4 v{va}, s[{srdr}:{srdr+3}], s{sOff} offen lds")
        dma_id[k] = a.vmem(f"buffer_load_dwordx4 v{vb}, s[{srdr}:{srdr+3}], s{sOff} offen offset:1024 lds")
    for k in range(NR): dma(k)
    a.i("v_lshrrev_b32 v28, 5, v2")
    a.i("v_bfe_u32 v29, v2, 2, 2")
    a.i("v_bfe_u32 v32, v2, 4, 1"); a.i("v_lshlrev_b32 v32, 5, v32")
    a.i("v_and_b32 v33, 3, v2"); a.i("v_lshl_add_u32 v32, v33, 3, v32")
    a.i("v_lshl_add_u32 v32, v29, 7, v32"); a.i(f"v_add_u32 v32, s{sRing}, v32")
    a.i("v_bfe_u32 v33, v2, 3, 1"); a.i("v_lshlrev_b32 v33, 6, v33")
    a.i("v_xor_b32 v34, 64, v33")
    a.i("v_lshl_add_u32 v35, v28, 10, v32")
    a.i(f"v_add_u32 v{vT[1][0]}, v35, v33"); a.i(f"v_add_u32 v{vT[1][1]}, v35, v34")
    a.i("v_lshl_add_u32 v35, v28, 9, v32")
    a.i(f"v_add_u32 v{vT[2][0]}, v35, v33"); a.i(f"v_add_u32 v{vT[2][1]}, v35, v34")
    a.i(f"s_lshr_b32 s5, s{sQ}, 1"); a.i(f"s_lshl_b32 s6, s{sQ}, 4"); a.i("s_lshl_b32 s7, s5, 2"); a.i("s_add_u32 s6, s6, s7"); a.i("s_lshl_b32 s6, s6, 10")
    a.i(f"v_add_u32 v{vSw}, s6, v3")
    a.i(f"s_and_b32 s6, s{sQ}, 1"); a.i("s_lshl_b32 s6, s6, 1"); a.i("s_lshl_b32 s7, s5, 3"); a.i("s_add_u32 s6, s6, s7")
    a.i("s_lshl_b32 s7, s6, 10"); a.i(f"v_add_u32 v{vSr}, s7, v3")
    a.i(f"s_lshl_b32 s7, s{sQ}, 9"); a.i(f"s_add_u32 s7, s7, {BIAS_OFF}"); a.i(f"v_lshl_add_u32 v{vB}, v28, 4, s7")
    a.i(f"s_lshl_b32 s7, s{sQ}, 6"); a.i(f"s_add_u32 s7, s7, {BIAS_OFF + 2048}"); a.i(f"v_lshl_add_u32 v{vBo}, v28, 4, s7")
    a.i("v_and_b32 v29, 31, v2"); a.i("v_lshlrev_b32 v29, 4, v29"); a.i(f"v_lshl_add_u32 v{vP}, v28, 17, v29")
    a.i(f"s_lshl_b32 s7, s{sQ}, 13"); a.i(f"v_add_u32 v{vHw}, s7, v3")
    a.i(f"s_add_u32 s7, s{sTmp}, s3"); a.i("s_lshl_b32 s7, s7, 14"); a.i("s_lshl_b32 s45, s4, 9"); a.i(f"s_add_u32 s45, s45, {PART_OFF}")
    a.i(f"s_add_u32 s{sP}, s7, s45")
    a.i(f"s_lshl_b32 s7, s{sQ}, 2"); a.i("s_add_u32 s7, s7, 128"); a.i("s_lshl_b32 s7, s7, 3"); a.i("s_add_u32 s7, s7, s3"); a.i("s_lshl_b32 s7, s7, 14")
    a.i(f"s_add_u32 s{sPo}, s7, s45")
    a.i(f"v_mov_b32 v{vC1}, {fl(C1)}")
    a.wait_vm(bid)
    a.i("v_lshlrev_b32 v32, 16, v30"); a.i("v_and_b32 v33, 0xffff0000, v30"); a.i("v_lshlrev_b32 v34, 16, v31"); a.i("v_and_b32 v35, 0xffff0000, v31")
    a.i(f"v_lshlrev_b32 v27, 4, v27"); a.i(f"v_add_u32 v27, {BIAS_OFF}, v27")
    a.dsop("ds_write_b128 v27, v[32:35]")
    a.wait_ds(a.ds)
    a.i("s_barrier")

    Q = []
    bready = {}
    def push(cost, fn, key=None): Q.append((cost, fn, key))
    def run_one():
        c, fn, key = Q.pop(0); fn(); return c
    def fill(budget):
        while Q and budget >= Q[0][0]:
            budget -= run_one()
    def flush_until(key):
        if not any(k == key for _, _, k in Q): return
        while True:
            c, fn, k = Q.pop(0); fn()
            if k == key: break
    def push_bload(ph, sigma, tt, addr, imm):
        def fn():
            bready[(ph, sigma, tt)] = a.dsop(f"ds_read_b128 {breg(ph, sigma, tt)}, v{addr} offset:{imm}")
        push(1, fn, ('B', ph, sigma, tt))
    def push_barrier(key=None, wait_ds=True):
        def fn():
            if wait_ds: a.wait_ds(a.ds)
            a.i("s_barrier")
        push(2, fn, key)
    gcount = [0]
    def push_gelu8(x, waddr, wimm):
        pk = PK + 4 * (gcount[0] % 4); gcount[0] += 1
        for hq in range(2):
            xs = x[4*hq:4*hq+4]; t = [GT + 4 * hq + e for e in range(4)]
            for e in range(4):
                def f(e=e, xs=xs, t=t):
                    a.need_mfma([xs[e]]); a.i(f"v_mul_f32 v{t[e]}, v{xs[e]}, v{xs[e]}")
                push(1, f)
            for e in range(4): push(1, lambda e=e, t=t: a.i(f"v_fmaak_f32 v{t[e]}, v{t[e]}, v{vC1}, {fl(C0)}"))
            for e in range(4): push(1, lambda e=e, t=t, xs=xs: a.i(f"v_mul_f32 v{t[e]}, v{xs[e]}, v{t[e]}"))
            for e in range(4): push(2, lambda e=e, t=t: a.i(f"v_exp_f32 v{t[e]}, v{t[e]}"))
            for e in range(4): push(1, lambda e=e, t=t: a.i(f"v_add_f32 v{t[e]}, 1.0, v{t[e]}"))
            for e in range(4): push(2, lambda e=e, t=t: a.i(f"v_rcp_f32 v{t[e]}, v{t[e]}"))
            for e in range(4): push(1, lambda e=e, t=t, xs=xs: a.i(f"v_mul_f32 v{t[e]}, v{xs[e]}, v{t[e]}"))
            for e in range(2): push(1, lambda e=e, t=t, hq=hq: a.i(f"v_cvt_pk_bf16_f32 v{pk+2*hq+e}, v{t[2*e]}, v{t[2*e+1]}"))
        push(1, lambda: a.dsop(f"ds_write_b128 v{waddr}, v[{pk}:{pk+3}] offset:{wimm}"))
    def unit(acc, t, tt): return acc + 16 * (2 * t + tt)
    def push_gelu_pair(acc, p):
        for t in range(2):
            for tt in range(2):
                for kp in range(2):
                    b = unit(acc, t, tt) + 8 * kp
                    push_gelu8(list(range(b, b + 8)), vHw, tt * 36864 + (4 * p + 2 * t + kp) * 1024)
    def push_bias(acc, p):
        for t in range(2):
            for j in range(4):
                b = unit(acc, t, 1) + 4 * j
                def f(b=b, t=t, j=j):
                    a.need_mfma(list(range(b, b + 4)))
                    bready[('bias', acc, t)] = a.dsop(f"ds_read_b128 v[{b}:{b+3}], v{vB} offset:{(2*p+t)*128 + j*32}")
                push(1, f, ('bias', acc, t, j))
    SB = (0, 16, 36, 52)
    def push_odd_reduce(acc, first):
        for n in range(16):
            def f(n=n):
                a.need_mfma(list(range(acc + 4*n, acc + 4*n + 4)))
                a.dsop(f"ds_write_b128 v{vSw}, v[{acc+4*n}:{acc+4*n+3}] offset:{n*1024}")
            push(1, f)
        push_barrier()
        rid = {}
        for src in range(4):
            for tt in range(2):
                for jj in range(2):
                    b = acc + 16 * src + 8 * tt + 4 * jj
                    def f(b=b, src=src, tt=tt, jj=jj):
                        rid[(src, tt, jj)] = a.dsop(f"ds_read_b128 v[{b}:{b+3}], v{vSr} offset:{(SB[src] + 4*tt + jj)*1024}")
                    push(1, f)
        if first:
            for jj in range(2):
                def f(jj=jj): rid[('b', jj)] = a.dsop(f"ds_read_b128 v[{52+4*jj}:{55+4*jj}], v{vBo} offset:{jj*32}")
                push(1, f)
        for src in range(1, 4):
            for tt in range(2):
                for jj in range(2):
                    for e in range(4):
                        def f(src=src, tt=tt, jj=jj, e=e):
                            a.wait_ds(rid[(src, tt, jj)])
                            d = acc + 8*tt + 4*jj + e
                            a.i(f"v_add_f32 v{d}, v{d}, v{d + 16*src}")
                        push(1, f)
        if first:
            for tt in range(2):
                for jj in range(2):
                    for e in range(4):
                        def f(tt=tt, jj=jj, e=e):
                            a.wait_ds(rid[('b', jj)])
                            d = acc + 8*tt + 4*jj + e
                            a.i(f"v_add_f32 v{d}, v{d}, v{52+4*jj+e}")
                        push(1, f)
    def push_store(x0, x1, sreg, imm):
        pk = PK + 4 * (gcount[0] % 4); gcount[0] += 1
        for k, xb in enumerate((x0, x0 + 2, x1, x1 + 2)):
            def f(k=k, xb=xb):
                a.need_mfma([xb, xb + 1]); a.i(f"v_cvt_pk_f16_f32 v{pk+k}, v{xb}, v{xb+1}")
            push(1, f)
        def f():
            a.i(f"s_add_u32 s{sTmp}, s{sreg}, {imm}")
            a.vmem(f"buffer_store_dwordx4 v[{pk}:{pk+3}], v{vP}, s[{sWS}:{sWS+3}], s{sTmp} offen sc1")
        push(2, f)
    def push_epi(acc, p):
        for t in range(2):
            for j in range(4):
                push_store(unit(acc, t, 0) + 4*j, unit(acc, t, 1) + 4*j, sP, (16*p + 8*t + 2*j) * 131072)

    for sg in range(36):
        for tt in range(2):
            push_bload(1, sg, tt, vX[sg // 9], tt * 36864 + (sg % 9) * 1024)
    push_bias(R1, 0)
    def areg(k, t): b = 224 + 8 * (k % 2) + 4 * t; return b
    tr_id = {}
    def tr(k, t):
        st = steps[k]; b = areg(k, t); jo = 512 if st['ph'] == 1 else 1024
        a.wait_vm(dma_id[k])
        a.dsop(f"ds_read_b64_tr_b16 a[{b}:{b+1}], v{vT[st['ph']][t]} offset:{(k % NR)*2048}")
        tr_id[(k, t)] = a.dsop(f"ds_read_b64_tr_b16 a[{b+2}:{b+3}], v{vT[st['ph']][t]} offset:{(k % NR)*2048 + jo}")
    flush_until(('B', 1, 1, 1))
    tr(0, 0); tr(0, 1)
    def event(tag):
        if tag == ('P0', 2):
            push_barrier()
            push_odd_reduce(R2, True)
            for tt in range(2):
                push_gelu8(list(range(R2 + 8*tt, R2 + 8*tt + 8)), vHo[0], tt * 36864)
            push_bias(R2, 1)
            push_barrier(('B4',))
        if tag == ('P1', 0):
            flush_until(('B4',))
            push_gelu_pair(R1, 0)
            push_barrier(('B5',))
            for g in range(4):
                push(1, lambda g=g: a.i(f"v_sub_u32 v{vX[g]}, v{vHo[g]}, v3"))
                push(1, lambda g=g: a.i(f"v_add_u32 v{vX[g]}, {(-32768) & 0xffffffff}, v{vX[g]}"))
                push(1, lambda g=g: a.i(f"v_lshl_add_u32 v{vX[g]}, v{vX[g]}, 3, v3"), ('vX', g))
        if tag == ('D0s1', 0):
            flush_until(('vX', 3))
            for n in range(20):
                g, i = divmod(n, 5)
                for tt in range(2):
                    if i < 4: push_bload(2, ('s1', n), tt, vX[g], tt * 36864 + i * 1024)
                    else: push_bload(2, ('s1', n), tt, vHo[g], tt * 36864)
            flush_until(('B', 2, ('s1', 1), 1))
            push_gelu_pair(R2, 1)
            push_barrier(('B6',))
            for n in range(16):
                g, i = divmod(n, 4)
                for tt in range(2): push_bload(2, ('s2', n), tt, vX[g], tt * 36864 + (4 + i) * 1024)
            push_barrier(('B7',))
        if tag == ('D1s2', 0):
            push_epi(R1, 0)
            push(0, lambda: None, ('epi0',))
        if tag == ('O2', 0):
            flush_until(('epi0',))
        if tag == ('D1s2', 8):
            push_odd_reduce(R1, False)
            for jj in range(2):
                push_store(R1 + 4*jj, R1 + 8 + 4*jj, sPo, jj * 2 * 131072)
    for k, st in enumerate(steps):
        event(st['tag'])
        ph, sg, acc = st['ph'], st['sigma'], st['acc']
        for m in range(4):
            t, tt = divmod(m, 2)
            key = ('B', ph, sg, tt)
            if (ph, sg, tt) not in bready: flush_until(key)
            a.wait_ds(bready[(ph, sg, tt)])
            a.wait_ds(tr_id[(k, t)])
            d = unit(acc, t, tt)
            if st['cinit'] == 'zero': c = "0"
            elif st['cinit'] == 'bias':
                flush_until(('bias', acc, t, 3)); a.wait_ds(bready[('bias', acc, t)])
                cb = unit(acc, t, 1); c = f"v[{cb}:{cb+15}]"
            else: c = f"v[{d}:{d+15}]"
            ab = areg(k, t)
            n0 = a.n
            a.i(f"v_mfma_f32_32x32x16_bf16 v[{d}:{d+15}], a[{ab}:{ab+3}], {breg(ph, sg, tt)}, {c}")
            a.mfma_wrote(d, 16)
            if m == 0 and k + 1 < NS: tr(k + 1, 0)
            if m == 1 and k + 1 < NS: tr(k + 1, 1)
            if m == 2 and k + NR < NS: dma(k + NR)
            used = a.n - n0 - 1
            fill(SLOTS - used - (1 if m in (1, 3) else 0))
    while Q: run_one()
    push_epi(R3, 1)
    while Q: run_one()
    a.raw("k2_end:")
    a.i("s_endpgm")
    return a.text(), kd(name, 512, 256)
```

```python
from common import *
CS = 4416
KCH = 4 * CS
RS = 144
U1 = 48 * RS + 128
UCH = 13968
U_OFF = 4 * KCH
SC_OFF = U_OFF + 4 * UCH
K3_LDS = SC_OFF + 32768
YS = 4096 + 64
sWS, sOUT = 8, 12
def gen():
    a = Asm(); name = "k3_kernel"
    header(a, name)
    a.i("s_cmp_ge_u32 s2, 144"); a.i("s_cbranch_scc1 k3_end")
    a.i("s_load_dwordx2 s[48:49], s[0:1], 128")
    a.i("s_load_dwordx4 s[52:55], s[0:1], 104")
    a.i("s_load_dwordx2 s[50:51], s[0:1], 64")
    a.i("v_lshrrev_b32 v1, 6, v0"); a.i("v_and_b32 v2, 63, v0")
    a.i("v_readfirstlane_b32 s20, v1")
    a.i("s_and_b32 s3, s2, 7"); a.i("s_lshr_b32 s4, s2, 3")
    a.i("s_lshl_b32 s5, s3, 4"); a.i("s_add_u32 s5, s5, s4")
    a.i("s_lshl_b32 s6, s3, 1"); a.i("s_add_u32 s6, s6, s4"); a.i("s_add_u32 s6, s6, 112")
    a.i("s_cmp_lt_u32 s4, 16"); a.i("s_cselect_b32 s21, s5, s6")
    a.i("s_lshr_b32 s22, s20, 1"); a.i("s_and_b32 s23, s20, 1")
    a.i("s_lshl_b32 s24, s21, 2"); a.i("s_add_u32 s24, s24, s22")
    a.i("v_lshrrev_b32 v3, 4, v0"); a.i("v_and_b32 v4, 15, v0")
    a.i("v_lshlrev_b32 v5, 6, v3"); a.i("v_lshl_add_u32 v5, v4, 1, v5")
    a.i("v_lshlrev_b32 v6, 4, v5")
    a.i("v_lshlrev_b32 v7, 5, v0")
    a.i("v_lshlrev_b32 v8, 4, v2")
    a.i("s_waitcnt lgkmcnt(0)")
    srd(a, sWS, 48, WS_BYTES); srd(a, sOUT, 54, 2359296)
    a.i("s_lshl_b32 s5, s21, 15"); a.i(f"s_add_u32 s5, s5, {XU_OFF}")
    xu = []
    for k, off in enumerate((0, 16, 512, 528)):
        xu.append(a.vmem(f"buffer_load_dwordx4 v[{16+4*k}:{19+4*k}], v6, s[{sWS}:{sWS+3}], s5 offen offset:{off}"))
    a.i(f"s_mul_i32 s5, s24, {KG_STRIDE}"); a.i(f"s_add_u32 s5, s5, {KG_OFF + 6}")
    a.i("s_lshl_b32 s6, s23, 2"); a.i("s_sub_u32 s5, s5, s6")
    a.i(f"s_mul_i32 s6, s22, {KCH}"); a.i(f"s_mul_i32 s7, s23, {2*CS}"); a.i("s_add_u32 s6, s6, s7")
    for c in range(2):
        a.i(f"s_add_u32 m0, s6, {c*CS}")
        a.i(f"s_sub_u32 s7, s5, {2*c}")
        for k in range(4):
            kid = a.vmem(f"buffer_load_dwordx4 v8, s[{sWS}:{sWS+3}], s7 offen offset:{k*1024} lds")
    a.i("s_lshl_b32 s5, s24, 2"); a.i(f"s_add_u32 s5, s5, {KS_OFF}")
    a.i("s_add_u32 s56, s48, s5"); a.i("s_addc_u32 s57, s49, 0")
    a.i("s_load_dword s30, s[56:57], 0")
    a.i("s_lshl_b32 s5, s21, 3")
    a.i("s_add_u32 s56, s50, s5"); a.i("s_addc_u32 s57, s51, 0")
    a.i("s_load_dwordx2 s[32:33], s[56:57], 0")
    a.i("s_add_u32 s56, s52, s5"); a.i("s_addc_u32 s57, s53, 0")
    a.i("s_load_dwordx2 s[34:35], s[56:57], 0")
    a.i("s_lshl_b32 s5, s21, 17"); a.i(f"s_add_u32 s5, s5, {PART_OFF}")
    pid = []
    for s_ in range(8):
        a.i(f"s_add_u32 s7, s5, {s_*16384}")
        a.vmem(f"buffer_load_dwordx4 v[{64+8*s_}:{67+8*s_}], v7, s[{sWS}:{sWS+3}], s7 offen")
        pid.append(a.vmem(f"buffer_load_dwordx4 v[{68+8*s_}:{71+8*s_}], v7, s[{sWS}:{sWS+3}], s7 offen offset:16"))
    for r in range(32, 36): a.i(f"v_mov_b32 v{r}, 0")
    a.i(f"s_mul_i32 s6, s22, {UCH}"); a.i(f"s_mul_i32 s7, s23, {U1}"); a.i("s_add_u32 s6, s6, s7"); a.i(f"s_add_u32 s6, s6, {U_OFF}")
    a.i("v_add_u32 v9, s6, v8")
    a.dsop("ds_write_b128 v9, v[32:35]"); a.dsop("ds_write_b128 v9, v[32:35] offset:1024")
    a.i("v_min_u32 v10, 15, v2"); a.i("v_lshl_add_u32 v10, v10, 4, s6")
    a.dsop("ds_write_b128 v10, v[32:35] offset:2048")
    a.i("v_mov_b32 v10, s6")
    a.dsop(f"ds_write_b64 v10, v[32:33] offset:{16*RS}")
    a.i(f"s_mul_i32 s6, s22, {KCH}"); a.i(f"s_mul_i32 s7, s23, {2*CS}"); a.i("s_add_u32 s6, s6, s7")
    a.i("v_min_u32 v10, 6, v2"); a.i("v_lshl_add_u32 v10, v10, 4, s6")
    a.dsop("ds_write_b128 v10, v[32:35] offset:4096"); a.dsop(f"ds_write_b128 v10, v[32:35] offset:{4096+CS}")
    a.i("s_waitcnt lgkmcnt(0)"); a.ds_done = a.ds
    a.i("s_barrier")
    a.i(f"v_mul_u32_u24 v9, {RS}, v3"); a.i("v_lshl_add_u32 v9, v4, 2, v9"); a.i(f"v_add_u32 v9, {U_OFF + 16*RS}, v9")
    a.i("v_cmp_lt_u32 vcc, 13, v4")
    a.i("v_mov_b32 v10, 0"); a.i("v_mov_b32 v11, 16")
    a.i("v_cndmask_b32 v10, v10, v11, vcc")
    a.i("v_add_u32 v10, v9, v10")
    a.wait_vm(xu[3])
    for pr in range(2):
        t0, t1 = 16 + 8*pr, 20 + 8*pr
        for c in range(4):
            r = 2 + c // 2
            if c % 2 == 0:
                a.i(f"v_lshlrev_b32 v36, 16, v{t0+r}"); a.i(f"v_lshlrev_b32 v37, 16, v{t1+r}")
            else:
                a.i(f"v_and_b32 v36, 0xffff0000, v{t0+r}"); a.i(f"v_and_b32 v37, 0xffff0000, v{t1+r}")
            pk = 40 + 4*pr + c
            a.i(f"v_cvt_pk_f16_f32 v{pk}, v36, v37")
            a.dsop(f"ds_write_b32 v9, v{pk} offset:{c*UCH + 64*pr}")
            if pr == 0: a.dsop(f"ds_write_b32 v9, v{pk} offset:{c*UCH + U1 + 8}")
            else:
                a.dsop(f"ds_write_b32 v10, v{pk} offset:{c*UCH + U1 + 8 + 64}")
    a.i("v_and_b32 v12, 3, v2"); a.i(f"v_mul_u32_u24 v12, {CS}, v12")
    a.i("v_lshrrev_b32 v13, 2, v2"); a.i("v_and_b32 v14, 7, v13"); a.i("v_lshrrev_b32 v13, 5, v2"); a.i("v_add_u32 v14, v14, v13")
    a.i("v_lshlrev_b32 v14, 4, v14"); a.i("v_sub_u32 v12, v12, v14")
    a.i(f"s_mul_i32 s6, s22, {KCH}"); a.i("s_lshl_b32 s7, s23, 10"); a.i("s_sub_u32 s6, s6, s7"); a.i(f"s_add_u32 s6, s6, {576*2}")
    a.i("v_add_u32 v12, s6, v12")
    a.i("v_bfe_u32 v14, v2, 1, 4"); a.i(f"v_mul_u32_u24 v14, {RS}, v14")
    a.i("v_and_b32 v15, 1, v2"); a.i("v_xor_b32 v15, 1, v15"); a.i(f"v_mul_u32_u24 v15, {U1}, v15"); a.i("v_add_u32 v14, v14, v15")
    a.i("v_lshlrev_b32 v15, 4, v13"); a.i("v_sub_u32 v14, v14, v15")
    a.i(f"s_mul_i32 s6, s22, {UCH}"); a.i(f"s_mul_i32 s7, s23, {8*RS}"); a.i("s_sub_u32 s6, s6, s7"); a.i(f"s_add_u32 s6, s6, {U_OFF}")
    a.i("v_add_u32 v14, s6, v14")
    a.wait_vm(kid)
    a.i("s_waitcnt lgkmcnt(0)"); a.ds_done = a.ds
    a.i("s_barrier")
    def zoff(z): return (z // 64) * RS + (z % 64) * 2
    def loads(st):
        b = 160 + 16 * (st % 3)
        ya = (31 - st) * 32
        zb = 1024 + 56 - 16 * st
        a.dsop(f"ds_read_b128 v[{b}:{b+3}], v12 offset:{ya + 2048}")
        a.dsop(f"ds_read_b128 v[{b+4}:{b+7}], v14 offset:{zoff(zb)}")
        i1 = a.dsop(f"ds_read_b128 v[{b+8}:{b+11}], v14 offset:{zoff(zb + 1024)}")
        i2 = a.dsop(f"ds_read_b128 v[{b+12}:{b+15}], v12 offset:{ya}")
        return i1, i2
    ld = {0: loads(0), 1: loads(1)}
    for st in range(32):
        b = 160 + 16 * (st % 3)
        if st + 2 < 32: ld[st + 2] = loads(st + 2)
        a.wait_ds(ld[st][0])
        c0 = "0" if st == 0 else "v[128:143]"; c1 = "0" if st == 0 else "v[144:159]"
        a.i(f"v_mfma_f32_32x32x16_f16 v[128:143], v[{b}:{b+3}], v[{b+4}:{b+7}], {c0}")
        a.i(f"v_mfma_f32_32x32x16_f16 v[144:159], v[{b}:{b+3}], v[{b+8}:{b+11}], {c1}")
        a.wait_ds(ld[st][1])
        a.i(f"v_mfma_f32_32x32x16_f16 v[144:159], v[{b+12}:{b+15}], v[{b+4}:{b+7}], v[144:159]")
    a.i(f"s_lshl_b32 s6, s20, 12"); a.i(f"s_add_u32 s6, s6, {SC_OFF}"); a.i("v_add_u32 v9, s6, v8")
    a.i("s_xor_b32 s7, s20, 1"); a.i("s_lshl_b32 s7, s7, 12"); a.i(f"s_add_u32 s7, s7, {SC_OFF}"); a.i("v_add_u32 v10, s7, v8")
    a.nop(12)
    a.i("s_cmp_eq_u32 s23, 0"); a.i("s_cbranch_scc1 k3_mu0")
    for k in range(4): a.i(f"ds_write_b128 v9, v[{128+4*k}:{131+4*k}] offset:{k*1024}")
    a.i("s_nop 1")
    for k in range(16): a.i(f"v_mov_b32 v{160+k}, v{144+k}")
    a.i("s_branch k3_j")
    a.raw("k3_mu0:")
    for k in range(4): a.i(f"ds_write_b128 v9, v[{144+4*k}:{147+4*k}] offset:{k*1024}")
    for k in range(16): a.i(f"v_mov_b32 v{160+k}, v{128+k}")
    a.raw("k3_j:")
    a.i("s_waitcnt lgkmcnt(0)")
    a.i("s_barrier")
    for k in range(4): a.i(f"ds_read_b128 v[{176+4*k}:{179+4*k}], v10 offset:{k*1024}")
    a.i("v_bfe_u32 v11, v2, 1, 4"); a.i("v_lshlrev_b32 v11, 7, v11")
    a.i("v_and_b32 v12, 1, v2"); a.i("v_lshl_add_u32 v11, v12, 3, v11")
    a.i("v_lshl_add_u32 v11, v13, 4, v11")
    a.i(f"s_mul_i32 s6, s22, {YS}"); a.i("s_lshl_b32 s7, s23, 11"); a.i("s_add_u32 s6, s6, s7"); a.i("v_add_u32 v11, s6, v11")
    a.i("s_waitcnt lgkmcnt(0)")
    for k in range(16): a.i(f"v_add_f32 v{160+k}, v{160+k}, v{176+k}")
    for k in range(16): a.i(f"v_mul_f32 v{160+k}, s30, v{160+k}")
    for k in range(8): a.i(f"v_cvt_pk_bf16_f32 v{176+k}, v{160+2*k}, v{161+2*k}")
    for k in range(4): a.i(f"ds_write_b64 v11, v[{176+2*k}:{177+2*k}] offset:{32*k}")
    a.i("s_waitcnt vmcnt(0)")
    for r in range(8):
        for hh in range(2):
            d = 128 + 2*r + hh
            a.i(f"v_fma_mix_f32 v{d}, v{64+r}, 1.0, v{72+r} op_sel:[{hh},0,{hh}] op_sel_hi:[1,0,1]")
            for s_ in range(2, 8):
                a.i(f"v_fma_mix_f32 v{d}, v{64+8*s_+r}, 1.0, v{d} op_sel:[{hh},0,0] op_sel_hi:[1,0,0]")
    for k in range(2):
        a.i(f"s_lshl_b32 s36, s{32+k}, 16"); a.i(f"s_and_b32 s37, s{32+k}, 0xffff0000"); a.i(f"v_mov_b32 v{144+2*k}, s36"); a.i(f"v_mov_b32 v{145+2*k}, s37")
        a.i(f"s_lshl_b32 s36, s{34+k}, 16"); a.i(f"s_and_b32 s37, s{34+k}, 0xffff0000"); a.i(f"v_mov_b32 v{148+2*k}, s36"); a.i(f"v_mov_b32 v{149+2*k}, s37")
    a.i("v_lshlrev_b32 v12, 1, v5")
    a.i("s_waitcnt lgkmcnt(0)")
    a.i("s_barrier")
    for c in range(4):
        a.i(f"ds_read_b32 v{152+2*c}, v12 offset:{c*YS}")
        a.i(f"ds_read_b32 v{153+2*c}, v12 offset:{c*YS + 64}")
    a.i("v_mul_u32_u24 v13, 1152, v5"); a.i("s_lshl_b32 s6, s21, 3")
    def rnd2(d0, d1, t):
        a.i(f"v_cvt_pk_bf16_f32 v{t}, v{d0}, v{d1}"); a.i(f"v_lshlrev_b32 v{d0}, 16, v{t}"); a.i(f"v_and_b32 v{d1}, 0xffff0000, v{t}")
    for k in range(8): rnd2(128 + 2*k, 129 + 2*k, 36)
    for k in range(16): a.i(f"v_add_f32 v{128+k}, v{128+k}, v{148 + k % 4}")
    for k in range(8): rnd2(128 + 2*k, 129 + 2*k, 36)
    a.i("s_waitcnt lgkmcnt(0)")
    for k in range(4):
        pr, u = divmod(k, 2)
        xr = 16 + 4*k
        for c in range(4):
            sh = "v_lshlrev_b32 v{d}, 16, v{s}" if c % 2 == 0 else "v_and_b32 v{d}, 0xffff0000, v{s}"
            a.i(sh.format(d=160 + c, s=xr + 2 + c // 2))
            a.i(sh.format(d=164 + c, s=xr + c // 2))
            shy = "v_lshlrev_b32 v{d}, 16, v{s}" if u == 0 else "v_and_b32 v{d}, 0xffff0000, v{s}"
            a.i(shy.format(d=168 + c, s=152 + 2*c + pr))
        for c in range(4): a.i(f"v_mul_f32 v{160+c}, v{160+c}, v{144+c}")
        rnd2(160, 161, 36); rnd2(162, 163, 37)
        for c in range(4): a.i(f"v_add_f32 v{160+c}, v{168+c}, v{160+c}")
        rnd2(160, 161, 36); rnd2(162, 163, 37)
        for c in range(4): a.i(f"v_add_f32 v{160+c}, v{164+c}, v{160+c}")
        rnd2(160, 161, 36); rnd2(162, 163, 37)
        for c in range(4): a.i(f"v_add_f32 v{160+c}, v{160+c}, v{128 + 8*u + 4*pr + c}")
        a.i(f"v_cvt_pk_bf16_f32 v{172+2*k}, v160, v161"); a.i(f"v_cvt_pk_bf16_f32 v{173+2*k}, v162, v163")
        a.i(f"s_add_u32 s7, s6, {(32*pr + u) * 1152}")
        a.i(f"buffer_store_dwordx2 v[{172+2*k}:{173+2*k}], v13, s[{sOUT}:{sOUT+3}], s7 offen")
    a.raw("k3_end:")
    a.i("s_endpgm")
    return a.text(), kd(name, 208, 208)
```

```python
import sys, os
sys.path.insert(0, os.path.dirname(__file__))
import k1, k2, k3
ref = open("parallel_sum__ssm_conv_s4__dense_activation_gelu__prompt.s.ref").read().split("\n")
head = [l for l in ref if l.startswith(";") and "@launch" not in l and "Override" not in l and "grid=ceil" not in l]
t2, d2 = k2.gen(); t3, d3 = k3.gen()
PF = int(os.environ.get("PFBYTES", "40960"))
t1, d1 = k1.gen("k2_kernel", PF)
out = head + [
 f"; @launch kernel=k1_kernel grid=({k1.K1_GRID},1,1) block=(256,1,1) lds={k1.K1_LDS}",
 f"; @launch kernel=k2_kernel grid=(256,1,1) block=(256,1,1) lds={k2.K2_LDS}",
 f"; @launch kernel=k3_kernel grid=(144,1,1) block=(512,1,1) lds={k3.K3_LDS}",
 '.amdgcn_target "amdgcn-amd-amdhsa--gfx950"', ".text", t1, t2, t3, "k_code_end:", "  s_endpgm", '.section .rodata,"a"', d1, d2, d3]
dst = sys.argv[1] if len(sys.argv) > 1 else "parallel_sum__ssm_conv_s4__dense_activation_gelu__prompt.s"
open(dst, "w").write("\n".join(out))
print("wrote", dst)
```

```python
import struct
def f2u(x): return struct.unpack("<I", struct.pack("<f", x))[0]
def fl(x): return "0x%08x" % f2u(x)

XF_OFF = 0
XU_OFF = 0x240000
KG_OFF = 0x6C0000
KG_STRIDE = 4112
KS_OFF = 0x904000
PART_OFF = 0xA00000
WS_BYTES = 268435456

class Asm:
    def __init__(self):
        self.L = []
        self.n = 0
        self.vm = 0; self.ds = 0
        self.vm_done = 0; self.ds_done = 0
        self.mfma_w = {}
    def raw(self, s): self.L.append(s)
    def i(self, s):
        self.L.append("  " + s); self.n += 1
    def nop(self, k):
        while k > 0:
            c = min(k, 16); self.L.append("  s_nop %d" % (c - 1)); self.n += c; k -= c
    def vmem(self, s):
        self.i(s); self.vm += 1; return self.vm
    def dsop(self, s):
        self.i(s); self.ds += 1; return self.ds
    def wait_vm(self, idn):
        if idn <= self.vm_done: return
        n = self.vm - idn
        assert n <= 63, "vmcnt overflow %d" % n
        self.i("s_waitcnt vmcnt(%d)" % n); self.vm_done = idn
    def wait_ds(self, idn):
        if idn <= self.ds_done: return
        n = min(self.ds - idn, 15)
        self.i("s_waitcnt lgkmcnt(%d)" % n); self.ds_done = self.ds - n
    def wait_all(self):
        self.i("s_waitcnt vmcnt(0) lgkmcnt(0)"); self.vm_done = self.vm; self.ds_done = self.ds
    def mfma_wrote(self, base, cnt):
        for r in range(base, base + cnt): self.mfma_w[r] = self.n
    def need_mfma(self, regs, dist=14):
        last = max([self.mfma_w.get(r, -1000) for r in regs])
        gap = self.n - last
        if gap < dist: self.nop(dist - gap)
    def text(self): return "\n".join(self.L) + "\n"

def kd(name, nv, acc_off, ns=102):
    return f""".p2align 6
.amdhsa_kernel {name}
  .amdhsa_next_free_vgpr {nv}
  .amdhsa_next_free_sgpr {ns}
  .amdhsa_accum_offset {acc_off}
  .amdhsa_group_segment_fixed_size 0
  .amdhsa_kernarg_size 136
  .amdhsa_user_sgpr_count 2
  .amdhsa_user_sgpr_kernarg_segment_ptr 1
  .amdhsa_system_sgpr_workgroup_id_x 1
  .amdhsa_float_denorm_mode_32 3
  .amdhsa_float_denorm_mode_16_64 3
.end_amdhsa_kernel
"""
def srd(a, d, b, nbytes):
    a.i(f"s_mov_b32 s{d}, s{b}")
    a.i(f"s_mov_b32 s{d+1}, s{b+1}")
    a.i(f"s_mov_b32 s{d+2}, {nbytes}")
    a.i(f"s_mov_b32 s{d+3}, 0x00020000")
def header(a, name):
    a.raw(f".globl {name}\n.p2align 8\n.type {name},@function\n{name}:")

import os
DIAG = int(os.environ.get("DIAG", "0"))
DIAG_OFF = 0x3000000
class Diag:
    def __init__(self, a, kidx):
        self.a = a; self.k = kidx; self.n = 0; self.names = []
    def start(self):
        if DIAG: self.a.i("s_memrealtime s[64:65]")
    def mark(self, name):
        if not DIAG: return
        assert self.n < 13
        self.a.i(f"s_memtime s[{68+2*self.n}:{69+2*self.n}]"); self.n += 1; self.names.append(name)
    def dump(self, wsreg, wave_sreg, waves_per_wg, vt):
        if not DIAG: return
        a = self.a
        a.i("s_waitcnt vmcnt(0)")
        self.mark("end")
        a.i("s_memrealtime s[66:67]")
        a.i("s_getreg_b32 s94, hwreg(HW_REG_XCC_ID)")
        a.i("s_mov_b32 s95, 0")
        a.i("s_waitcnt lgkmcnt(0)")
        a.i(f"s_mul_i32 s96, s2, {waves_per_wg}"); a.i(f"s_add_u32 s96, s96, s{wave_sreg}"); a.i("s_lshl_b32 s96, s96, 7")
        a.i(f"s_add_u32 s96, s96, {DIAG_OFF + self.k * 0x100000}")
        a.i("s_mov_b64 exec, 1")
        a.i(f"v_mov_b32 v{vt}, s96")
        for j in range(0, 32, 4):
            for e in range(4): a.i(f"v_mov_b32 v{vt+2+e}, s{64+j+e}")
            a.i(f"global_store_dwordx4 v{vt}, v[{vt+2}:{vt+5}], s[{wsreg}:{wsreg+1}] offset:{j*4}")
            a.i("s_nop 1")
        print("DIAG", self.k, self.names)
```

```python
from common import *
import math
NKG = 0; NLN = 128
K1_GRID = NKG + NLN
CHB = 29776
BT = 11088
TT = 27984
K1_LDS = 2 * CHB
L2E = math.log2(math.e)
L2E_hi = struct.unpack("<f", struct.pack("<f", L2E))[0]
L2E_lo = L2E - L2E_hi

def cmul(a, d, z, w, t):
    a.i(f"v_pk_mul_f32 v[{t}:{t+1}], v[{z}:{z+1}], v[{w}:{w+1}] op_sel:[0,0] op_sel_hi:[0,1]")
    a.i(f"v_pk_fma_f32 v[{d}:{d+1}], v[{z}:{z+1}], v[{w}:{w+1}], v[{t}:{t+1}] op_sel:[1,1,0] op_sel_hi:[1,0,1] neg_lo:[1,0,0]")

def gen(code_pf_label, code_pf_bytes):
    a = Asm(); name = "k1_kernel"
    header(a, name)
    a.i(f"s_cmp_ge_u32 s2, {K1_GRID}")
    a.i("s_cbranch_scc1 k1_end")
    dg = Diag(a, 0); dg.start(); dg.mark("start")
    a.i("s_load_dwordx16 s[32:47], s[0:1], 0")
    a.i("s_load_dwordx2 s[48:49], s[0:1], 128")
    a.i("s_load_dwordx2 s[50:51], s[0:1], 80")
    a.i("s_load_dwordx2 s[52:53], s[0:1], 96")
    a.i("v_lshrrev_b32 v1, 6, v0")
    a.i("v_and_b32 v2, 63, v0")
    a.i("v_readfirstlane_b32 s20, v1")
    a.i(f"s_cmp_ge_u32 s2, {NKG}")
    a.i("s_cbranch_scc1 k1_ln")
    a.i("s_lshr_b32 s21, s20, 1")
    a.i("s_and_b32 s22, s20, 1")
    a.i("s_lshl_b32 s23, s2, 1")
    a.i("s_add_u32 s23, s23, s21")
    a.i("s_lshl_b32 s24, s23, 8")
    a.i("v_lshl_add_u32 v3, v2, 2, s24")
    a.i("s_lshl_b32 s24, s23, 1")
    a.i("v_mov_b32 v4, s24")
    a.i(f"s_mul_i32 s25, s21, {CHB}")
    a.i("s_waitcnt lgkmcnt(0)")
    for k, sb in enumerate((34, 36, 38, 40, 42, 44)):
        a.vmem(f"global_load_dword v{10+k}, v3, s[{sb}:{sb+1}]")
    a.vmem("global_load_ushort v16, v4, s[46:47]")
    a.i("s_lshl_b32 s24, s22, 10")
    a.i("s_sub_u32 s24, 2047, s24")
    a.i("v_lshlrev_b32 v5, 4, v2")
    a.i("v_sub_u32 v5, s24, v5")
    a.i(f"s_add_u32 s26, s25, {TT}")
    for e in range(0, 16, 2):
        a.i(f"v_subrev_u32 v6, {e}, v5")
        a.i(f"v_subrev_u32 v7, {e+1}, v5")
        a.i("v_cvt_f32_u32 v8, v6")
        a.i("v_cvt_f32_u32 v9, v7")
        a.i("v_cvt_pk_bf16_f32 v8, v8, v9")
        a.i("v_min_u32 v6, 256, v6")
        a.i("v_min_u32 v7, 256, v7")
        a.i("v_lshrrev_b32 v9, 16, v8")
        a.i("v_and_b32 v8, 0xffff, v8")
        a.i(f"v_add_u32 v8, {(-0x4280) & 0xffffffff}, v8")
        a.i(f"v_add_u32 v9, {(-0x4280) & 0xffffffff}, v9")
        a.i("v_max_i32 v6, v6, v8")
        a.i("v_max_i32 v7, v7, v9")
        a.i(f"v_lshl_add_u32 v{64+e}, v6, 1, s26")
        a.i(f"v_lshl_add_u32 v{65+e}, v7, 1, s26")
    a.i("v_and_b32 v6, 15, v2")
    a.i("s_lshl_b32 s24, s22, 4")
    a.i("v_add_u32 v6, s24, v6")
    a.i("v_lshrrev_b32 v7, 4, v2")
    a.i("v_max_u32 v8, 1, v7")
    a.i("v_sub_u32 v8, 4, v8")
    a.i("v_lshlrev_b32 v8, v8, v6")
    a.i("v_lshlrev_b32 v9, 2, v7")
    a.i("v_lshlrev_b32 v17, 7, v7")
    a.i("v_cmp_gt_u32 vcc, 2, v7")
    a.i("s_nop 1")
    a.i("v_cndmask_b32 v9, v17, v9, vcc")
    a.i("v_add_u32 v8, v8, v9")
    a.i("v_lshl_add_u32 v80, v8, 1, s26")
    a.i("v_cmp_eq_u32 vcc, 3, v7")
    a.i("v_mov_b32 v9, 4")
    a.i("v_mov_b32 v17, 128")
    a.i("v_cndmask_b32 v9, v9, v17, vcc")
    a.i("v_add_u32 v81, v80, v9")
    a.i("v_min_u32 v9, 2, v7")
    a.i("v_lshlrev_b32 v9, 7, v9")
    a.i("v_add3_u32 v9, v9, v6, 0")
    a.i("v_add_u32 v9, 512, v9")
    a.i("v_lshl_add_u32 v82, v9, 1, s26")
    a.i("v_and_b32 v8, 15, v2")
    a.i("v_mul_u32_u24 v8, 528, v8")
    a.i("v_lshl_add_u32 v8, v7, 4, v8")
    a.i("v_add_u32 v83, s25, v8")
    a.i(f"s_mul_i32 s24, s22, {16*528}")
    a.i(f"s_add_u32 s24, s24, {BT}")
    a.i("v_add_u32 v84, s24, v83")
    a.i("v_lshl_add_u32 v85, v2, 3, s25")
    dg.mark("pre")
    a.wait_vm(a.vm)
    dg.mark("loaded")
    a.i("v_lshlrev_b32 v16, 16, v16")
    a.i(f"v_mul_f32 v17, {fl(L2E_hi)}, v16")
    a.i(f"v_mov_b32 v18, {fl(L2E_hi)}")
    a.i("v_fma_f32 v18, v16, v18, -v17")
    a.i(f"v_fmac_f32 v18, {fl(L2E_lo)}, v16")
    a.i("v_exp_f32 v17, v17")
    a.i(f"v_mul_f32 v18, {fl(math.log(2.0))}, v18")
    a.i("v_fmac_f32 v17, v17, v18")
    a.i("v_cvt_pk_bf16_f32 v17, v17, v17")
    a.i("v_lshlrev_b32 v16, 16, v17")
    a.i("v_lshlrev_b32 v20, 16, v10"); a.i("v_and_b32 v21, 0xffff0000, v10")
    a.i("v_lshlrev_b32 v22, 16, v11"); a.i("v_and_b32 v23, 0xffff0000, v11")
    for r in (20, 21, 22, 23): a.i(f"v_mul_f32 v{r}, v16, v{r}")
    for r in (20, 21): a.i(f"v_mul_f32 v{r}, {fl(L2E)}, v{r}")
    for r in (22, 23): a.i(f"v_mul_f32 v{r}, 0.15915494, v{r}")
    def direct(dst, vv):
        for m in range(2):
            a.i(f"v_mul_f32 v{24+m}, {fl(float(vv))}, v{20+m}")
            a.i(f"v_mul_f32 v{26+m}, {fl(float(vv))}, v{22+m}")
        for m in range(2):
            a.i(f"v_exp_f32 v{24+m}, v{24+m}")
            a.i(f"v_fract_f32 v{26+m}, v{26+m}")
        for m in range(2):
            a.i(f"v_cos_f32 v{28+m}, v{26+m}")
            a.i(f"v_sin_f32 v{30+m}, v{26+m}")
        a.i("s_nop 0")
        for m in range(2):
            a.i(f"v_mul_f32 v{dst+2*m}, v{24+m}, v{28+m}")
            a.i(f"v_mul_f32 v{dst+2*m+1}, v{24+m}, v{30+m}")
    def put(z, off, t):
        a.i(f"v_cvt_pk_f16_f32 v{t}, v{z}, v{z+1}")
        a.i(f"v_cvt_pk_f16_f32 v{t+1}, v{z+2}, v{z+3}")
        a.dsop(f"ds_write_b64 v85, v[{t}:{t+1}] offset:{off}")
    def cm2(d, z, w, t):
        for m in range(2): a.i(f"v_pk_mul_f32 v[{t+2*m}:{t+2*m+1}], v[{z+2*m}:{z+2*m+1}], v[{w+2*m}:{w+2*m+1}] op_sel:[0,0] op_sel_hi:[0,1]")
        for m in range(2): a.i(f"v_pk_fma_f32 v[{d+2*m}:{d+2*m+1}], v[{z+2*m}:{z+2*m+1}], v[{w+2*m}:{w+2*m+1}], v[{t+2*m}:{t+2*m+1}] op_sel:[1,1,0] op_sel_hi:[1,0,1] neg_lo:[1,0,0]")
    a.i("s_cmp_eq_u32 s22, 1")
    a.i("s_cbranch_scc1 k1_hi")
    direct(32, 8)
    direct(40, 128)
    a.i("v_mov_b32 v36, 1.0"); a.i("v_mov_b32 v37, 0"); a.i("v_mov_b32 v38, 1.0"); a.i("v_mov_b32 v39, 0")
    for r in range(16):
        put(36, BT + r * 528, 52 + 4 * (r & 1))
        put(40, BT + (16 + r) * 528, 54 + 4 * (r & 1))
        if r < 15:
            cm2(36, 36, 32, 44)
            cm2(40, 40, 32, 48)
    a.i("s_branch k1_join")
    a.raw("k1_hi:")
    a.i("v_xor_b32 v22, 0x80000000, v22"); a.i("v_xor_b32 v23, 0x80000000, v23")
    for k, src in enumerate((12, 13, 14, 15)):
        a.i(f"v_lshlrev_b32 v{40+2*k}, 16, v{src}"); a.i(f"v_and_b32 v{41+2*k}, 0xffff0000, v{src}")
    for r in (40, 41, 42, 43): a.i(f"v_mul_f32 v{r}, v16, v{r}")
    for m in range(2):
        a.i(f"v_mul_f32 v{36+2*m}, v{44+m}, v{40+m}")
        a.i(f"v_fma_f32 v{36+2*m}, -v{46+m}, v{42+m}, v{36+2*m}")
        a.i(f"v_mul_f32 v{37+2*m}, v{44+m}, v{42+m}")
        a.i(f"v_fma_f32 v{37+2*m}, -v{46+m}, v{40+m}, -v{37+2*m}")
    a.i("v_max3_f32 v48, abs(v36), abs(v37), abs(v38)")
    a.i("v_max_f32 v49, abs(v39), abs(v39)")
    a.i("v_max_f32 v48, v48, v49")
    for rr in (8, 4, 2, 1):
        a.i("s_nop 1")
        a.i(f"v_max_f32_dpp v48, v48, v48 row_ror:{rr} row_mask:0xf bank_mask:0xf")
    a.i("s_nop 1")
    for k, ln in enumerate((0, 16, 32, 48)): a.i(f"v_readlane_b32 s{54+k}, v48, {ln}")
    a.i("s_nop 3")
    a.i("s_max_u32 s54, s54, s55"); a.i("s_max_u32 s56, s56, s57"); a.i("s_max_u32 s54, s54, s56")
    a.i("s_lshr_b32 s54, s54, 23")
    a.i("s_max_u32 s54, s54, 1"); a.i("s_min_u32 s54, s54, 253")
    a.i("s_sub_u32 s55, 254, s54"); a.i("s_lshl_b32 s55, s55, 23")
    a.i("s_lshl_b32 s54, s54, 23")
    for r in (36, 37, 38, 39): a.i(f"v_mul_f32 v{r}, s55, v{r}")
    direct(32, 1)
    direct(40, 256)
    cm2(56, 36, 40, 44)
    cm2(60, 32, 32, 48)
    put(36, 0, 52)
    cm2(86, 60, 60, 48)
    put(56, 8 * 528, 54)
    cm2(94, 56, 60, 44)
    cm2(36, 36, 32, 48); put(94, 9 * 528, 90); put(36, 1 * 528, 52)
    cm2(94, 94, 60, 44); cm2(36, 36, 32, 48); put(94, 10 * 528, 90); put(36, 2 * 528, 52)
    cm2(94, 94, 60, 44); cm2(36, 36, 32, 48); put(94, 11 * 528, 90); put(36, 3 * 528, 52)
    cm2(56, 56, 40, 44); cm2(36, 36, 32, 48); put(56, 12 * 528, 90); put(36, 4 * 528, 52)
    cm2(94, 56, 86, 44); cm2(36, 36, 32, 48); put(94, 13 * 528, 90); put(36, 5 * 528, 52)
    cm2(56, 56, 40, 44); cm2(36, 36, 32, 48); put(56, 14 * 528, 90); put(36, 6 * 528, 52)
    cm2(94, 56, 86, 44); cm2(36, 36, 32, 48); put(94, 15 * 528, 90); put(36, 7 * 528, 52)
    for row in range(16, 21):
        cm2(56, 56, 40, 44); put(56, row * 528, 52 + 2 * (row & 1))
    a.i("v_cmp_eq_u32 vcc, 0, v2")
    a.i("s_and_saveexec_b64 s[58:59], vcc")
    a.i("v_mov_b32 v44, 0"); a.i("v_mov_b32 v45, 0"); a.i("v_mov_b32 v46, 0"); a.i("v_mov_b32 v47, 0")
    a.i("v_mov_b32 v48, s54")
    a.i(f"s_mul_i32 s24, s23, {KG_STRIDE}"); a.i(f"s_add_u32 s24, s24, {KG_OFF + 4096}")
    a.i("v_mov_b32 v49, s24")
    a.i("s_lshl_b32 s24, s23, 2"); a.i(f"s_add_u32 s24, s24, {KS_OFF}")
    a.i("v_mov_b32 v50, s24")
    a.i("global_store_dwordx4 v49, v[44:47], s[48:49]")
    a.i("global_store_dword v50, v48, s[48:49]")
    a.i("s_mov_b64 exec, s[58:59]")
    a.raw("k1_join:")
    a.i("s_waitcnt lgkmcnt(0)"); a.ds_done = a.ds
    a.i("s_barrier")
    dg.mark("tables")
    ids = []
    for k in range(8):
        b = 96 + 12 * k
        a.dsop(f"ds_read_b128 v[{b}:{b+3}], v83 offset:{k*64}")
        a.dsop(f"ds_read_b128 v[{b+4}:{b+7}], v83 offset:{k*64 + 16*528}")
        ids.append(a.dsop(f"ds_read_b128 v[{b+8}:{b+11}], v84 offset:{k*64}"))
    for k in range(8):
        b = 96 + 12 * k
        a.wait_ds(ids[k])
        c0 = "0" if k == 0 else "v[40:43]"; c1 = "0" if k == 0 else "v[44:47]"
        a.i(f"v_mfma_f32_16x16x32_f16 v[40:43], v[{b}:{b+3}], v[{b+8}:{b+11}], {c0}")
        a.i(f"v_mfma_f32_16x16x32_f16 v[44:47], v[{b+4}:{b+7}], v[{b+8}:{b+11}], {c1}")
    a.nop(10)
    a.i("v_cvt_pk_f16_f32 v48, v40, v41"); a.i("v_cvt_pk_f16_f32 v49, v42, v43")
    a.i("v_cvt_pk_f16_f32 v50, v44, v45"); a.i("v_cvt_pk_f16_f32 v51, v46, v47")
    a.dsop("ds_write_b32 v80, v48"); a.dsop("ds_write_b32 v81, v49")
    a.dsop("ds_write_b16 v82, v50"); a.dsop("ds_write_b16_d16_hi v82, v50 offset:64")
    a.dsop("ds_write_b16 v82, v51 offset:128"); a.dsop("ds_write_b16_d16_hi v82, v51 offset:192")
    a.i("s_waitcnt lgkmcnt(0)"); a.ds_done = a.ds
    a.i("s_barrier")
    for e in range(16):
        a.dsop(f"ds_read_u16 v{96 + e}, v{64+e}")
    a.i(f"s_mul_i32 s24, s23, {KG_STRIDE}"); a.i(f"s_add_u32 s24, s24, {KG_OFF}")
    a.i("s_lshl_b32 s27, s22, 11"); a.i("s_add_u32 s24, s24, s27")
    a.i("v_lshl_add_u32 v3, v2, 5, s24")
    a.i("s_waitcnt lgkmcnt(0)")
    for e in range(8): a.i(f"v_lshl_or_b32 v{40+e}, v{97+2*e}, 16, v{96+2*e}")
    a.i("global_store_dwordx4 v3, v[40:43], s[48:49]")
    a.i("global_store_dwordx4 v3, v[44:47], s[48:49] offset:16")
    dg.dump(48, 20, 4, 108)
    a.i("s_endpgm")
    dg.n = 1
    a.raw("k1_ln:")
    a.i(f"s_sub_u32 s21, s2, {NKG}")
    a.i("s_lshl_b32 s22, s21, 4"); a.i("s_lshl_b32 s23, s20, 2"); a.i("s_add_u32 s22, s22, s23")
    a.i("v_lshrrev_b32 v3, 4, v2"); a.i("v_add_u32 v3, s22, v3")
    a.i("v_and_b32 v4, 15, v2")
    a.i("v_mul_u32_u24 v5, 1152, v3"); a.i("v_lshl_add_u32 v5, v4, 3, v5")
    a.i("s_waitcnt lgkmcnt(0)")
    xl = []
    for j in range(9):
        xl.append(a.vmem(f"global_load_dwordx2 v[{16+4*j}:{17+4*j}], v5, s[32:33] offset:{128*j}"))
    a.i("s_and_b32 s24, s21, 7"); a.i("s_lshr_b32 s25, s21, 3"); a.i("s_lshl_b32 s25, s25, 2"); a.i("s_add_u32 s25, s25, s20")
    a.i(f"s_mul_i32 s26, s25, {9*9216}"); a.i("s_mul_i32 s27, s24, 1152"); a.i("s_add_u32 s26, s26, s27")
    a.i("s_mul_i32 s27, s24, 663552"); a.i("s_mul_i32 s28, s25, 10368"); a.i("s_add_u32 s27, s27, s28")
    for j in range(3):
        a.i(f"v_add_u32 v6, {64*j}, v2"); a.i("v_min_u32 v6, 161, v6")
        a.i("v_mul_u32_u24 v7, 3641, v6"); a.i("v_lshrrev_b32 v7, 16, v7")
        a.i(f"v_mul_u32_u24 v8, {9216 - 18*64}, v7"); a.i("v_lshl_add_u32 v8, v6, 6, v8")
        a.i("v_add_u32 v8, s26, v8")
        a.i("v_lshl_add_u32 v9, v6, 6, s27")
        a.vmem(f"global_load_dword v{100+2*j}, v8, s[50:51]")
        a.vmem(f"global_load_dword v{101+2*j}, v9, s[52:53]")
    nun = (code_pf_bytes + 4095) // 4096
    a.i(f"s_cmp_ge_u32 s25, {nun}")
    a.i("s_cbranch_scc1 k1_nopf")
    a.i("s_getpc_b64 s[28:29]")
    a.raw("k1_pc:")
    a.i(f"s_add_u32 s28, s28, {code_pf_label}-k1_pc")
    a.i("s_addc_u32 s29, s29, 0")
    a.i("s_lshl_b32 s30, s25, 12")
    a.i("v_lshl_add_u32 v6, v2, 6, s30")
    a.i(f"v_min_u32 v6, k_code_end-{code_pf_label}, v6")
    a.i("v_mov_b32 v7, s29")
    a.i("v_add_co_u32 v6, vcc, s28, v6")
    a.i("s_nop 1")
    a.i("v_addc_co_u32 v7, vcc, 0, v7, vcc")
    a.i("global_load_dword v106, v[6:7], off")
    a.raw("k1_nopf:")
    a.i("v_lshrrev_b32 v6, 6, v3"); a.i("v_mul_u32_u24 v6, 73728, v6")
    a.i("v_bfe_u32 v7, v3, 5, 1"); a.i("v_mul_u32_u24 v7, 36864, v7"); a.i("v_add_u32 v6, v6, v7")
    a.i("v_lshrrev_b32 v7, 2, v4"); a.i("v_lshl_add_u32 v6, v7, 10, v6")
    a.i("v_and_b32 v7, 31, v3"); a.i("v_lshl_add_u32 v6, v7, 4, v6")
    a.i("v_bfe_u32 v7, v4, 1, 1"); a.i("v_lshl_add_u32 v6, v7, 9, v6")
    a.i("v_and_b32 v7, 1, v4"); a.i("v_lshl_add_u32 v10, v7, 3, v6")
    a.i("v_lshlrev_b32 v6, 15, v4"); a.i("v_lshl_add_u32 v11, v3, 4, v6"); a.i(f"v_add_u32 v11, {XU_OFF}, v11")
    dg.mark("pre")
    a.i("s_waitcnt vmcnt(6)")
    dg.mark("loaded")
    dg.mark("x")
    def X(j, e): return 56 + 4 * j + e
    for j in range(9):
        for h in range(2):
            a.i(f"v_lshlrev_b32 v{X(j,2*h)}, 16, v{16+4*j+h}")
            a.i(f"v_and_b32 v{X(j,2*h+1)}, 0xffff0000, v{16+4*j+h}")
    a.i(f"v_add_f32 v12, v{X(0,0)}, v{X(0,1)}"); a.i(f"v_add_f32 v13, v{X(0,2)}, v{X(0,3)}")
    for j in range(1, 9):
        a.i(f"v_add_f32 v12, v12, v{X(j,0)}"); a.i(f"v_add_f32 v13, v13, v{X(j,1)}")
        a.i(f"v_add_f32 v12, v12, v{X(j,2)}"); a.i(f"v_add_f32 v13, v13, v{X(j,3)}")
    a.i("v_add_f32 v12, v12, v13")
    def rowsum(r):
        for rr in (8, 4, 2, 1):
            a.i("s_nop 1"); a.i(f"v_add_f32_dpp v{r}, v{r}, v{r} row_ror:{rr} row_mask:0xf bank_mask:0xf")
    rowsum(12)
    a.i(f"v_mul_f32 v12, {fl(1.0/576)}, v12")
    a.i("v_mov_b32 v13, 0"); a.i("v_mov_b32 v14, 0")
    for j in range(9):
        for e in range(4):
            a.i(f"v_sub_f32 v{92 + (e&3)}, v{X(j,e)}, v12")
        for e in range(4):
            a.i(f"v_fmac_f32 v{13 + (e&1)}, v{92+e}, v{92+e}")
    a.i("v_add_f32 v13, v13, v14")
    rowsum(13)
    a.i(f"v_mul_f32 v13, {fl(1.0/576)}, v13")
    a.i("v_cvt_pk_bf16_f32 v14, v12, v13")
    a.i("v_lshlrev_b32 v12, 16, v14")
    a.i("v_and_b32 v13, 0xffff0000, v14")
    a.i(f"v_add_f32 v13, {fl(1e-5)}, v13")
    a.i("v_cvt_pk_bf16_f32 v13, v13, v13"); a.i("v_lshlrev_b32 v13, 16, v13")
    a.i("v_sqrt_f32 v14, v13")
    a.i("s_nop 0")
    a.i("v_rcp_f32 v15, v14"); a.i("v_fma_f32 v92, -v14, v14, v13"); a.i("v_mul_f32 v15, 0.5, v15"); a.i("v_fmac_f32 v14, v92, v15")
    a.i("v_cvt_pk_bf16_f32 v13, v14, v14"); a.i("v_lshlrev_b32 v13, 16, v13")
    a.i("v_rcp_f32 v14, v13")
    a.i("s_nop 0")
    for j in range(9):
        for e in range(4): a.i(f"v_sub_f32 v{X(j,e)}, v{X(j,e)}, v12")
        a.i(f"v_cvt_pk_bf16_f32 v92, v{X(j,0)}, v{X(j,1)}"); a.i(f"v_cvt_pk_bf16_f32 v93, v{X(j,2)}, v{X(j,3)}")
        a.i(f"v_lshlrev_b32 v{X(j,0)}, 16, v92"); a.i(f"v_and_b32 v{X(j,1)}, 0xffff0000, v92")
        a.i(f"v_lshlrev_b32 v{X(j,2)}, 16, v93"); a.i(f"v_and_b32 v{X(j,3)}, 0xffff0000, v93")
        for e in range(4): a.i(f"v_mul_f32 v{94+e}, v{X(j,e)}, v14")
        for e in range(4): a.i(f"v_fma_f32 v{X(j,e)}, -v{94+e}, v13, v{X(j,e)}")
        for e in range(4): a.i(f"v_fmac_f32 v{94+e}, v{X(j,e)}, v14")
        a.i(f"v_cvt_pk_bf16_f32 v{18+4*j}, v94, v95"); a.i(f"v_cvt_pk_bf16_f32 v{19+4*j}, v96, v97")
        a.i(f"global_store_dwordx2 v10, v[{18+4*j}:{19+4*j}], s[48:49]")
        if j == 0:
            a.i(f"v_lshlrev_b32 v11, 3, v3"); a.i(f"v_add_u32 v11, {XU_OFF}, v11")
            a.i("global_store_dwordx2 v11, v[12:13], s[48:49]")
        if j < 8:
            a.i("v_add_u32 v10, 4096, v10")
    dg.dump(48, 20, 4, 108)
    a.raw("k1_end:")
    a.i("s_endpgm")
    return a.text(), kd(name, 192, 192)
```

```python
from common import *
import math, os
NR = int(os.environ.get('NR', '10'))
RING = NR * 2048
XH = 73728
BIAS_OFF = XH + 4 * RING
K2_LDS = BIAS_OFF + 2304
R1, R2, R3 = 64, 128, 192
C0 = -2.0 * math.sqrt(2.0 / math.pi) * math.log2(math.e)
C1 = C0 * 0.044715
DP = int(os.environ.get('DP', '2')); DT = int(os.environ.get('DT', '4'))
SLOTS = int(os.environ.get('SLOTS', '7'))
vW1 = {0: (4, 5), 1: (6, 7)}; vW2 = (8, 9)
vT = {1: (10, 11), 2: (12, 13)}
vX = (14, 15, 16, 17); vHo = (18, 19, 20, 21)
vSw, vSr, vBo, vP, vC1, vHw = 22, 23, 24, 25, 26, 27
vB = (28, 29)
GT = 32
PK = 48
sW1, sW2, sWS, sB1 = 8, 12, 16, 20
sK1 = (24, 25, 26, 27); sA2 = {0: (28, 29, 30, 31), 1: (56, 57, 58, 59)}; sB2 = (32, 33, 34, 35)
sO1, sB2o, sP, sPo, sRing, sOff, sQ, sTmp = 36, 38, 39, 40, 41, 42, 43, 44
sA2o = {0: 37, 1: 60}; sBit = 61

def breg(phase, sigma, tt):
    if phase == 1:
        n = sigma * 2 + tt
        if n < 56: return f"a[{4*n}:{4*n+3}]"
        b = R3 + 4 * (n - 56); return f"v[{b}:{b+3}]"
    kind, k = sigma
    n = 2 * k + tt
    if kind == 's1': return f"a[{4*n}:{4*n+3}]"
    if n < 16: return f"a[{160+4*n}:{160+4*n+3}]"
    b = R2 + 4 * (n - 16); return f"v[{b}:{b+3}]"

class Item:
    __slots__ = ("cost", "fn", "deps", "key", "fence", "at")
    def __init__(s, cost, fn, deps, key, fence): s.cost, s.fn, s.deps, s.key, s.fence, s.at = cost, fn, deps, key, fence, None

def gen():
    a = Asm(); name = "k2_kernel"
    header(a, name)
    a.i("s_cmp_ge_u32 s2, 256"); a.i("s_cbranch_scc1 k2_end")
    dg = Diag(a, 1); dg.start(); dg.mark("start")
    a.i("s_load_dwordx4 s[48:51], s[0:1], 80")
    a.i("s_load_dwordx2 s[52:53], s[0:1], 96")
    a.i("s_load_dwordx2 s[54:55], s[0:1], 128")
    a.i("v_lshrrev_b32 v1, 6, v0"); a.i("v_and_b32 v2, 63, v0")
    a.i(f"v_readfirstlane_b32 s{sQ}, v1")
    a.i("s_and_b32 s3, s2, 7")
    a.i("s_lshr_b32 s4, s2, 3")
    a.i(f"s_and_b32 s{sBit}, s4, 1")
    a.i("v_lshlrev_b32 v3, 4, v2")
    a.i("s_mul_i32 s7, s3, 1152")
    a.i(f"s_lshl_b32 s{sTmp}, s{sQ}, 8")
    a.i(f"s_lshl_b32 s46, s{sBit}, 7")
    a.i(f"s_mul_i32 s47, s{sBit}, {64*1152}")
    for g in range(4):
        a.i(f"s_add_u32 s5, s{sQ}, {g}"); a.i("s_and_b32 s5, s5, 3")
        a.i(f"s_mul_i32 s{sK1[g]}, s5, {144*9216}"); a.i(f"s_add_u32 s{sK1[g]}, s{sK1[g]}, s7")
        a.i("s_mul_i32 s6, s3, 663552")
        a.i(f"s_mul_i32 s{sA2[1][g]}, s5, {128*1152}"); a.i(f"s_add_u32 s{sA2[1][g]}, s{sA2[1][g]}, s6")
        a.i(f"s_add_u32 s{sA2[0][g]}, s{sA2[1][g]}, s47")
        a.i(f"s_sub_u32 s{sA2[1][g]}, s{sA2[1][g]}, s47"); a.i(f"s_add_u32 s{sA2[1][g]}, s{sA2[1][g]}, {64*1152}")
        a.i(f"s_mul_i32 s{sB2[g]}, s5, {16*1152}"); a.i(f"s_add_u32 s{sB2[g]}, s{sB2[g]}, s6"); a.i(f"s_add_u32 s{sB2[g]}, s{sB2[g]}, {512*1152}")
        a.i("s_mul_i32 s6, s5, 9216"); a.i(f"v_add_u32 v{vX[g]}, s6, v3")
        a.i("s_lshl_b32 s6, s5, 10"); a.i("s_add_u32 s6, s6, 32768"); a.i(f"v_add_u32 v{vHo[g]}, s6, v3")
    for d, s_ in ((sO1, sK1[0]), (sA2o[0], sA2[0][0]), (sA2o[1], sA2[1][0]), (sB2o, sB2[0])):
        a.i(f"s_add_u32 s{d}, s{s_}, 1024"); a.i(f"s_sub_u32 s{d}, s{d}, s{sTmp}")
    a.i(f"s_sub_u32 s{sO1}, s{sO1}, s46")
    a.i(f"s_mul_i32 s{sRing}, s{sQ}, {RING}"); a.i(f"s_add_u32 s{sRing}, s{sRing}, {XH}")
    a.i("v_lshrrev_b32 v32, 3, v2")
    a.i("v_bfe_u32 v33, v2, 4, 1"); a.i("v_lshlrev_b32 v33, 2, v33")
    a.i("v_and_b32 v34, 7, v2"); a.i("v_xor_b32 v33, v33, v34")
    a.i(f"v_lshl_add_u32 v33, v33, 4, s{sTmp}")
    a.i(f"v_mul_u32_u24 v34, 9216, v32"); a.i("v_add_u32 v34, v34, v33")
    a.i(f"v_add_u32 v{vW1[0][0]}, s46, v34"); a.i(f"v_add_u32 v{vW1[0][1]}, {8*9216-1024}, v{vW1[0][0]}")
    a.i(f"v_xor_b32 v{vW1[1][0]}, 128, v{vW1[0][0]}"); a.i(f"v_add_u32 v{vW1[1][1]}, {8*9216-1024}, v{vW1[1][0]}")
    a.i(f"v_mul_u32_u24 v{vW2[0]}, 1152, v32"); a.i(f"v_add_u32 v{vW2[0]}, v{vW2[0]}, v33")
    a.i(f"v_add_u32 v{vW2[1]}, {8*1152-1024}, v{vW2[0]}")
    a.i("v_min_u32 v35, 35, v2"); a.i(f"v_lshl_add_u32 v36, v35, 3, s{sTmp}")
    a.i(f"s_lshl_b32 s5, s{sQ}, 5"); a.i("s_add_u32 s5, s5, 768"); a.i("v_lshl_add_u32 v37, v35, 3, s5")
    a.i("v_cmp_gt_u32 vcc, 32, v2")
    a.i("s_waitcnt lgkmcnt(0)")
    a.i("v_cndmask_b32 v36, v37, v36, vcc")
    srd(a, sWS, 54, WS_BYTES); srd(a, sW1, 48, 5308416); srd(a, sW2, 52, 5308416); srd(a, sB1, 50, 9216)

    steps = []
    def add(ph, vo, sbase, imm, sigma, acc, cinit, tag):
        steps.append(dict(ph=ph, vo=vo, sbase=sbase, imm=imm, sigma=sigma, acc=acc, cinit=cinit, tag=tag))
    for i in range(9): add(1, vW1[0], sO1, i * 16 * 9216, i, R2, 'zero' if i == 0 else None, ('O1', i))
    for p, acc in ((0, R1), (1, R2)):
        for sg in range(36):
            add(1, vW1[p], sK1[sg // 9], (sg % 9) * 16 * 9216, sg, acc, 'bias' if sg == 0 else None, ('P%d' % p, sg))
    def s1(n):
        g, i = divmod(n, 5)
        return (sA2[0][g], i * 16 * 1152) if i < 4 else (sB2[g], 0)
    def s2(n):
        g, i = divmod(n, 4); return (sA2[1][g], i * 16 * 1152)
    for p, acc in ((0, R1), (1, R3)):
        for n in range(20):
            sb, im = s1(n); add(2, vW2, sb, im + 128 * p, ('s1', n), acc, 'zero' if n == 0 else None, ('D%ds1' % p, n))
    for n in range(16):
        sb, im = s2(n); add(2, vW2, sb, im, ('s2', n), R1, None, ('D0s2', n))
    for n in range(8):
        sb, im = s2(n); add(2, vW2, sb, im + 128, ('s2', n), R3, None, ('D1s2', n))
    odd2 = [(sA2o[0], i * 16 * 1152, ('s1', i)) for i in range(4)] + [(sB2o, 0, ('s1', 4))] + [(sA2o[1], i * 16 * 1152, ('s2', i)) for i in range(4)]
    for i, (sb, im, sg) in enumerate(odd2): add(2, vW2, sb, im, sg, R1, 'zero' if i == 0 else None, ('O2', i))
    for n in range(8, 16):
        sb, im = s2(n); add(2, vW2, sb, im + 128, ('s2', n), R3, None, ('D1s2', n))
    NS = len(steps); assert NS == 162
    dma_id = {}
    def dma(k):
        st = steps[k]
        srdr = sW1 if st['ph'] == 1 else sW2
        va, vb = st['vo']
        a.i(f"s_add_u32 m0, s{sRing}, {(k % NR) * 2048}")
        a.i(f"s_add_u32 s{sOff}, s{st['sbase']}, {st['imm']}")
        a.vmem(f"buffer_load_dwordx4 v{va}, s[{srdr}:{srdr+3}], s{sOff} offen lds")
        dma_id[k] = a.vmem(f"buffer_load_dwordx4 v{vb}, s[{srdr}:{srdr+3}], s{sOff} offen offset:1024 lds")
    a.i(f"s_mul_i32 s5, s{sQ}, 9216")
    a.i("s_mul_i32 s6, s4, 73728"); a.i("s_add_u32 s6, s6, s5")
    if XF_OFF: a.i(f"s_add_u32 s6, s6, {XF_OFF}")
    xid = {}
    for i in range(9):
        for tt in range(2):
            a.i(f"s_add_u32 m0, s5, {tt*36864 + i*1024}")
            a.i(f"s_add_u32 s45, s6, {tt*36864 + i*1024}")
            xid[(i, tt)] = a.vmem(f"buffer_load_dwordx4 v3, s[{sWS}:{sWS+3}], s45 offen lds")
        dma(i)
        if i == 0: bid = a.vmem(f"buffer_load_dwordx2 v[38:39], v36, s[{sB1}:{sB1+3}], s7 offen")
    for k in range(9, NR): dma(k)
    a.i("v_lshrrev_b32 v32, 5, v2")
    a.i("v_bfe_u32 v33, v2, 2, 2")
    a.i("v_bfe_u32 v34, v2, 4, 1"); a.i("v_lshlrev_b32 v34, 5, v34")
    a.i("v_and_b32 v36, 3, v2"); a.i("v_lshl_add_u32 v34, v36, 3, v34")
    a.i("v_lshl_add_u32 v34, v33, 7, v34"); a.i(f"v_add_u32 v34, s{sRing}, v34")
    a.i("v_bfe_u32 v36, v2, 3, 1"); a.i("v_lshlrev_b32 v36, 6, v36")
    a.i("v_xor_b32 v37, 64, v36")
    a.i("v_lshl_add_u32 v40, v32, 10, v34")
    a.i(f"v_add_u32 v{vT[1][0]}, v40, v36"); a.i(f"v_add_u32 v{vT[1][1]}, v40, v37")
    a.i("v_lshl_add_u32 v40, v32, 9, v34")
    a.i(f"v_add_u32 v{vT[2][0]}, v40, v36"); a.i(f"v_add_u32 v{vT[2][1]}, v40, v37")
    a.i(f"s_lshr_b32 s5, s{sQ}, 1"); a.i(f"s_lshl_b32 s6, s{sQ}, 4"); a.i("s_lshl_b32 s7, s5, 2"); a.i("s_add_u32 s6, s6, s7"); a.i("s_lshl_b32 s6, s6, 10")
    a.i(f"v_add_u32 v{vSw}, s6, v3")
    a.i(f"s_and_b32 s6, s{sQ}, 1"); a.i("s_lshl_b32 s6, s6, 1"); a.i("s_lshl_b32 s7, s5, 3"); a.i("s_add_u32 s6, s6, s7")
    a.i("s_lshl_b32 s7, s6, 10"); a.i(f"v_add_u32 v{vSr}, s7, v3")
    a.i(f"s_mul_i32 s7, s{sQ}, 576"); a.i(f"s_add_u32 s7, s7, {BIAS_OFF}")
    a.i(f"v_lshl_add_u32 v35, v35, 4, s7")
    a.i(f"v_lshl_add_u32 v{vBo}, v32, 4, s7")
    a.i(f"s_lshl_b32 s6, s{sBit}, 8"); a.i(f"v_add_u32 v{vB[0]}, s6, v{vBo}")
    a.i(f"s_sub_u32 s6, 256, s6"); a.i(f"v_add_u32 v{vB[1]}, s6, v{vBo}")
    a.i("v_bfe_u32 v33, v2, 1, 4"); a.i("v_and_b32 v36, 1, v2"); a.i("v_lshlrev_b32 v33, 4, v33"); a.i("v_lshl_add_u32 v33, v36, 8, v33"); a.i(f"v_lshl_add_u32 v{vP}, v32, 17, v33")
    a.i(f"s_lshl_b32 s7, s{sQ}, 13"); a.i(f"v_add_u32 v{vHw}, s7, v3")
    a.i(f"s_add_u32 s7, s{sTmp}, s3"); a.i("s_lshl_b32 s7, s7, 14"); a.i("s_lshl_b32 s45, s4, 9"); a.i(f"s_add_u32 s45, s45, {PART_OFF}")
    a.i(f"s_add_u32 s{sP}, s7, s45")
    a.i(f"s_lshl_b32 s7, s{sQ}, 2"); a.i("s_add_u32 s7, s7, 128"); a.i("s_lshl_b32 s7, s7, 3"); a.i("s_add_u32 s7, s7, s3"); a.i("s_lshl_b32 s7, s7, 14")
    a.i(f"s_add_u32 s{sPo}, s7, s45")
    a.i(f"v_mov_b32 v{vC1}, {fl(C1)}")

    Q = []
    bready = {}
    def push(cost, fn, deps=(), key=None, fence=False):
        it = Item(cost, fn, list(deps), key, fence); Q.append(it); return it
    def emit(it):
        for d, dist in it.deps:
            assert d.at is not None
            gap = a.n - d.at
            if gap < min(dist, 2): a.nop(min(dist, 2) - gap)
        Q.remove(it); it.fn(); it.at = a.n
    def ready(it): return all(d.at is not None and a.n - d.at >= dist for d, dist in it.deps)
    def fill(budget):
        while budget > 0 and Q:
            pick = None
            for idx, it in enumerate(Q[:64]):
                if it.fence:
                    if idx == 0 and it.cost <= budget: pick = it
                    break
                if it.cost <= budget and ready(it): pick = it; break
            if pick is None: return
            n0 = a.n; emit(pick); budget -= max(pick.cost, a.n - n0)
    def flush_until(key):
        if not any(it.key == key for it in Q): return
        while True:
            it = Q[0]
            for idx, c in enumerate(Q[:64]):
                if c.fence or c.key == key: break
                if ready(c): it = c; break
            emit(it)
            if it.key == key: break
    def push_bload(ph, sigma, tt, addr, imm, vmw=None):
        def fn():
            if vmw: a.wait_vm(vmw)
            bready[(ph, sigma, tt)] = a.dsop(f"ds_read_b128 {breg(ph, sigma, tt)}, v{addr} offset:{imm}")
        return push(1, fn, key=('B', ph, sigma, tt), fence=bool(vmw))
    def push_barrier(key=None, vmw=None):
        def fn():
            if vmw: a.wait_vm(vmw)
            a.wait_ds(a.ds); a.i("s_barrier")
        push(2, fn, key=key, fence=True)
    def push_fence(key=None): push(0, lambda: None, key=key, fence=True)
    gq = [0]; gp = [0]
    last_t = {}; last_pk = {}
    def push_gelu8(x, waddr, wimm):
        ps = gp[0] % 4; pk = PK + 4 * ps; gp[0] += 1
        cv = []
        for hq in range(2):
            ts = gq[0] % 4; gq[0] += 1
            xs = x[4*hq:4*hq+4]; t = [GT + 4 * ts + e for e in range(4)]
            fin = []
            for e in range(4):
                d0 = [(z, 0) for z in last_t.get(ts, [])]
                def f1(e=e, xs=xs, t=t):
                    a.need_mfma([xs[e]]); a.i(f"v_mul_f32 v{t[e]}, v{xs[e]}, v{xs[e]}")
                i1 = push(1, f1, d0)
                i2 = push(1, lambda e=e, t=t: a.i(f"v_fmaak_f32 v{t[e]}, v{t[e]}, v{vC1}, {fl(C0)}"), [(i1, DP)])
                i3 = push(1, lambda e=e, t=t, xs=xs: a.i(f"v_mul_f32 v{t[e]}, v{xs[e]}, v{t[e]}"), [(i2, DP)])
                i4 = push(2, lambda e=e, t=t: a.i(f"v_exp_f32 v{t[e]}, v{t[e]}"), [(i3, DP)])
                i5 = push(1, lambda e=e, t=t: a.i(f"v_add_f32 v{t[e]}, 1.0, v{t[e]}"), [(i4, DT)])
                i6 = push(2, lambda e=e, t=t: a.i(f"v_rcp_f32 v{t[e]}, v{t[e]}"), [(i5, DP)])
                i7 = push(1, lambda e=e, t=t, xs=xs: a.i(f"v_mul_f32 v{t[e]}, v{xs[e]}, v{t[e]}"), [(i6, DT)])
                fin.append(i7)
            c = []
            for e in range(2):
                dd = [(fin[2*e], DP), (fin[2*e+1], DP)] + [(z, 2) for z in last_pk.get(ps, [])]
                c.append(push(1, lambda e=e, t=t, hq=hq: a.i(f"v_cvt_pk_bf16_f32 v{pk+2*hq+e}, v{t[2*e]}, v{t[2*e+1]}"), dd))
            last_t[ts] = c; cv += c
        w = push(1, lambda: a.dsop(f"ds_write_b128 v{waddr}, v[{pk}:{pk+3}] offset:{wimm}"), [(z, 0) for z in cv])
        last_pk[ps] = [w]
    def unit(acc, t, tt): return acc + 16 * (2 * t + tt)
    def push_gelu_pair(acc, p):
        for t in range(2):
            for tt in range(2):
                for kp in range(2):
                    b = unit(acc, t, tt) + 8 * kp
                    push_gelu8(list(range(b, b + 8)), vHw, tt * 36864 + (4 * p + 2 * t + kp) * 1024)
    def push_bias(acc, p):
        for t in range(2):
            for j in range(4):
                b = unit(acc, t, 1) + 4 * j
                def f(b=b, t=t, j=j):
                    a.need_mfma(list(range(b, b + 4)))
                    bready[('bias', acc, t)] = a.dsop(f"ds_read_b128 v[{b}:{b+3}], v{vB[p]} offset:{t*128 + j*32}")
                push(1, f, key=('bias', acc, t, j), fence=True)
    SB = (0, 16, 36, 52)
    def push_odd_reduce(acc, first):
        for n in range(16):
            def f(n=n):
                a.need_mfma(list(range(acc + 4*n, acc + 4*n + 4)))
                a.dsop(f"ds_write_b128 v{vSw}, v[{acc+4*n}:{acc+4*n+3}] offset:{n*1024}")
            push(1, f)
        push_barrier()
        rid = {}
        for src in range(4):
            for tt in range(2):
                for jj in range(2):
                    b = acc + 16 * src + 8 * tt + 4 * jj
                    def f(b=b, src=src, tt=tt, jj=jj):
                        rid[(src, tt, jj)] = a.dsop(f"ds_read_b128 v[{b}:{b+3}], v{vSr} offset:{(SB[src] + 4*tt + jj)*1024}")
                    push(1, f)
        if first:
            for jj in range(2):
                def f(jj=jj): rid[('b', jj)] = a.dsop(f"ds_read_b128 v[{GT+4*jj}:{GT+3+4*jj}], v{vBo} offset:{512 + jj*32}")
                push(1, f)
        push_fence()
        for src in range(1, 4):
            for tt in range(2):
                for jj in range(2):
                    for e in range(4):
                        def f(src=src, tt=tt, jj=jj, e=e):
                            a.wait_ds(rid[(src, tt, jj)])
                            d = acc + 8*tt + 4*jj + e
                            a.i(f"v_add_f32 v{d}, v{d}, v{d + 16*src}")
                        push(1, f)
        if first:
            for tt in range(2):
                for jj in range(2):
                    for e in range(4):
                        def f(tt=tt, jj=jj, e=e):
                            a.wait_ds(rid[('b', jj)])
                            d = acc + 8*tt + 4*jj + e
                            a.i(f"v_add_f32 v{d}, v{d}, v{GT+4*jj+e}")
                        push(1, f)
        push_fence()
    def push_store(x0, x1, sreg, imm):
        ps = gp[0] % 4; pk = PK + 4 * ps; gp[0] += 1
        c = []
        for k, xb in enumerate((x0, x0 + 2, x1, x1 + 2)):
            def f(k=k, xb=xb):
                a.need_mfma([xb, xb + 1]); a.i(f"v_cvt_pk_f16_f32 v{pk+k}, v{xb}, v{xb+1}")
            c.append(push(1, f, [(z, 2) for z in last_pk.get(ps, [])]))
        def f():
            a.i(f"s_add_u32 s{sTmp}, s{sreg}, {imm}")
            a.vmem(f"buffer_store_dwordx4 v[{pk}:{pk+3}], v{vP}, s[{sWS}:{sWS+3}], s{sTmp} offen sc1")
        last_pk[ps] = [push(2, f, [(z, 0) for z in c])]
    def push_epi(acc, p):
        for t in range(2):
            for j in range(4):
                push_store(unit(acc, t, 0) + 4*j, unit(acc, t, 1) + 4*j, sP, (16*p + 8*t + 2*j) * 131072)

    def push_own(sg):
        for tt in range(2):
            push_bload(1, sg, tt, vX[0], tt * 36864 + sg * 1024, vmw=xid[(sg, tt)])
    def push_rest():
        push_bias(R1, 0)
        push_barrier(('B1',), vmw=xid[(8, 1)])
        for sg in range(9, 36):
            for tt in range(2):
                push_bload(1, sg, tt, vX[sg // 9], tt * 36864 + (sg % 9) * 1024)
    def fb():
        a.wait_vm(bid)
        a.i("v_lshlrev_b32 v40, 16, v38"); a.i("v_and_b32 v41, 0xffff0000, v38"); a.i("v_lshlrev_b32 v42, 16, v39"); a.i("v_and_b32 v43, 0xffff0000, v39")
        a.dsop("ds_write_b128 v35, v[40:43]")
    push_own(0); push_own(1)
    push(5, fb, fence=True)
    def areg(k, t): return 224 + 8 * (k % 2) + 4 * t
    tr_id = {}
    def tr(k, t):
        st = steps[k]; b = areg(k, t); jo = 512 if st['ph'] == 1 else 1024
        a.wait_vm(dma_id[k])
        a.dsop(f"ds_read_b64_tr_b16 a[{b}:{b+1}], v{vT[st['ph']][t]} offset:{(k % NR)*2048}")
        tr_id[(k, t)] = a.dsop(f"ds_read_b64_tr_b16 a[{b+2}:{b+3}], v{vT[st['ph']][t]} offset:{(k % NR)*2048 + jo}")
    flush_until(('B', 1, 0, 1))
    tr(0, 0); tr(0, 1)
    def event(tag):
        if tag[0] == 'O1':
            if tag[1] + 2 < 9: push_own(tag[1] + 2)
            if tag[1] == 7: push_rest()
        if tag == ('P0', 1):
            push_barrier()
            push_odd_reduce(R2, True)
            for tt in range(2):
                push_gelu8(list(range(R2 + 8*tt, R2 + 8*tt + 8)), vHo[0], tt * 36864)
            push_fence()
            push_bias(R2, 1)
            push_barrier(('B4',))
        if tag == ('P1', 0):
            flush_until(('B4',))
            push_gelu_pair(R1, 0)
            for g in range(4):
                i1 = push(1, lambda g=g: a.i(f"v_sub_u32 v{vX[g]}, v{vHo[g]}, v3"))
                i2 = push(1, lambda g=g: a.i(f"v_add_u32 v{vX[g]}, {(-32768) & 0xffffffff}, v{vX[g]}"), [(i1, 0)])
                push(1, lambda g=g: a.i(f"v_lshl_add_u32 v{vX[g]}, v{vX[g]}, 3, v3"), [(i2, 0)])
            push_barrier(('B5',))
        if tag == ('D0s1', 0):
            flush_until(('B5',))
            for n in range(20):
                g, i = divmod(n, 5)
                for tt in range(2):
                    if i < 4: push_bload(2, ('s1', n), tt, vX[g], tt * 36864 + i * 1024)
                    else: push_bload(2, ('s1', n), tt, vHo[g], tt * 36864)
            flush_until(('B', 2, ('s1', 1), 1))
            push_gelu_pair(R2, 1)
            push_barrier(('B6',))
            for n in range(16):
                g, i = divmod(n, 4)
                for tt in range(2): push_bload(2, ('s2', n), tt, vX[g], tt * 36864 + (4 + i) * 1024)
            push_barrier(('B7',))
        if tag == ('D1s2', 0):
            push_epi(R1, 0)
            push_fence(('epi0',))
        if tag == ('O2', 0):
            flush_until(('epi0',))
        if tag == ('D1s2', 8):
            push_odd_reduce(R1, False)
            for jj in range(2):
                push_store(R1 + 4*jj, R1 + 8 + 4*jj, sPo, jj * 2 * 131072)
    for k, st in enumerate(steps):
        if st['tag'] in (('O1',0),('P0',0),('P0',18),('P1',0),('P1',18),('D0s1',0),('D1s1',0),('D0s2',0),('D1s2',0),('O2',0),('D1s2',8)): dg.mark(str(st['tag']))
        event(st['tag'])
        ph, sg, acc = st['ph'], st['sigma'], st['acc']
        for m in range(4):
            t, tt = divmod(m, 2)
            if (ph, sg, tt) not in bready: flush_until(('B', ph, sg, tt))
            a.wait_ds(max(bready[(ph, sg, tt)], tr_id[(k, t)]))
            d = unit(acc, t, tt)
            if st['cinit'] == 'zero': c = "0"
            elif st['cinit'] == 'bias':
                flush_until(('bias', acc, t, 3)); a.wait_ds(bready[('bias', acc, t)])
                cb = unit(acc, t, 1); c = f"v[{cb}:{cb+15}]"
            else: c = f"v[{d}:{d+15}]"
            ab = areg(k, t)
            n0 = a.n
            a.i(f"v_mfma_f32_32x32x16_bf16 v[{d}:{d+15}], a[{ab}:{ab+3}], {breg(ph, sg, tt)}, {c}")
            a.mfma_wrote(d, 16)
            if m == 0 and k + 1 < NS: tr(k + 1, 0)
            if m == 1 and k + 1 < NS: tr(k + 1, 1)
            if m == 2 and k + NR < NS: dma(k + NR)
            used = a.n - n0 - 1
            fill(SLOTS - used - (1 if m in (1, 3) else 0))
    push_epi(R3, 1)
    push_fence(('fin',)); flush_until(('fin',))
    dg.dump(54, sQ, 4, 28)
    a.raw("k2_end:")
    a.i("s_endpgm")
    return a.text(), kd(name, 512, 256)
```

```python
from common import *
import math
CS = 4416; KCH = 4 * CS; RS = 144; U1 = 48 * RS + 128; UCH = 13968
U_OFF = 4 * KCH
SC_OFF = U_OFF + 4 * UCH
K3_LDS = SC_OFF + 32768
YS = 4096 + 64
CHB = 27984; BT = 11088; TS = 1808
T_OFF = SC_OFF + 16384
SCL_OFF = T_OFF + 4 * TS
ST_OFF = XU_OFF
L2E = math.log2(math.e)
L2E_hi = struct.unpack("<f", struct.pack("<f", L2E))[0]
L2E_lo = L2E - L2E_hi
sWS, sOUT = 8, 12
PB = 192
P_EARLY, P_A, P_B, P_C, P_D, F_S, F_N = [int(x) for x in os.environ.get('PSCH', '0,2,4,4,1,12,4').split(',')]
def gen():
    a = Asm(); name = "kb_kernel"
    header(a, name)
    a.i("s_cmp_ge_u32 s2, 144"); a.i("s_cbranch_scc1 kb_end")
    dg = Diag(a, 2); dg.start(); dg.mark("start")
    a.i("s_load_dwordx16 s[32:47], s[0:1], 0")
    a.i("s_load_dwordx2 s[48:49], s[0:1], 128")
    a.i("s_load_dwordx4 s[52:55], s[0:1], 104")
    a.i("s_load_dwordx2 s[50:51], s[0:1], 64")
    a.i("v_lshrrev_b32 v1, 6, v0"); a.i("v_and_b32 v2, 63, v0")
    a.i("v_readfirstlane_b32 s20, v1")
    a.i("s_and_b32 s3, s2, 7"); a.i("s_lshr_b32 s4, s2, 3")
    a.i("s_lshl_b32 s5, s3, 4"); a.i("s_add_u32 s5, s5, s4")
    a.i("s_lshl_b32 s6, s3, 1"); a.i("s_add_u32 s6, s6, s4"); a.i("s_add_u32 s6, s6, 112")
    a.i("s_cmp_lt_u32 s4, 16"); a.i("s_cselect_b32 s21, s5, s6")
    a.i("s_lshr_b32 s22, s20, 1"); a.i("s_and_b32 s23, s20, 1")
    a.i("s_lshl_b32 s24, s21, 2"); a.i("s_add_u32 s24, s24, s22")
    a.i("s_lshl_b32 s5, s24, 8"); a.i("v_lshl_add_u32 v3, v2, 2, s5")
    a.i("s_lshl_b32 s5, s24, 1"); a.i("v_mov_b32 v4, s5")
    a.i("v_lshrrev_b32 v156, 4, v0"); a.i("v_and_b32 v157, 15, v0")
    a.i("v_lshlrev_b32 v158, 6, v156"); a.i("v_lshl_add_u32 v158, v157, 1, v158")
    a.i("v_mul_u32_u24 v190, 1152, v158"); a.i("s_lshl_b32 s6, s21, 3"); a.i("v_add_u32 v190, s6, v190")
    a.i(f"v_add_u32 v191, {32*1152}, v190")
    a.i(f"v_lshlrev_b32 v189, 3, v158"); a.i(f"v_add_u32 v189, {ST_OFF}, v189")
    a.i("v_lshlrev_b32 v188, 9, v156"); a.i("v_lshl_add_u32 v188, v157, 4, v188")
    a.i(f"s_mul_i32 s25, s22, {CHB}")
    a.i(f"s_mul_i32 s26, s22, {TS}"); a.i(f"s_add_u32 s26, s26, {T_OFF}")
    a.i("s_waitcnt lgkmcnt(0)")
    for k, sb in enumerate((34, 36, 38, 40, 42, 44)):
        a.vmem(f"global_load_dword v{10+k}, v3, s[{sb}:{sb+1}]")
    pm = a.vmem("global_load_ushort v16, v4, s[46:47]")
    srd(a, sWS, 48, WS_BYTES); srd(a, sOUT, 54, 2359296)
    a.i("s_lshl_b32 s5, s21, 3")
    a.i("s_add_u32 s56, s50, s5"); a.i("s_addc_u32 s57, s51, 0")
    a.i("s_load_dwordx2 s[16:17], s[56:57], 0")
    a.i("s_add_u32 s56, s52, s5"); a.i("s_addc_u32 s57, s53, 0")
    a.i("s_load_dwordx2 s[18:19], s[56:57], 0")
    a.i("s_lshl_b32 s27, s21, 17"); a.i(f"s_add_u32 s27, s27, {PART_OFF}")
    pn = [0]; pid = {}
    def part(cnt):
        for _ in range(cnt):
            n = pn[0]
            if n >= 16: return
            pn[0] += 1
            s_, u = divmod(n, 2)
            if u == 0 and s_ > 0: a.i(f"s_add_u32 s27, s27, 16384")
            pid[n] = a.vmem(f"buffer_load_dwordx4 v[{PB+8*s_+4*u}:{PB+3+8*s_+4*u}], v188, s[{sWS}:{sWS+3}], s27 offen offset:{256*u}")
    part(P_EARLY)
    a.i("s_lshl_b32 s5, s23, 10"); a.i("s_sub_u32 s5, 2047, s5")
    a.i("v_lshlrev_b32 v5, 4, v2"); a.i("v_sub_u32 v5, s5, v5")
    for e in range(0, 20, 2):
        a.i(f"v_subrev_u32 v6, {e}, v5"); a.i(f"v_subrev_u32 v7, {e+1}, v5")
        a.i("v_cvt_f32_u32 v8, v6"); a.i("v_cvt_f32_u32 v9, v7")
        a.i("v_cvt_pk_bf16_f32 v8, v8, v9")
        a.i("v_min_u32 v6, 256, v6"); a.i("v_min_u32 v7, 256, v7")
        a.i("v_lshrrev_b32 v9, 16, v8"); a.i("v_and_b32 v8, 0xffff, v8")
        a.i(f"v_add_u32 v8, {(-0x4280) & 0xffffffff}, v8"); a.i(f"v_add_u32 v9, {(-0x4280) & 0xffffffff}, v9")
        a.i("v_max_i32 v6, v6, v8"); a.i("v_max_i32 v7, v7, v9")
        if e >= 16: a.i("v_min_u32 v6, 896, v6"); a.i("v_min_u32 v7, 896, v7")
        a.i(f"v_lshl_add_u32 v{64+e}, v6, 1, s26"); a.i(f"v_lshl_add_u32 v{65+e}, v7, 1, s26")
    a.i("v_mov_b32 v8, 0"); a.i("v_mov_b32 v9, s26")
    a.dsop("ds_write_b32 v9, v8 offset:1792")
    a.i("v_and_b32 v6, 15, v2")
    a.i("s_lshl_b32 s5, s23, 4")
    a.i("v_add_u32 v6, s5, v6")
    a.i("v_lshrrev_b32 v7, 4, v2")
    a.i("v_max_u32 v8, 1, v7")
    a.i("v_sub_u32 v8, 4, v8")
    a.i("v_lshlrev_b32 v8, v8, v6")
    a.i("v_lshlrev_b32 v9, 2, v7")
    a.i("v_lshlrev_b32 v17, 7, v7")
    a.i("v_cmp_gt_u32 vcc, 2, v7")
    a.i("s_nop 1")
    a.i("v_cndmask_b32 v9, v17, v9, vcc")
    a.i("v_add_u32 v8, v8, v9")
    a.i("v_lshl_add_u32 v150, v8, 1, s26")
    a.i("v_cmp_eq_u32 vcc, 3, v7")
    a.i("v_mov_b32 v9, 4")
    a.i("v_mov_b32 v17, 128")
    a.i("v_cndmask_b32 v9, v9, v17, vcc")
    a.i("v_add_u32 v151, v150, v9")
    a.i("v_min_u32 v9, 2, v7")
    a.i("v_lshlrev_b32 v9, 7, v9")
    a.i("v_add3_u32 v9, v9, v6, 0")
    a.i("v_add_u32 v9, 512, v9")
    a.i("v_lshl_add_u32 v152, v9, 1, s26")
    a.i("v_and_b32 v8, 15, v2")
    a.i("v_mul_u32_u24 v8, 528, v8")
    a.i("v_lshl_add_u32 v8, v7, 4, v8")
    a.i("v_add_u32 v153, s25, v8")
    a.i(f"s_mul_i32 s5, s23, {16*528}")
    a.i(f"s_add_u32 s5, s5, {BT}")
    a.i("v_add_u32 v154, s5, v153")
    a.i("v_lshl_add_u32 v155, v2, 3, s25")
    a.vmem("global_load_dwordx2 v[172:173], v190, s[32:33]"); a.vmem("global_load_dwordx2 v[174:175], v190, s[32:33] offset:1152")
    a.vmem("global_load_dwordx2 v[176:177], v191, s[32:33]"); a.vmem("global_load_dwordx2 v[178:179], v191, s[32:33] offset:1152")
    a.vmem("global_load_dwordx4 v[180:183], v189, s[48:49]"); xs = a.vmem("global_load_dwordx4 v[184:187], v189, s[48:49] offset:256")
    dg.mark("pre")
    a.wait_vm(pm)
    dg.mark("loaded")
    part(P_A)
    a.i("v_lshlrev_b32 v16, 16, v16")
    a.i(f"v_mul_f32 v17, {fl(L2E_hi)}, v16")
    a.i(f"v_mov_b32 v18, {fl(L2E_hi)}")
    a.i("v_fma_f32 v18, v16, v18, -v17")
    a.i(f"v_fmac_f32 v18, {fl(L2E_lo)}, v16")
    a.i("v_exp_f32 v17, v17")
    a.i(f"v_mul_f32 v18, {fl(math.log(2.0))}, v18")
    a.i("v_fmac_f32 v17, v17, v18")
    a.i("v_cvt_pk_bf16_f32 v17, v17, v17")
    a.i("v_lshlrev_b32 v16, 16, v17")
    a.i("v_lshlrev_b32 v20, 16, v10"); a.i("v_and_b32 v21, 0xffff0000, v10")
    a.i("v_lshlrev_b32 v22, 16, v11"); a.i("v_and_b32 v23, 0xffff0000, v11")
    for r in (20, 21, 22, 23): a.i(f"v_mul_f32 v{r}, v16, v{r}")
    for r in (20, 21): a.i(f"v_mul_f32 v{r}, {fl(L2E)}, v{r}")
    for r in (22, 23): a.i(f"v_mul_f32 v{r}, 0.15915494, v{r}")
    def direct(dst, vv):
        for m in range(2):
            a.i(f"v_mul_f32 v{24+m}, {fl(float(vv))}, v{20+m}")
            a.i(f"v_mul_f32 v{26+m}, {fl(float(vv))}, v{22+m}")
        for m in range(2):
            a.i(f"v_exp_f32 v{24+m}, v{24+m}")
            a.i(f"v_fract_f32 v{26+m}, v{26+m}")
        for m in range(2):
            a.i(f"v_cos_f32 v{28+m}, v{26+m}")
            a.i(f"v_sin_f32 v{30+m}, v{26+m}")
        a.i("s_nop 0")
        for m in range(2):
            a.i(f"v_mul_f32 v{dst+2*m}, v{24+m}, v{28+m}")
            a.i(f"v_mul_f32 v{dst+2*m+1}, v{24+m}, v{30+m}")
    def put(z, off, t):
        a.i(f"v_cvt_pk_f16_f32 v{t}, v{z}, v{z+1}")
        a.i(f"v_cvt_pk_f16_f32 v{t+1}, v{z+2}, v{z+3}")
        a.dsop(f"ds_write_b64 v155, v[{t}:{t+1}] offset:{off}")
    def cm2(d, z, w, t):
        for m in range(2): a.i(f"v_pk_mul_f32 v[{t+2*m}:{t+2*m+1}], v[{z+2*m}:{z+2*m+1}], v[{w+2*m}:{w+2*m+1}] op_sel:[0,0] op_sel_hi:[0,1]")
        for m in range(2): a.i(f"v_pk_fma_f32 v[{d+2*m}:{d+2*m+1}], v[{z+2*m}:{z+2*m+1}], v[{w+2*m}:{w+2*m+1}], v[{t+2*m}:{t+2*m+1}] op_sel:[1,1,0] op_sel_hi:[1,0,1] neg_lo:[1,0,0]")
    a.i("s_cmp_eq_u32 s23, 1")
    a.i("s_cbranch_scc1 kb_hi")
    direct(32, 8)
    direct(40, 128)
    a.i("v_mov_b32 v36, 1.0"); a.i("v_mov_b32 v37, 0"); a.i("v_mov_b32 v38, 1.0"); a.i("v_mov_b32 v39, 0")
    for r in range(16):
        put(36, BT + r * 528, 52 + 4 * (r & 1))
        put(40, BT + (16 + r) * 528, 54 + 4 * (r & 1))
        if r < 15:
            cm2(36, 36, 32, 44)
            cm2(40, 40, 32, 48)
    a.i("s_branch kb_join")
    a.raw("kb_hi:")
    a.i("v_xor_b32 v22, 0x80000000, v22"); a.i("v_xor_b32 v23, 0x80000000, v23")
    for k, src in enumerate((12, 13, 14, 15)):
        a.i(f"v_lshlrev_b32 v{40+2*k}, 16, v{src}"); a.i(f"v_and_b32 v{41+2*k}, 0xffff0000, v{src}")
    for r in (40, 41, 42, 43): a.i(f"v_mul_f32 v{r}, v16, v{r}")
    for m in range(2):
        a.i(f"v_mul_f32 v{36+2*m}, v{44+m}, v{40+m}")
        a.i(f"v_fma_f32 v{36+2*m}, -v{46+m}, v{42+m}, v{36+2*m}")
        a.i(f"v_mul_f32 v{37+2*m}, v{44+m}, v{42+m}")
        a.i(f"v_fma_f32 v{37+2*m}, -v{46+m}, v{40+m}, -v{37+2*m}")
    a.i("v_max3_f32 v48, abs(v36), abs(v37), abs(v38)")
    a.i("v_max_f32 v49, abs(v39), abs(v39)")
    a.i("v_max_f32 v48, v48, v49")
    for rr in (8, 4, 2, 1):
        a.i("s_nop 1")
        a.i(f"v_max_f32_dpp v48, v48, v48 row_ror:{rr} row_mask:0xf bank_mask:0xf")
    a.i("s_nop 1")
    for k, ln in enumerate((0, 16, 32, 48)): a.i(f"v_readlane_b32 s{56+k}, v48, {ln}")
    a.i("s_nop 3")
    a.i("s_max_u32 s56, s56, s57"); a.i("s_max_u32 s58, s58, s59"); a.i("s_max_u32 s56, s56, s58")
    a.i("s_lshr_b32 s56, s56, 23")
    a.i("s_max_u32 s56, s56, 1"); a.i("s_min_u32 s56, s56, 253")
    a.i("s_sub_u32 s57, 254, s56"); a.i("s_lshl_b32 s57, s57, 23")
    a.i("s_lshl_b32 s56, s56, 23")
    for r in (36, 37, 38, 39): a.i(f"v_mul_f32 v{r}, s57, v{r}")
    direct(32, 1)
    direct(40, 256)
    cm2(56, 36, 40, 44)
    cm2(60, 32, 32, 48)
    put(36, 0, 52)
    cm2(86, 60, 60, 48)
    put(56, 8 * 528, 54)
    cm2(94, 56, 60, 44)
    cm2(36, 36, 32, 48); put(94, 9 * 528, 90); put(36, 1 * 528, 52)
    cm2(94, 94, 60, 44); cm2(36, 36, 32, 48); put(94, 10 * 528, 90); put(36, 2 * 528, 52)
    cm2(94, 94, 60, 44); cm2(36, 36, 32, 48); put(94, 11 * 528, 90); put(36, 3 * 528, 52)
    cm2(56, 56, 40, 44); cm2(36, 36, 32, 48); put(56, 12 * 528, 90); put(36, 4 * 528, 52)
    cm2(94, 56, 86, 44); cm2(36, 36, 32, 48); put(94, 13 * 528, 90); put(36, 5 * 528, 52)
    cm2(56, 56, 40, 44); cm2(36, 36, 32, 48); put(56, 14 * 528, 90); put(36, 6 * 528, 52)
    cm2(94, 56, 86, 44); cm2(36, 36, 32, 48); put(94, 15 * 528, 90); put(36, 7 * 528, 52)
    for row in range(16, 21):
        cm2(56, 56, 40, 44); put(56, row * 528, 52 + 2 * (row & 1))
    a.i("v_mov_b32 v48, s56"); a.i(f"s_lshl_b32 s5, s22, 2"); a.i("v_mov_b32 v49, s5")
    a.i(f"ds_write_b32 v49, v48 offset:{0}") if False else None
    a.i(f"v_add_u32 v49, {SCL_OFF}, v49"); a.i("ds_write_b32 v49, v48")
    a.raw("kb_join:")
    a.i("s_waitcnt lgkmcnt(0)"); a.ds_done = a.ds
    a.i("s_barrier")
    dg.mark("tables")
    part(P_B)
    def fr(k):
        b = 96 + 12 * (k % 4)
        a.dsop(f"ds_read_b128 v[{b}:{b+3}], v153 offset:{k*64}")
        a.dsop(f"ds_read_b128 v[{b+4}:{b+7}], v153 offset:{k*64 + 16*528}")
        return a.dsop(f"ds_read_b128 v[{b+8}:{b+11}], v154 offset:{k*64}")
    ids = {k: fr(k) for k in range(4)}
    a.i("s_lshl_b32 s5, s22, 2"); a.i(f"s_add_u32 s5, s5, {SCL_OFF}"); a.i("v_mov_b32 v15, s5")
    a.dsop("ds_read_b32 v15, v15")
    for k in range(8):
        b = 96 + 12 * (k % 4)
        a.wait_ds(ids[k])
        c0 = "0" if k == 0 else "v[40:43]"; c1 = "0" if k == 0 else "v[44:47]"
        a.i(f"v_mfma_f32_16x16x32_f16 v[40:43], v[{b}:{b+3}], v[{b+8}:{b+11}], {c0}")
        a.i(f"v_mfma_f32_16x16x32_f16 v[44:47], v[{b+4}:{b+7}], v[{b+8}:{b+11}], {c1}")
        if k + 4 < 8: a.nop(4); ids[k + 4] = fr(k + 4)
    a.wait_vm(xs)
    for k in range(4): a.i(f"v_rcp_f32 v{52+2*k}, v{181+2*k}")
    for k in range(4): a.i(f"v_mov_b32 v{16+4*k}, v{172+2*k}"); a.i(f"v_mov_b32 v{17+4*k}, v{173+2*k}")
    a.i("v_cvt_pk_f16_f32 v48, v40, v41"); a.i("v_cvt_pk_f16_f32 v49, v42, v43")
    a.i("v_cvt_pk_f16_f32 v50, v44, v45"); a.i("v_cvt_pk_f16_f32 v51, v46, v47")
    a.dsop("ds_write_b32 v150, v48"); a.dsop("ds_write_b32 v151, v49")
    a.dsop("ds_write_b16 v152, v50"); a.dsop("ds_write_b16_d16_hi v152, v50 offset:64")
    a.dsop("ds_write_b16 v152, v51 offset:128"); a.dsop("ds_write_b16_d16_hi v152, v51 offset:192")
    def unp(d, s):
        a.i(f"v_lshlrev_b32 v{d}, 16, v{s}"); a.i(f"v_and_b32 v{d+1}, 0xffff0000, v{s}")
    E = 96
    for k in range(4):
        for h in range(2): unp(E + 8*k + 2*h, 16 + 4*k + h)
    for k in range(4):
        for h in range(2): a.i(f"v_pk_add_f32 v[{E+8*k+2*h}:{E+8*k+2*h+1}], v[{E+8*k+2*h}:{E+8*k+2*h+1}], v[{180+2*k}:{181+2*k}] op_sel:[0,0] op_sel_hi:[1,0] neg_lo:[0,1] neg_hi:[0,1]")
    for k in range(4):
        for h in range(2): a.i(f"v_cvt_pk_bf16_f32 v{18+4*k+h}, v{E+8*k+2*h}, v{E+8*k+2*h+1}")
    a.i("s_waitcnt lgkmcnt(0)"); a.ds_done = a.ds
    a.i("s_barrier")
    dg.mark("T")
    for e in range(19): a.dsop(f"ds_read_u16 v{128 + e}, v{64+e}")
    part(P_C)
    for k in range(4):
        for h in range(2): unp(E + 8*k + 2*h, 18 + 4*k + h)
    for k in range(4):
        for h in range(2): a.i(f"v_pk_mul_f32 v[{E+8*k+4+2*h}:{E+8*k+5+2*h}], v[{E+8*k+2*h}:{E+8*k+2*h+1}], v[{52+2*k}:{53+2*k}] op_sel:[0,0] op_sel_hi:[1,0]")
    for k in range(4):
        for h in range(2): a.i(f"v_pk_fma_f32 v[{E+8*k+2*h}:{E+8*k+2*h+1}], v[{E+8*k+4+2*h}:{E+8*k+5+2*h}], v[{180+2*k}:{181+2*k}], v[{E+8*k+2*h}:{E+8*k+2*h+1}] op_sel:[0,1,0] op_sel_hi:[1,1,1] neg_lo:[1,0,0] neg_hi:[1,0,0]")
    for k in range(4):
        for h in range(2): a.i(f"v_pk_fma_f32 v[{E+8*k+4+2*h}:{E+8*k+5+2*h}], v[{E+8*k+2*h}:{E+8*k+2*h+1}], v[{52+2*k}:{53+2*k}], v[{E+8*k+4+2*h}:{E+8*k+5+2*h}] op_sel:[0,0,0] op_sel_hi:[1,0,1]")
    for k in range(4):
        for h in range(2): a.i(f"v_cvt_pk_bf16_f32 v{18+4*k+h}, v{E+8*k+4+2*h}, v{E+8*k+5+2*h}")
    a.i("v_mov_b32 v3, v156"); a.i("v_mov_b32 v4, v157"); a.i("v_mov_b32 v5, v158"); a.i("v_mov_b32 v7, v188"); a.i("v_lshlrev_b32 v8, 4, v2")
    a.i(f"s_mul_i32 s6, s22, {KCH}"); a.i("s_lshl_b32 s7, s23, 11"); a.i("s_add_u32 s6, s6, s7")
    a.i("v_lshl_add_u32 v9, v2, 5, s6")
    a.i("s_waitcnt lgkmcnt(0)"); a.ds_done = a.ds
    for c in range(4):
        for e in range(8): a.i(f"v_lshl_or_b32 v{32+8*c+e}, v{128+2*e+1+3-c}, 16, v{128+2*e+3-c}")
        a.dsop(f"ds_write_b128 v9, v[{32+8*c}:{35+8*c}] offset:{c*CS}"); a.dsop(f"ds_write_b128 v9, v[{36+8*c}:{39+8*c}] offset:{c*CS+16}")
    for r in range(64, 68): a.i(f"v_mov_b32 v{r}, 0")
    a.i(f"s_mul_i32 s6, s22, {UCH}"); a.i(f"s_mul_i32 s7, s23, {U1}"); a.i("s_add_u32 s6, s6, s7"); a.i(f"s_add_u32 s6, s6, {U_OFF}")
    a.i("v_add_u32 v9, s6, v8")
    a.dsop("ds_write_b128 v9, v[64:67]"); a.dsop("ds_write_b128 v9, v[64:67] offset:1024")
    a.i("v_min_u32 v10, 15, v2"); a.i("v_lshl_add_u32 v10, v10, 4, s6")
    a.dsop("ds_write_b128 v10, v[64:67] offset:2048")
    a.i(f"s_mul_i32 s7, s23, {16*RS}"); a.i("s_add_u32 s6, s6, s7")
    a.i("v_mov_b32 v10, s6")
    a.dsop(f"ds_write_b64 v10, v[64:65]")
    a.i(f"s_mul_i32 s6, s22, {KCH}"); a.i(f"s_mul_i32 s7, s23, {2*CS}"); a.i("s_add_u32 s6, s6, s7")
    a.i("v_min_u32 v10, 6, v2"); a.i("v_lshl_add_u32 v10, v10, 4, s6")
    a.dsop("ds_write_b128 v10, v[64:67] offset:4096"); a.dsop(f"ds_write_b128 v10, v[64:67] offset:{4096+CS}")
    a.i(f"v_mul_u32_u24 v9, {RS}, v3"); a.i("v_lshl_add_u32 v9, v4, 2, v9"); a.i(f"v_add_u32 v9, {U_OFF + 16*RS}, v9")
    a.i("v_cmp_lt_u32 vcc, 13, v4")
    a.i("v_mov_b32 v10, 0"); a.i("v_mov_b32 v11, 16")
    a.i("v_cndmask_b32 v10, v10, v11, vcc")
    a.i("v_add_u32 v10, v9, v10")
    for pr in range(2):
        t0, t1 = 16 + 8*pr, 20 + 8*pr
        for c in range(4):
            r = 2 + c // 2
            if c % 2 == 0:
                a.i(f"v_lshlrev_b32 v68, 16, v{t0+r}"); a.i(f"v_lshlrev_b32 v69, 16, v{t1+r}")
            else:
                a.i(f"v_and_b32 v68, 0xffff0000, v{t0+r}"); a.i(f"v_and_b32 v69, 0xffff0000, v{t1+r}")
            pk = 70 + 4*pr + c
            a.i(f"v_cvt_pk_f16_f32 v{pk}, v68, v69")
            a.dsop(f"ds_write_b32 v9, v{pk} offset:{c*UCH + 64*pr}")
            if pr == 0: a.dsop(f"ds_write_b32 v9, v{pk} offset:{c*UCH + U1 + 8}")
            else:
                a.dsop(f"ds_write_b32 v10, v{pk} offset:{c*UCH + U1 + 8 + 64}")
    a.i("v_and_b32 v12, 3, v2"); a.i(f"v_mul_u32_u24 v12, {CS}, v12")
    a.i("v_lshrrev_b32 v13, 2, v2"); a.i("v_and_b32 v14, 7, v13"); a.i("v_lshrrev_b32 v13, 5, v2"); a.i("v_add_u32 v14, v14, v13")
    a.i("v_lshlrev_b32 v14, 4, v14"); a.i("v_sub_u32 v12, v12, v14")
    a.i(f"s_mul_i32 s6, s22, {KCH}"); a.i("s_lshl_b32 s7, s23, 10"); a.i("s_sub_u32 s6, s6, s7"); a.i(f"s_add_u32 s6, s6, {576*2}")
    a.i("v_add_u32 v12, s6, v12")
    a.i("v_bfe_u32 v14, v2, 1, 4"); a.i(f"v_mul_u32_u24 v14, {RS}, v14")
    a.i("v_and_b32 v78, 1, v2"); a.i("v_xor_b32 v78, 1, v78"); a.i(f"v_mul_u32_u24 v78, {U1}, v78"); a.i("v_add_u32 v14, v14, v78")
    a.i("v_lshlrev_b32 v78, 4, v13"); a.i("v_sub_u32 v14, v14, v78")
    a.i(f"s_mul_i32 s6, s22, {UCH}"); a.i(f"s_mul_i32 s7, s23, {8*RS}"); a.i("s_sub_u32 s6, s6, s7"); a.i(f"s_add_u32 s6, s6, {U_OFF}")
    a.i("v_add_u32 v14, s6, v14")
    a.i("s_waitcnt lgkmcnt(0)"); a.ds_done = a.ds
    a.i("s_barrier")
    dg.mark("conv")
    def zoff(z): return (z // 64) * RS + (z % 64) * 2
    def loads(st):
        b = 64 + 16 * (st % 3)
        ya = (31 - st) * 32
        zb = 1024 + 56 - 16 * st
        a.dsop(f"ds_read_b128 v[{b}:{b+3}], v12 offset:{ya + 2048}")
        a.dsop(f"ds_read_b128 v[{b+4}:{b+7}], v14 offset:{zoff(zb)}")
        i1 = a.dsop(f"ds_read_b128 v[{b+8}:{b+11}], v14 offset:{zoff(zb + 1024)}")
        i2 = a.dsop(f"ds_read_b128 v[{b+12}:{b+15}], v12 offset:{ya}")
        return i1, i2
    F = []
    SU, TT_, XX = 112, 32, 48
    def rnd2(d0, d1, t, L=None):
        o = [f"v_cvt_pk_bf16_f32 v{t}, v{d0}, v{d1}", f"v_lshlrev_b32 v{d0}, 16, v{t}", f"v_and_b32 v{d1}, 0xffff0000, v{t}"]
        return o
    for k in range(2):
        F += [f"s_lshl_b32 s{56+2*k}, s{16+k}, 16", f"s_and_b32 s{57+2*k}, s{16+k}, 0xffff0000", f"s_lshl_b32 s{60+2*k}, s{18+k}, 16", f"s_and_b32 s{61+2*k}, s{18+k}, 0xffff0000"]
    for k in range(4):
        for c in range(4):
            sh = "v_lshlrev_b32 v{d}, 16, v{s}" if c % 2 == 0 else "v_and_b32 v{d}, 0xffff0000, v{s}"
            F.append(sh.format(d=TT_ + 4*k + c, s=18 + 4*k + c // 2))
            F.append(sh.format(d=XX + 4*k + c, s=16 + 4*k + c // 2))
    for k in range(16): F.append(f"v_mul_f32 v{TT_+k}, s{56 + k % 4}, v{TT_+k}")
    def rnd_all(base):
        o = []
        for g in range(2):
            tr_ = [rnd2(base + 8*g + 2*k, base + 8*g + 2*k + 1, 16 + k) for k in range(4)]
            for j in range(3): o += [t[j] for t in tr_]
        return o
    F += rnd_all(TT_)
    for s_ in range(1, 8):
        F.append(('vm', 2 * s_ + 1))
        for r in range(8):
            for hh in range(2):
                d = SU + 2*r + hh
                if s_ == 1: F.append(f"v_fma_mix_f32 v{d}, v{PB+r}, 1.0, v{PB+8+r} op_sel:[{hh},0,{hh}] op_sel_hi:[1,0,1]")
                else: F.append(f"v_fma_mix_f32 v{d}, v{PB+8*s_+r}, 1.0, v{d} op_sel:[{hh},0,0] op_sel_hi:[1,0,0]")
    F += rnd_all(SU)
    for k in range(16): F.append(f"v_add_f32 v{SU+k}, s{60 + k % 4}, v{SU+k}")
    F += rnd_all(SU)
    def fill(n):
        while n > 0 and F:
            f = F.pop(0)
            if isinstance(f, tuple): a.wait_vm(pid[f[1]])
            else: a.i(f); n -= 1
    ld = {0: loads(0), 1: loads(1)}
    for st in range(32):
        b = 64 + 16 * (st % 3)
        if st + 2 < 32: ld[st + 2] = loads(st + 2)
        a.wait_ds(ld[st][0])
        c0 = "0" if st == 0 else "v[128:143]"; c1 = "0" if st == 0 else "v[144:159]"
        nf = F_N if st >= F_S else (3 if any(isinstance(f, tuple) for f in F[12:]) and not any(isinstance(f, tuple) for f in F[:12]) else 0)
        a.i(f"v_mfma_f32_32x32x16_f16 v[128:143], v[{b}:{b+3}], v[{b+4}:{b+7}], {c0}")
        fill(nf)
        a.i(f"v_mfma_f32_32x32x16_f16 v[144:159], v[{b}:{b+3}], v[{b+8}:{b+11}], {c1}")
        part(P_D)
        fill(nf)
        a.wait_ds(ld[st][1])
        a.i(f"v_mfma_f32_32x32x16_f16 v[144:159], v[{b+12}:{b+15}], v[{b+4}:{b+7}], v[144:159]")
        fill(nf)
    dg.mark("convend")
    a.i(f"s_lshl_b32 s6, s20, 12"); a.i(f"s_add_u32 s6, s6, {SC_OFF}"); a.i("v_add_u32 v9, s6, v8")
    a.i("s_xor_b32 s7, s20, 1"); a.i("s_lshl_b32 s7, s7, 12"); a.i(f"s_add_u32 s7, s7, {SC_OFF}"); a.i("v_add_u32 v10, s7, v8")
    a.i("v_bfe_u32 v11, v2, 1, 4"); a.i("v_lshlrev_b32 v11, 7, v11")
    a.i("v_and_b32 v12, 1, v2"); a.i("v_lshl_add_u32 v11, v12, 3, v11")
    a.i("v_lshl_add_u32 v11, v13, 4, v11")
    a.i(f"s_mul_i32 s6, s22, {YS}"); a.i("s_lshl_b32 s7, s23, 11"); a.i("s_add_u32 s6, s6, s7"); a.i("v_add_u32 v11, s6, v11")
    a.i("v_lshlrev_b32 v12, 1, v5")
    a.i("v_mul_u32_u24 v13, 1152, v5"); a.i("s_lshl_b32 s6, s21, 3")
    a.i("v_mov_b32 v14, v15")
    a.nop(4)
    a.i("s_cmp_eq_u32 s23, 0"); a.i("s_cbranch_scc1 kb_mu0")
    def xch(send, keep):
        for k in range(4): a.i(f"ds_write_b128 v9, v[{send+4*k}:{send+3+4*k}] offset:{k*1024}")
        a.i("s_waitcnt lgkmcnt(0)")
        a.i("s_barrier")
        for k in range(4): a.i(f"ds_read_b128 v[{176+4*k}:{179+4*k}], v10 offset:{k*1024}")
        for k in range(4):
            a.i(f"s_waitcnt lgkmcnt({3-k})")
            for h in range(2): a.i(f"v_pk_add_f32 v[{160+4*k+2*h}:{161+4*k+2*h}], v[{keep+4*k+2*h}:{keep+1+4*k+2*h}], v[{176+4*k+2*h}:{177+4*k+2*h}]")
    xch(128, 144)
    a.i("s_branch kb_j")
    a.raw("kb_mu0:")
    xch(144, 128)
    a.raw("kb_j:")
    for k in range(8): a.i(f"v_pk_mul_f32 v[{160+2*k}:{161+2*k}], v[{160+2*k}:{161+2*k}], v[14:15]")
    for k in range(8): a.i(f"v_cvt_pk_bf16_f32 v{176+k}, v{160+2*k}, v{161+2*k}")
    for k in range(4): a.i(f"ds_write_b64 v11, v[{176+2*k}:{177+2*k}] offset:{32*k}")
    dg.mark("ywr")
    fill(1000)
    a.i("s_waitcnt lgkmcnt(0)")
    a.i("s_barrier")
    dg.mark("yb")
    for c in range(4):
        a.i(f"ds_read_b32 v{152+2*c}, v12 offset:{c*YS}")
        a.i(f"ds_read_b32 v{153+2*c}, v12 offset:{c*YS + 64}")
    a.i("s_waitcnt lgkmcnt(0)")
    Y = 128
    for k in range(4):
        pr, u = divmod(k, 2)
        for c in range(4):
            shy = "v_lshlrev_b32 v{d}, 16, v{s}" if u == 0 else "v_and_b32 v{d}, 0xffff0000, v{s}"
            a.i(shy.format(d=Y + 4*k + c, s=152 + 2*c + pr))
    def padd(src):
        for k in range(8): a.i(f"v_pk_add_f32 v[{Y+2*k}:{Y+2*k+1}], v[{Y+2*k}:{Y+2*k+1}], v[{src(k)}:{src(k)+1}]")
    padd(lambda k: TT_ + 2*k)
    for f in rnd_all(Y): a.i(f)
    padd(lambda k: XX + 2*k)
    for f in rnd_all(Y): a.i(f)
    padd(lambda k: SU + 8 * ((k // 2) % 2) + 4 * (k // 4) + 2 * (k % 2))
    for k in range(4):
        pr, u = divmod(k, 2)
        a.i(f"v_cvt_pk_bf16_f32 v{172+2*k}, v{Y+4*k}, v{Y+4*k+1}"); a.i(f"v_cvt_pk_bf16_f32 v{173+2*k}, v{Y+4*k+2}, v{Y+4*k+3}")
        a.i(f"s_add_u32 s7, s6, {(32*pr + u) * 1152}")
        a.i(f"buffer_store_dwordx2 v[{172+2*k}:{173+2*k}], v13, s[{sOUT}:{sOUT+3}], s7 offen")
    dg.mark("st")
    dg.dump(48, 20, 8, 28)
    a.raw("kb_end:")
    a.i("s_endpgm")
    return a.text(), kd(name, 256, 256)
```

```python
import sys, os
sys.path.insert(0, os.path.dirname(__file__))
import k1b as k1, k2b as k2, kb as k3
ref = open("parallel_sum__ssm_conv_s4__dense_activation_gelu__prompt.s.ref").read().split("\n")
head = [l for l in ref if l.startswith(";") and "@launch" not in l and "Override" not in l and "grid=ceil" not in l]
t2, d2 = k2.gen(); t3, d3 = k3.gen()
PF = int(os.environ.get("PFBYTES", "40960"))
t1, d1 = k1.gen("k2_kernel", PF)
out = head + [
 f"; @launch kernel=k1_kernel grid=({k1.K1_GRID},1,1) block=(256,1,1) lds={k1.K1_LDS}",
 f"; @launch kernel=k2_kernel grid=(256,1,1) block=(256,1,1) lds={k2.K2_LDS}",
 f"; @launch kernel=kb_kernel grid=(144,1,1) block=(512,1,1) lds={k3.K3_LDS}",
 '.amdgcn_target "amdgcn-amd-amdhsa--gfx950"', ".text", t1, t2, t3, "k_code_end:", "  s_endpgm", '.section .rodata,"a"', d1, d2, d3]
dst = sys.argv[1] if len(sys.argv) > 1 else "b.s"
open(dst, "w").write("\n".join(out))
print("wrote", dst)
```

```python
from common import *
import math, os
NR = int(os.environ.get('NR', '10'))
RING = NR * 2048
XH = 73728
BIAS_OFF = XH + 4 * RING
K2_LDS = BIAS_OFF + 2304
R1, R2, R3 = 64, 128, 192
C0 = -2.0 * math.sqrt(2.0 / math.pi) * math.log2(math.e)
C1 = C0 * 0.044715
DP = int(os.environ.get('DP', '2')); DT = int(os.environ.get('DT', '4'))
ND0 = int(os.environ.get('ND0', '3'))
MAP2 = int(os.environ.get('MAP2', '1')); PF1AT = int(os.environ.get('PF1AT', '3')); PF2AT = int(os.environ.get('PF2AT', '1')); PF2S = int(os.environ.get('PF2S', '3'))
SLOTS = int(os.environ.get('SLOTS', '7'))
vW1 = {0: (4, 5), 1: (6, 7)}; vW2 = (8, 9)
vT = {1: (10, 11), 2: (12, 13)}
vX = (14, 15, 16, 17); vHo = (18, 19, 20, 21)
vS, vHw, vP = 22, 23, 25
vSt = (26, 30); vC0p = (0, 1); vC1p = (2, 24)
sSw, sSr = 62, 63
XT_OFF = XF_OFF; ST_OFF = XU_OFF
sX = 96 + 0; sDl = (97, 98, 99)
GT = 32
PK = 48
sW1, sW2, sWS, sB1 = 8, 12, 16, 20
sK1 = (24, 25, 26, 27); sA2 = {0: (28, 29, 30, 31), 1: (56, 57, 58, 59)}; sB2 = (32, 33, 34, 35)
sO1, sB2o, sP, sPo, sRing, sOff, sQ, sTmp = 36, 38, 39, 40, 41, 42, 43, 44
sA2o = {0: 37, 1: 60}; sBit = 61

def breg(phase, sigma, tt):
    if phase == 1:
        n = sigma * 2 + tt
        if n < 56: return f"a[{4*n}:{4*n+3}]"
        b = R3 + 4 * (n - 56); return f"v[{b}:{b+3}]"
    kind, k = sigma
    n = 2 * k + tt
    if kind == 's1': return f"a[{4*n}:{4*n+3}]"
    if n < 16: return f"a[{160+4*n}:{160+4*n+3}]"
    b = R2 + 4 * (n - 16); return f"v[{b}:{b+3}]"

class Item:
    __slots__ = ("cost", "fn", "deps", "key", "fence", "at")
    def __init__(s, cost, fn, deps, key, fence): s.cost, s.fn, s.deps, s.key, s.fence, s.at = cost, fn, deps, key, fence, None

def gen(code_pf_bytes):
    a = Asm(); name = "ka_kernel"
    header(a, name)
    a.i("s_cmp_ge_u32 s2, 256"); a.i("s_cbranch_scc1 ka_end")
    dg = Diag(a, 1); dg.start(); dg.mark("start")
    a.i("s_load_dwordx2 s[100:101], s[0:1], 0")
    a.i("s_load_dwordx4 s[48:51], s[0:1], 80")
    a.i("s_load_dwordx2 s[52:53], s[0:1], 96")
    a.i("s_load_dwordx2 s[54:55], s[0:1], 128")
    a.i("v_lshrrev_b32 v1, 6, v0"); a.i("v_and_b32 v2, 63, v0")
    a.i(f"v_readfirstlane_b32 s{sQ}, v1")
    if MAP2:
        a.i("s_and_b32 s3, s2, 3"); a.i("s_lshl_b32 s3, s3, 1"); a.i("s_bfe_u32 s4, s2, 0x10003"); a.i("s_add_u32 s3, s3, s4")
        a.i("s_bfe_u32 s4, s2, 0x10002"); a.i("s_lshl_b32 s4, s4, 4"); a.i("s_lshr_b32 s5, s2, 4"); a.i("s_add_u32 s4, s4, s5")
    else:
        a.i("s_and_b32 s3, s2, 7"); a.i("s_lshr_b32 s4, s2, 3")
    a.i(f"s_and_b32 s{sBit}, s4, 1")
    a.i("v_lshlrev_b32 v3, 4, v2")
    RX = 128
    a.i(f"s_lshl_b32 s5, s4, 6"); a.i(f"s_lshl_b32 s6, s{sQ}, 4"); a.i("s_add_u32 s5, s5, s6"); a.i("s_mul_i32 s5, s5, 1152")
    a.i("v_lshrrev_b32 v32, 3, v2"); a.i("v_and_b32 v33, 7, v2")
    a.i("v_mul_u32_u24 v34, 1152, v32"); a.i("v_lshl_add_u32 v34, v33, 4, v34"); a.i("v_add_u32 v34, s5, v34"); a.i(f"v_add_u32 v35, {8*1152}, v34")
    a.i("s_waitcnt lgkmcnt(0)")
    xl = {}
    for p in range(2):
        for i in range(9):
            xl[(p, i)] = a.vmem(f"global_load_dwordx4 v[{RX+36*p+4*i}:{RX+36*p+4*i+3}], v{34+p}, s[100:101] offset:{128*i}")
    a.i("s_mul_i32 s7, s3, 1152")
    a.i(f"s_lshl_b32 s{sTmp}, s{sQ}, 8")
    a.i(f"s_lshl_b32 s46, s{sBit}, 7")
    a.i(f"s_mul_i32 s47, s{sBit}, {64*1152}")
    for g in range(4):
        a.i(f"s_add_u32 s5, s{sQ}, {g}"); a.i("s_and_b32 s5, s5, 3")
        a.i(f"s_mul_i32 s{sK1[g]}, s5, {144*9216}"); a.i(f"s_add_u32 s{sK1[g]}, s{sK1[g]}, s7")
        a.i("s_mul_i32 s6, s3, 663552")
        a.i(f"s_mul_i32 s{sA2[1][g]}, s5, {128*1152}"); a.i(f"s_add_u32 s{sA2[1][g]}, s{sA2[1][g]}, s6")
        a.i(f"s_add_u32 s{sA2[0][g]}, s{sA2[1][g]}, s47")
        a.i(f"s_sub_u32 s{sA2[1][g]}, s{sA2[1][g]}, s47"); a.i(f"s_add_u32 s{sA2[1][g]}, s{sA2[1][g]}, {64*1152}")
        a.i(f"s_mul_i32 s{sB2[g]}, s5, {16*1152}"); a.i(f"s_add_u32 s{sB2[g]}, s{sB2[g]}, s6"); a.i(f"s_add_u32 s{sB2[g]}, s{sB2[g]}, {512*1152}")
        if g > 0: a.i("s_cmp_eq_u32 s5, 0"); a.i(f"s_cselect_b32 s{sDl[g-1]}, -3, 1"); a.i(f"s_mul_i32 s{sDl[g-1]}, s{sDl[g-1]}, 9216")
        a.i("s_lshl_b32 s6, s5, 10"); a.i("s_add_u32 s6, s6, 32768"); a.i(f"v_add_u32 v{vHo[g]}, s6, v3")
    for d, s_ in ((sO1, sK1[0]), (sA2o[0], sA2[0][0]), (sA2o[1], sA2[1][0]), (sB2o, sB2[0])):
        a.i(f"s_add_u32 s{d}, s{s_}, 1024"); a.i(f"s_sub_u32 s{d}, s{d}, s{sTmp}")
    a.i(f"s_sub_u32 s{sO1}, s{sO1}, s46")
    a.i(f"s_mul_i32 s{sRing}, s{sQ}, {RING}"); a.i(f"s_add_u32 s{sRing}, s{sRing}, {XH}")
    a.i("v_lshrrev_b32 v32, 3, v2")
    a.i("v_bfe_u32 v33, v2, 4, 1"); a.i("v_lshlrev_b32 v33, 2, v33")
    a.i("v_and_b32 v34, 7, v2"); a.i("v_xor_b32 v33, v33, v34")
    a.i(f"v_lshl_add_u32 v33, v33, 4, s{sTmp}")
    a.i(f"v_mul_u32_u24 v34, 9216, v32"); a.i("v_add_u32 v34, v34, v33")
    a.i(f"v_add_u32 v{vW1[0][0]}, s46, v34"); a.i(f"v_add_u32 v{vW1[0][1]}, {8*9216-1024}, v{vW1[0][0]}")
    a.i(f"v_xor_b32 v{vW1[1][0]}, 128, v{vW1[0][0]}"); a.i(f"v_add_u32 v{vW1[1][1]}, {8*9216-1024}, v{vW1[1][0]}")
    a.i(f"v_mul_u32_u24 v{vW2[0]}, 1152, v32"); a.i(f"v_add_u32 v{vW2[0]}, v{vW2[0]}, v33")
    a.i(f"v_add_u32 v{vW2[1]}, {8*1152-1024}, v{vW2[0]}")
    srd(a, sWS, 54, WS_BYTES); srd(a, sW1, 48, 5308416); srd(a, sW2, 52, 5308416); srd(a, sB1, 50, 9216)

    steps = []
    def add(ph, vo, sbase, imm, sigma, acc, cinit, tag):
        steps.append(dict(ph=ph, vo=vo, sbase=sbase, imm=imm, sigma=sigma, acc=acc, cinit=cinit, tag=tag))
    for i in range(9): add(1, vW1[0], sO1, i * 16 * 9216, i, R2, None, ('O1', i))
    for p, acc in ((0, R1), (1, R2)):
        for sg in range(36):
            add(1, vW1[p], sK1[sg // 9], (sg % 9) * 16 * 9216, sg, acc, None, ('P%d' % p, sg))
    def s1(n):
        g, i = divmod(n, 5)
        return (sA2[0][g], i * 16 * 1152) if i < 4 else (sB2[g], 0)
    def s2(n):
        g, i = divmod(n, 4); return (sA2[1][g], i * 16 * 1152)
    for p, acc in ((0, R1), (1, R3)):
        for n in range(20):
            sb, im = s1(n); add(2, vW2, sb, im + 128 * p, ('s1', n), acc, 'zero' if n == 0 else None, ('D%ds1' % p, n))
    for n in range(16):
        sb, im = s2(n); add(2, vW2, sb, im, ('s2', n), R1, None, ('D0s2', n))
    for n in range(8):
        sb, im = s2(n); add(2, vW2, sb, im + 128, ('s2', n), R3, None, ('D1s2', n))
    odd2 = [(sA2o[0], i * 16 * 1152, ('s1', i)) for i in range(4)] + [(sB2o, 0, ('s1', 4))] + [(sA2o[1], i * 16 * 1152, ('s2', i)) for i in range(4)]
    for i, (sb, im, sg) in enumerate(odd2): add(2, vW2, sb, im, sg, R1, 'zero' if i == 0 else None, ('O2', i))
    for n in range(8, 16):
        sb, im = s2(n); add(2, vW2, sb, im + 128, ('s2', n), R3, None, ('D1s2', n))
    NS = len(steps); assert NS == 162
    dma_id = {}
    def dma(k):
        st = steps[k]
        srdr = sW1 if st['ph'] == 1 else sW2
        va, vb = st['vo']
        a.i(f"s_add_u32 m0, s{sRing}, {(k % NR) * 2048}")
        a.i(f"s_add_u32 s{sOff}, s{st['sbase']}, {st['imm']}")
        a.vmem(f"buffer_load_dwordx4 v{va}, s[{srdr}:{srdr+3}], s{sOff} offen lds")
        dma_id[k] = a.vmem(f"buffer_load_dwordx4 v{vb}, s[{srdr}:{srdr+3}], s{sOff} offen offset:1024 lds")
    a.i("v_lshrrev_b32 v36, 5, v2"); a.i("v_and_b32 v37, 31, v2"); a.i("v_lshlrev_b32 v37, 1, v37"); a.i("v_lshl_add_u32 v36, v36, 14, v37")
    a.i(f"s_lshl_b32 s5, s{sQ}, 14"); a.i("s_add_u32 s5, s5, 1024"); a.i("s_add_u32 s5, s5, s7"); a.i("v_add_u32 v53, s5, v36")
    a.i(f"s_add_u32 s5, s{sTmp}, s46"); a.i("v_add_u32 v54, s5, v36"); a.i("v_xor_b32 v55, 128, v54"); a.i("v_add_u32 v54, s7, v54"); a.i("v_add_u32 v55, s7, v55")
    ids = {}
    LATE = []
    for k in range(ND0): dma(k)
    for k in range(ND0, NR): LATE.append(lambda k=k: dma(k))
    for n in range(6):
        LATE.append(lambda n=n: ids.__setitem__('b', a.vmem(f"buffer_load_ushort v{228+n}, v{53 + n // 2}, s[{sB1}:{sB1+3}], 0 offen offset:{64 * (n % 2)}")))
    a.i("s_lshl_b32 s5, s4, 6"); a.i("v_add_u32 v52, s5, v2"); a.i("v_mul_u32_u24 v56, 1152, v52")
    a.i("s_mul_i32 s5, s3, 144"); a.i("v_add_u32 v56, s5, v56"); a.i(f"s_lshl_b32 s5, s{sQ}, 4"); a.i("v_add_u32 v57, s5, v56")
    XTL = [lambda: a.vmem("global_load_dwordx4 v[216:219], v57, s[100:101]"), lambda: a.vmem("global_load_dwordx4 v[220:223], v57, s[100:101] offset:64"),
           lambda: ids.__setitem__('xt', a.vmem("global_load_dwordx4 v[224:227], v56, s[100:101] offset:128"))]
    NPF = 2; CH = 81; assert MAP2
    a.i(f"s_and_b32 s5, s4, {15 if MAP2 else 31}"); a.i("s_lshl_b32 s5, s5, 2"); a.i(f"s_add_u32 s5, s5, s{sQ}"); a.i(f"s_mul_i32 s6, s5, {CH}")
    a.i("s_mul_i32 s45, s3, 663552")
    for j in range(NPF):
        a.i(f"v_add_u32 v43, {64*j}, v2"); a.i(f"v_min_u32 v43, {CH-1}, v43"); a.i("v_add_u32 v43, s6, v43")
        a.i("v_mul_u32_u24 v44, 7282, v43"); a.i("v_lshrrev_b32 v44, 16, v44")
        a.i(f"v_mul_u32_u24 v44, {9216 - 18*64}, v44"); a.i("v_lshlrev_b32 v43, 7, v43"); a.i(f"v_add3_u32 v{69+j}, v44, v43, s7"); a.i(f"v_add_u32 v{58+j}, s45, v43")
    a.i("s_getpc_b64 s[46:47]")
    a.raw("ka_pc:")
    a.i("s_lshr_b32 s5, s2, 3"); a.i("s_lshl_b32 s5, s5, 2"); a.i(f"s_add_u32 s5, s5, s{sQ}"); a.i("s_lshl_b32 s5, s5, 12")
    a.i("v_lshl_add_u32 v44, v2, 6, s5"); a.i("v_min_u32 v44, k_code_end-ka_pc, v44")
    a.i("v_mov_b32 v73, s47"); a.i("v_add_co_u32 v72, vcc, s46, v44"); a.i("s_nop 1"); a.i("v_addc_co_u32 v73, vcc, 0, v73, vcc")
    a.vmem("global_load_dword v68, v[72:73], off")
    PF1 = [lambda j=j: ids.__setitem__('pf', a.vmem(f"buffer_load_dword v{64+j}, v{69+j}, s[{sW1}:{sW1+3}], 0 offen")) for j in range(NPF)]
    nb = NR - ND0
    LATE = LATE[:nb] + [lambda k=k, L=LATE: (L[nb + 2*k](), L[nb + 2*k + 1]()) for k in range(3)]
    if PF1AT == 0: LATE = LATE + XTL + PF1
    elif PF1AT == 1: LATE = LATE + PF1 + XTL
    elif PF1AT == 2: LATE = PF1 + LATE + XTL
    else: LATE = LATE[:nb] + PF1 + LATE[nb:]
    if PF1AT < 3: XTL = []
    def pf2():
        for j in range(NPF): ids['pf2'] = a.vmem(f"buffer_load_dword v{61+j}, v{58+j}, s[{sW2}:{sW2+3}], 0 offen")
    PF2T = {0: 'sum', 1: 'ln1', 2: ('P0', 4)}[PF2AT]
    a.i("v_lshrrev_b32 v32, 5, v2")
    a.i("v_bfe_u32 v33, v2, 2, 2")
    a.i("v_bfe_u32 v34, v2, 4, 1"); a.i("v_lshlrev_b32 v34, 5, v34")
    a.i("v_and_b32 v36, 3, v2"); a.i("v_lshl_add_u32 v34, v36, 3, v34")
    a.i("v_lshl_add_u32 v34, v33, 7, v34"); a.i(f"v_add_u32 v34, s{sRing}, v34")
    a.i("v_bfe_u32 v36, v2, 3, 1"); a.i("v_lshlrev_b32 v36, 6, v36")
    a.i("v_xor_b32 v37, 64, v36")
    a.i("v_lshl_add_u32 v40, v32, 10, v34")
    a.i(f"v_add_u32 v{vT[1][0]}, v40, v36"); a.i(f"v_add_u32 v{vT[1][1]}, v40, v37")
    a.i("v_lshl_add_u32 v40, v32, 9, v34")
    a.i(f"v_add_u32 v{vT[2][0]}, v40, v36"); a.i(f"v_add_u32 v{vT[2][1]}, v40, v37")
    a.i(f"s_lshr_b32 s5, s{sQ}, 1"); a.i(f"s_lshl_b32 s6, s{sQ}, 4"); a.i("s_lshl_b32 s7, s5, 2"); a.i("s_add_u32 s6, s6, s7"); a.i("s_lshl_b32 s6, s6, 10")
    a.i(f"s_mov_b32 s{sSw}, s6")
    a.i(f"s_and_b32 s6, s{sQ}, 1"); a.i("s_lshl_b32 s6, s6, 1"); a.i("s_lshl_b32 s7, s5, 3"); a.i("s_add_u32 s6, s6, s7")
    a.i(f"s_lshl_b32 s{sSr}, s6, 10")
    a.i("v_bfe_u32 v33, v2, 1, 4"); a.i("v_and_b32 v36, 1, v2"); a.i("v_lshlrev_b32 v33, 4, v33"); a.i("v_lshl_add_u32 v33, v36, 8, v33"); a.i(f"v_lshl_add_u32 v{vP}, v32, 17, v33")
    a.i(f"s_lshl_b32 s7, s{sQ}, 13"); a.i(f"v_add_u32 v{vHw}, s7, v3")
    a.i(f"s_add_u32 s7, s{sTmp}, s3"); a.i("s_lshl_b32 s7, s7, 14"); a.i("s_lshl_b32 s45, s4, 9"); a.i(f"s_add_u32 s45, s45, {PART_OFF}")
    a.i(f"s_add_u32 s{sP}, s7, s45")
    a.i(f"s_lshl_b32 s7, s{sQ}, 2"); a.i("s_add_u32 s7, s7, 128"); a.i("s_lshl_b32 s7, s7, 3"); a.i("s_add_u32 s7, s7, s3"); a.i("s_lshl_b32 s7, s7, 14")
    a.i(f"s_add_u32 s{sPo}, s7, s45")
    a.i("v_and_b32 v33, 31, v2"); a.i(f"s_mul_i32 s7, s{sQ}, 9216"); a.i("v_lshl_add_u32 v34, v32, 9, s7")
    for c in range(4):
        a.i(f"s_add_u32 s5, s{sQ}, {c}"); a.i("s_and_b32 s5, s5, 3"); a.i("s_lshl_b32 s5, s5, 1")
        a.i("v_add_u32 v36, s5, v32"); a.i("v_xor_b32 v36, v36, v33"); a.i(f"v_lshl_add_u32 v{vX[c]}, v36, 4, v34")
    a.i(f"v_lshlrev_b32 v46, 2, v33"); a.i(f"v_add_u32 v46, {BIAS_OFF}, v46")
    a.i("v_lshrrev_b32 v32, 3, v2"); a.i("v_and_b32 v33, 7, v2")
    a.i(f"s_lshr_b32 s5, s{sQ}, 1"); a.i("s_mul_i32 s5, s5, 36864"); a.i(f"s_and_b32 s6, s{sQ}, 1"); a.i("s_lshl_b32 s6, s6, 8"); a.i("s_add_u32 s5, s5, s6")
    a.i("v_xor_b32 v34, v32, v33"); a.i("v_lshl_add_u32 v34, v34, 4, s5"); a.i("v_lshl_add_u32 v47, v33, 9, v34")
    a.i(f"s_lshl_b32 s5, s{sQ}, 6"); a.i(f"s_add_u32 s5, s5, {BIAS_OFF}"); a.i("v_lshl_add_u32 v48, v32, 2, s5")
    a.i("s_lshl_b32 s5, s4, 9"); a.i(f"s_lshl_b32 s6, s{sQ}, 7"); a.i("s_add_u32 s5, s5, s6"); a.i(f"s_add_u32 s5, s5, {ST_OFF}")
    a.i("v_lshl_add_u32 v49, v32, 3, s5")
    a.i("v_lshlrev_b32 v40, 3, v52"); a.i(f"s_mul_i32 s5, s3, {18*16384}"); a.i(f"s_add_u32 s5, s5, {XT_OFF}"); a.i("v_add_u32 v40, s5, v40")
    a.i(f"s_lshl_b32 s5, s{sQ}, 15"); a.i("v_add_u32 v41, s5, v40")
    for r in (27, 28, 29, 31): a.i(f"v_mov_b32 v{r}, 0")
    for r in range(240, 256):
        if r % 2 or r in (240, 254): a.i(f"v_accvgpr_write_b32 a{r}, 0")
    a.i("s_mov_b32 s5, 0x3f803f80"); a.i("s_mov_b32 s6, 0x00003f80"); a.i("s_mov_b32 s7, 0x3f800000")
    dg.mark("ln0")
    A = 32
    for p in range(2):
        for i in range(9):
            a.wait_vm(xl[(p, i)])
            for r in range(4):
                x = RX + 36*p + 4*i + r; h = r & 1
                c0 = "0" if (i == 0 and r < 2) else f"v{A+4*p+h}"; c1 = "0" if (i == 0 and r < 2) else f"v{A+4*p+2+h}"
                a.i(f"v_dot2_f32_bf16 v{A+4*p+h}, v{x}, s5, {c0}")
                a.i(f"v_dot2_f32_bf16 v{A+4*p+2+h}, v{x}, v{x}, {c1}")
            if LATE: LATE.pop(0)()
    assert not LATE
    dg.mark("sum")
    if PF2T == 'sum': pf2()
    a.nop(2)
    for p in range(2):
        a.i(f"v_add_f32 v{A+4*p}, v{A+4*p}, v{A+4*p+1}"); a.i(f"v_add_f32 v{A+4*p+2}, v{A+4*p+2}, v{A+4*p+3}")
    for dpp in ("quad_perm:[1,0,3,2]", "quad_perm:[2,3,0,1]", "row_half_mirror"):
        a.nop(1)
        for r in (A, A+2, A+4, A+6): a.i(f"v_add_f32_dpp v{r}, v{r}, v{r} {dpp} row_mask:0xf bank_mask:0xf")
    def both(f):
        for p in range(2): a.i(f.format(m=A+4*p, s=A+4*p+1, v=A+4*p+2, t=A+4*p+3, u=50+p))
    both(f"v_mul_f32 v{{m}}, {fl(1.0/576)}, v{{m}}"); both(f"v_mul_f32 v{{v}}, {fl(1.0/576)}, v{{v}}")
    both("v_fma_f32 v{v}, -v{m}, v{m}, v{v}"); both("v_max_f32 v{v}, 0, v{v}")
    both("v_cvt_pk_bf16_f32 v{t}, v{m}, v{v}"); both("v_lshlrev_b32 v{m}, 16, v{t}"); both("v_and_b32 v{v}, 0xffff0000, v{t}")
    both(f"v_add_f32 v{{v}}, {fl(1e-5)}, v{{v}}"); both("v_cvt_pk_bf16_f32 v{v}, v{v}, v{v}"); both("v_lshlrev_b32 v{v}, 16, v{v}")
    both("v_sqrt_f32 v{s}, v{v}"); both("v_xor_b32 v{u}, 0x80000000, v{m}")
    both("v_rcp_f32 v{t}, v{s}"); both("v_fma_f32 v{v}, -v{s}, v{s}, v{v}"); both("v_mul_f32 v{t}, 0.5, v{t}"); both("v_fmac_f32 v{s}, v{v}, v{t}")
    both("v_cvt_pk_bf16_f32 v{s}, v{s}, v{s}"); both("v_lshlrev_b32 v{s}, 16, v{s}")
    for p in range(2): a.dsop(f"ds_write_b32 v48, v{A+4*p+1} offset:{32*p}")
    for p in range(2):
        for i in range(9):
            t = 200 + 8 * (i & 1)
            for r in range(4):
                x = RX + 36*p + 4*i + r
                a.i(f"v_dot2_f32_bf16 v{t+2*r}, v{x}, s6, v{50+p}"); a.i(f"v_dot2_f32_bf16 v{t+2*r+1}, v{x}, s7, v{50+p}")
            if XTL and i % 3 == 2: XTL.pop(0)()
            else: a.nop(1)
            for r in range(4):
                x = RX + 36*p + 4*i + r
                a.i(f"v_cvt_pk_bf16_f32 v{x}, v{t+2*r}, v{t+2*r+1}")
            a.dsop(f"ds_write_b128 v47, v[{RX+36*p+4*i}:{RX+36*p+4*i+3}] offset:{128*p + 4096*i}")
    a.wait_vm(ids['b'])
    for n in range(6): a.i(f"v_lshlrev_b32 v{228+n}, 16, v{228+n}")
    for n in range(6): a.i(f"v_accvgpr_write_b32 a{242+2*n}, v{228+n}")
    if PF2T == 'ln1': pf2()
    a.wait_ds(a.ds); a.i("s_barrier")
    dg.mark("ln1")
    for tt in range(2): sid = a.dsop(f"ds_read_b32 v{vSt[tt]}, v46 offset:{128*tt}")

    Q = []
    bready = {}
    def push(cost, fn, deps=(), key=None, fence=False):
        it = Item(cost, fn, list(deps), key, fence); Q.append(it); return it
    def emit(it):
        for d, dist in it.deps:
            assert d.at is not None
            gap = a.n - d.at
            if gap < min(dist, 2): a.nop(min(dist, 2) - gap)
        Q.remove(it); it.fn(); it.at = a.n
    def ready(it): return all(d.at is not None and a.n - d.at >= dist for d, dist in it.deps)
    def fill(budget):
        while budget > 0 and Q:
            pick = None
            for idx, it in enumerate(Q[:64]):
                if it.fence:
                    if idx == 0 and it.cost <= budget: pick = it
                    break
                if it.cost <= budget and ready(it): pick = it; break
            if pick is None: return
            n0 = a.n; emit(pick); budget -= max(pick.cost, a.n - n0)
    def flush_until(key):
        if not any(it.key == key for it in Q): return
        while True:
            it = Q[0]
            for idx, c in enumerate(Q[:64]):
                if c.fence or c.key == key: break
                if ready(c): it = c; break
            emit(it)
            if it.key == key: break
    def push_bload(ph, sigma, tt, addr, imm, vmw=None):
        def fn():
            if vmw: a.wait_vm(vmw)
            bready[(ph, sigma, tt)] = a.dsop(f"ds_read_b128 {breg(ph, sigma, tt)}, v{addr} offset:{imm}")
        return push(1, fn, key=('B', ph, sigma, tt), fence=bool(vmw))
    def push_barrier(key=None, vmw=None):
        def fn():
            if vmw: a.wait_vm(vmw)
            a.wait_ds(a.ds); a.i("s_barrier")
        push(2, fn, key=key, fence=True)
    def push_fence(key=None): push(0, lambda: None, key=key, fence=True)
    gq = [0]; gp = [0]
    last_t = {}; last_pk = {}
    def push_gelu8(x, waddr, wimm, tt):
        ps = gp[0] % 4; pk = PK + 4 * ps; gp[0] += 1
        cv = []
        for hq in range(2):
            ts = gq[0] % 4; gq[0] += 1
            xs = x[4*hq:4*hq+4]; t = [GT + 4 * ts + e for e in range(4)]
            fin = []
            for e in range(4):
                d0 = [(z, 0) for z in last_t.get(ts, [])]
                def f1(e=e, xs=xs, t=t):
                    a.need_mfma([xs[e]]); a.i(f"v_mul_f32 v{t[e]}, v{xs[e]}, v{xs[e]}")
                i1 = push(1, f1, d0)
                i2 = push(1, lambda e=e, t=t: a.i(f"v_fma_f32 v{t[e]}, v{t[e]}, v{vC1p[tt]}, v{vC0p[tt]}"), [(i1, DP)])
                i3 = push(1, lambda e=e, t=t, xs=xs: a.i(f"v_mul_f32 v{t[e]}, v{xs[e]}, v{t[e]}"), [(i2, DP)])
                i4 = push(2, lambda e=e, t=t: a.i(f"v_exp_f32 v{t[e]}, v{t[e]}"), [(i3, DP)])
                i5 = push(1, lambda e=e, t=t: a.i(f"v_fma_f32 v{t[e]}, v{t[e]}, v{vSt[tt]}, v{vSt[tt]}"), [(i4, DT)])
                i6 = push(2, lambda e=e, t=t: a.i(f"v_rcp_f32 v{t[e]}, v{t[e]}"), [(i5, DP)])
                i7 = push(1, lambda e=e, t=t, xs=xs: a.i(f"v_mul_f32 v{t[e]}, v{xs[e]}, v{t[e]}"), [(i6, DT)])
                fin.append(i7)
            c = []
            for e in range(2):
                dd = [(fin[2*e], DP), (fin[2*e+1], DP)] + [(z, 2) for z in last_pk.get(ps, [])]
                c.append(push(1, lambda e=e, t=t, hq=hq: a.i(f"v_cvt_pk_bf16_f32 v{pk+2*hq+e}, v{t[2*e]}, v{t[2*e+1]}"), dd))
            last_t[ts] = c; cv += c
        w = push(1, lambda: a.dsop(f"ds_write_b128 v{waddr}, v[{pk}:{pk+3}] offset:{wimm}"), [(z, 0) for z in cv])
        last_pk[ps] = [w]
    def unit(acc, t, tt): return acc + 16 * (2 * t + tt)
    def push_gelu_pair(acc, p):
        for t in range(2):
            for tt in range(2):
                for kp in range(2):
                    b = unit(acc, t, tt) + 8 * kp
                    push_gelu8(list(range(b, b + 8)), vHw, tt * 36864 + (4 * p + 2 * t + kp) * 1024, tt)
    SB = (0, 16, 36, 52)
    def push_odd_reduce(acc, first):
        first = False
        push(1, lambda: a.i(f"v_add_u32 v{vS}, s{sSw}, v3"), fence=True)
        push_fence()
        for n in range(16):
            def f(n=n):
                a.need_mfma(list(range(acc + 4*n, acc + 4*n + 4)))
                a.dsop(f"ds_write_b128 v{vS}, v[{acc+4*n}:{acc+4*n+3}] offset:{n*1024}")
            push(1, f)
        push_barrier()
        push(1, lambda: a.i(f"v_add_u32 v{vS}, s{sSr}, v3"), fence=True)
        push_fence()
        rid = {}
        for src in range(4):
            for tt in range(2):
                for jj in range(2):
                    b = acc + 16 * src + 8 * tt + 4 * jj
                    def f(b=b, src=src, tt=tt, jj=jj):
                        rid[(src, tt, jj)] = a.dsop(f"ds_read_b128 v[{b}:{b+3}], v{vS} offset:{(SB[src] + 4*tt + jj)*1024}")
                    push(1, f)
        if first:
            for jj in range(2):
                def f(jj=jj): rid[('b', jj)] = a.dsop(f"ds_read_b128 v[{GT+4*jj}:{GT+3+4*jj}], v{vBo} offset:{512 + jj*32}")
                push(1, f)
        push_fence()
        for src in range(1, 4):
            for tt in range(2):
                for jj in range(2):
                    for e in range(4):
                        def f(src=src, tt=tt, jj=jj, e=e):
                            a.wait_ds(rid[(src, tt, jj)])
                            d = acc + 8*tt + 4*jj + e
                            a.i(f"v_add_f32 v{d}, v{d}, v{d + 16*src}")
                        push(1, f)
        if first:
            for tt in range(2):
                for jj in range(2):
                    for e in range(4):
                        def f(tt=tt, jj=jj, e=e):
                            a.wait_ds(rid[('b', jj)])
                            d = acc + 8*tt + 4*jj + e
                            a.i(f"v_add_f32 v{d}, v{d}, v{GT+4*jj+e}")
                        push(1, f)
        push_fence()
    def push_store(x0, x1, sreg, imm):
        ps = gp[0] % 4; pk = PK + 4 * ps; gp[0] += 1
        c = []
        for k, xb in enumerate((x0, x0 + 2, x1, x1 + 2)):
            def f(k=k, xb=xb):
                a.need_mfma([xb, xb + 1]); a.i(f"v_cvt_pk_f16_f32 v{pk+k}, v{xb}, v{xb+1}")
            c.append(push(1, f, [(z, 2) for z in last_pk.get(ps, [])]))
        def f():
            a.i(f"s_add_u32 s{sTmp}, s{sreg}, {imm}")
            a.vmem(f"buffer_store_dwordx4 v[{pk}:{pk+3}], v{vP}, s[{sWS}:{sWS+3}], s{sTmp} offen sc1")
        last_pk[ps] = [push(2, f, [(z, 0) for z in c])]
    def push_epi(acc, p):
        for t in range(2):
            for j in range(4):
                push_store(unit(acc, t, 0) + 4*j, unit(acc, t, 1) + 4*j, sP, (16*p + 8*t + 2*j) * 131072)

    def push_x(sg):
        g, i = divmod(sg, 9)
        if i == 0 and g > 0:
            for c in range(4): push(1, lambda c=c, g=g: a.i(f"v_add_u32 v{vX[c]}, s{sDl[g-1]}, v{vX[c]}"))
        for tt in range(2): push_bload(1, sg, tt, vX[(g + i) & 3], tt * 36864 + i * 1024)
    for sg in range(3): push_x(sg)
    def fst():
        a.wait_ds(sid)
        for tt in range(2): a.i(f"v_rcp_f32 v{vC0p[tt]}, v{vSt[tt]}")
        a.i(f"s_lshl_b32 s5, s{sQ}, 1"); a.i("s_sub_u32 s5, s5, s3")
        for tt in range(2): a.i(f"v_mul_f32 v{vC1p[tt]}, v{vC0p[tt]}, v{vC0p[tt]}")
        for tt in range(2): a.i(f"v_mul_f32 v{vC1p[tt]}, v{vC1p[tt]}, v{vC0p[tt]}")
        for tt in range(2): a.i(f"v_mul_f32 v{vC1p[tt]}, {fl(C1)}, v{vC1p[tt]}")
        for tt in range(2): a.i(f"v_mul_f32 v{vC0p[tt]}, {fl(C0)}, v{vC0p[tt]}")
    push(10, fst, fence=True, key=('st',))
    def exports():
        for p in range(2):
            def f(p=p):
                a.i(f"s_add_u32 s6, s5, {p}"); a.i("s_cmp_eq_u32 s6, 0"); a.i(f"s_cselect_b32 s6, {64*p}, {WS_BYTES}")
                a.i(f"v_add_u32 v{50+p}, s6, v49")
                a.vmem(f"buffer_store_dwordx2 v[{A+4*p}:{A+4*p+1}], v{50+p}, s[{sWS}:{sWS+3}], 0 offen")
            push(5, f)
        for k, (va, cgo) in enumerate(((41, 0), (41, 8), (40, 16))):
            for h in range(2):
                def f(k=k, h=h, va=va, cgo=cgo):
                    a.wait_vm(ids['xt']); a.i(f"s_mov_b32 s6, {(cgo + h) * 16384}")
                    a.vmem(f"buffer_store_dwordx2 v[{216+4*k+2*h}:{217+4*k+2*h}], v{va}, s[{sWS}:{sWS+3}], s6 offen")
                push(2, f)
    def bias_mfma(acc, n0):
        for t in range(2):
            for tt in range(2):
                d = unit(acc, t, tt); ab = 242 + 2 * (n0 + t) - 2 * tt; bb = 26 + 2 * tt
                a.i(f"v_mfma_f32_32x32x16_bf16 v[{d}:{d+15}], a[{ab}:{ab+3}], v[{bb}:{bb+3}], 0")
                a.mfma_wrote(d, 16); fill(SLOTS - 1)
    def areg(k, t): return 224 + 8 * (k % 2) + 4 * t
    tr_id = {}
    def tr(k, t):
        st = steps[k]; b = areg(k, t); jo = 512 if st['ph'] == 1 else 1024
        a.wait_vm(dma_id[k])
        a.dsop(f"ds_read_b64_tr_b16 a[{b}:{b+1}], v{vT[st['ph']][t]} offset:{(k % NR)*2048}")
        tr_id[(k, t)] = a.dsop(f"ds_read_b64_tr_b16 a[{b+2}:{b+3}], v{vT[st['ph']][t]} offset:{(k % NR)*2048 + jo}")
    tr(0, 0); tr(0, 1)
    flush_until(('st',))
    for sg in range(3, 27): push_x(sg)
    exports()
    for sg in range(27, 36): push_x(sg)
    def event(tag):
        if tag == ('O1', 0): bias_mfma(R2, 0)
        if tag == ('P0', 0): a.wait_vm(ids['pf']); bias_mfma(R1, 2)
        if tag == PF2T: pf2()
        if tag == ('P0', 1):
            push_barrier()
            push_odd_reduce(R2, True)
            for tt in range(2):
                push_gelu8(list(range(R2 + 8*tt, R2 + 8*tt + 8)), vHo[0], tt * 36864, tt)
            push_barrier(('B4',))
        if tag == ('P1', 0):
            flush_until(('B4',)); a.wait_vm(ids['pf2'])
            push_gelu_pair(R1, 0)
            bias_mfma(R2, 4)
            for g in range(4):
                i1 = push(1, lambda g=g: a.i(f"v_sub_u32 v{vX[g]}, v{vHo[g]}, v3"))
                i2 = push(1, lambda g=g: a.i(f"v_add_u32 v{vX[g]}, {(-32768) & 0xffffffff}, v{vX[g]}"), [(i1, 0)])
                push(1, lambda g=g: a.i(f"v_lshl_add_u32 v{vX[g]}, v{vX[g]}, 3, v3"), [(i2, 0)])
            push_barrier(('B5',))
        if tag == ('D0s1', 0):
            flush_until(('B5',))
            for n in range(20):
                g, i = divmod(n, 5)
                for tt in range(2):
                    if i < 4: push_bload(2, ('s1', n), tt, vX[g], tt * 36864 + i * 1024)
                    else: push_bload(2, ('s1', n), tt, vHo[g], tt * 36864)
            flush_until(('B', 2, ('s1', 1), 1))
            push_gelu_pair(R2, 1)
            push_barrier(('B6',))
            for n in range(16):
                g, i = divmod(n, 4)
                for tt in range(2): push_bload(2, ('s2', n), tt, vX[g], tt * 36864 + (4 + i) * 1024)
            push_barrier(('B7',))
        if tag == ('D1s2', 0):
            push_epi(R1, 0)
            push_fence(('epi0',))
        if tag == ('O2', 0):
            flush_until(('epi0',))
        if tag == ('D1s2', 8):
            push_odd_reduce(R1, False)
            for jj in range(2):
                push_store(R1 + 4*jj, R1 + 8 + 4*jj, sPo, jj * 2 * 131072)
    for k, st in enumerate(steps):
        if st['tag'] in (('P0',0),('P1',0),('D0s1',0),('D1s1',0),('D0s2',0),('D1s2',0),('O2',0),('D1s2',8)): dg.mark(str(st['tag']))
        event(st['tag'])
        ph, sg, acc = st['ph'], st['sigma'], st['acc']
        for m in range(4):
            t, tt = divmod(m, 2)
            if (ph, sg, tt) not in bready: flush_until(('B', ph, sg, tt))
            a.wait_ds(max(bready[(ph, sg, tt)], tr_id[(k, t)]))
            d = unit(acc, t, tt)
            if st['cinit'] == 'zero': c = "0"
            elif st['cinit'] == 'bias':
                flush_until(('bias', acc, t, 3)); a.wait_ds(bready[('bias', acc, t)])
                cb = unit(acc, t, 1); c = f"v[{cb}:{cb+15}]"
            else: c = f"v[{d}:{d+15}]"
            ab = areg(k, t)
            n0 = a.n
            a.i(f"v_mfma_f32_32x32x16_bf16 v[{d}:{d+15}], a[{ab}:{ab+3}], {breg(ph, sg, tt)}, {c}")
            a.mfma_wrote(d, 16)
            if m == 0 and k + 1 < NS: tr(k + 1, 0)
            if m == 1 and k + 1 < NS: tr(k + 1, 1)
            if m == 2 and k + NR < NS: dma(k + NR)
            used = a.n - n0 - 1
            fill(SLOTS - used - (1 if m in (1, 3) else 0))
    push_epi(R3, 1)
    push_fence(('fin',)); flush_until(('fin',))
    dg.dump(54, sQ, 4, 28)
    a.raw("ka_end:")
    a.i("s_endpgm")
    return a.text(), kd(name, 512, 256)
```

```python
from common import *
import math
CS = 4416; KCH = 4 * CS; RS = 144; U1 = 48 * RS + 128; UCH = 13968
U_OFF = 4 * KCH
SC_OFF = U_OFF + 4 * UCH
K3_LDS = SC_OFF + 32768
YS = 4096 + 64
CHB = 27984; BT = 11088; TS = 1808
T_OFF = SC_OFF + 16384
SCL_OFF = T_OFF + 4 * TS
ST_OFF = XU_OFF
L2E = math.log2(math.e)
L2E_hi = struct.unpack("<f", struct.pack("<f", L2E))[0]
L2E_lo = L2E - L2E_hi
sWS, sOUT = 8, 12
PB = 192
P_EARLY, P_A, P_B, P_C, P_D, F_S, F_N = [int(x) for x in os.environ.get('PSCH', '0,2,4,4,1,12,4').split(',')]
def gen():
    a = Asm(); name = "kb_kernel"
    header(a, name)
    a.i("s_cmp_ge_u32 s2, 144"); a.i("s_cbranch_scc1 kb_end")
    dg = Diag(a, 2); dg.start(); dg.mark("start")
    a.i("s_load_dwordx16 s[32:47], s[0:1], 0")
    a.i("s_load_dwordx2 s[48:49], s[0:1], 128")
    a.i("s_load_dwordx4 s[52:55], s[0:1], 104")
    a.i("s_load_dwordx2 s[50:51], s[0:1], 64")
    a.i("v_lshrrev_b32 v1, 6, v0"); a.i("v_and_b32 v2, 63, v0")
    a.i("v_readfirstlane_b32 s20, v1")
    a.i("s_and_b32 s3, s2, 7"); a.i("s_lshr_b32 s4, s2, 3")
    a.i("s_lshl_b32 s5, s3, 4"); a.i("s_add_u32 s5, s5, s4")
    a.i("s_lshl_b32 s6, s3, 1"); a.i("s_add_u32 s6, s6, s4"); a.i("s_add_u32 s6, s6, 112")
    a.i("s_cmp_lt_u32 s4, 16"); a.i("s_cselect_b32 s21, s5, s6")
    a.i("s_lshr_b32 s22, s20, 1"); a.i("s_and_b32 s23, s20, 1")
    a.i("s_lshl_b32 s24, s21, 2"); a.i("s_add_u32 s24, s24, s22")
    a.i("s_lshl_b32 s5, s24, 8"); a.i("v_lshl_add_u32 v3, v2, 2, s5")
    a.i("s_lshl_b32 s5, s24, 1"); a.i("v_mov_b32 v4, s5")
    a.i("v_lshrrev_b32 v156, 4, v0"); a.i("v_and_b32 v157, 15, v0")
    a.i("v_lshlrev_b32 v158, 6, v156"); a.i("v_lshl_add_u32 v158, v157, 1, v158")
    a.i("s_lshl_b32 s6, s21, 14"); a.i("v_lshl_add_u32 v190, v158, 3, s6")
    a.i(f"v_lshlrev_b32 v189, 3, v158"); a.i(f"v_add_u32 v189, {ST_OFF}, v189")
    a.i("v_lshlrev_b32 v188, 9, v156"); a.i("v_lshl_add_u32 v188, v157, 4, v188")
    a.i(f"s_mul_i32 s25, s22, {CHB}")
    a.i(f"s_mul_i32 s26, s22, {TS}"); a.i(f"s_add_u32 s26, s26, {T_OFF}")
    a.i("s_waitcnt lgkmcnt(0)")
    for k, sb in enumerate((34, 36, 38, 40, 42, 44)):
        a.vmem(f"global_load_dword v{10+k}, v3, s[{sb}:{sb+1}]")
    pm = a.vmem("global_load_ushort v16, v4, s[46:47]")
    srd(a, sWS, 48, WS_BYTES); srd(a, sOUT, 54, 2359296)
    a.i("s_lshl_b32 s5, s21, 3")
    a.i("s_add_u32 s56, s50, s5"); a.i("s_addc_u32 s57, s51, 0")
    a.i("s_load_dwordx2 s[16:17], s[56:57], 0")
    a.i("s_add_u32 s56, s52, s5"); a.i("s_addc_u32 s57, s53, 0")
    a.i("s_load_dwordx2 s[18:19], s[56:57], 0")
    a.i("s_lshl_b32 s27, s21, 17"); a.i(f"s_add_u32 s27, s27, {PART_OFF}")
    pn = [0]; pid = {}
    def part(cnt):
        for _ in range(cnt):
            n = pn[0]
            if n >= 16: return
            pn[0] += 1
            s_, u = divmod(n, 2)
            if u == 0 and s_ > 0: a.i(f"s_add_u32 s27, s27, 16384")
            pid[n] = a.vmem(f"buffer_load_dwordx4 v[{PB+8*s_+4*u}:{PB+3+8*s_+4*u}], v188, s[{sWS}:{sWS+3}], s27 offen offset:{256*u}")
    part(P_EARLY)
    a.raw('; SCOUT')
    a.i("s_lshl_b32 s5, s23, 10"); a.i("s_sub_u32 s5, 2047, s5")
    a.i("v_lshlrev_b32 v5, 4, v2"); a.i("v_sub_u32 v5, s5, v5")
    for e in range(0, 20, 2):
        a.i(f"v_subrev_u32 v6, {e}, v5"); a.i(f"v_subrev_u32 v7, {e+1}, v5")
        a.i("v_cvt_f32_u32 v8, v6"); a.i("v_cvt_f32_u32 v9, v7")
        a.i("v_cvt_pk_bf16_f32 v8, v8, v9")
        a.i("v_min_u32 v6, 256, v6"); a.i("v_min_u32 v7, 256, v7")
        a.i("v_lshrrev_b32 v9, 16, v8"); a.i("v_and_b32 v8, 0xffff, v8")
        a.i(f"v_add_u32 v8, {(-0x4280) & 0xffffffff}, v8"); a.i(f"v_add_u32 v9, {(-0x4280) & 0xffffffff}, v9")
        a.i("v_max_i32 v6, v6, v8"); a.i("v_max_i32 v7, v7, v9")
        if e >= 16: a.i("v_min_u32 v6, 896, v6"); a.i("v_min_u32 v7, 896, v7")
        a.i(f"v_lshl_add_u32 v{64+e}, v6, 1, s26"); a.i(f"v_lshl_add_u32 v{65+e}, v7, 1, s26")
    a.i("v_mov_b32 v8, 0"); a.i("v_mov_b32 v9, s26")
    a.dsop("ds_write_b32 v9, v8 offset:1792")
    a.i("v_and_b32 v6, 15, v2")
    a.i("s_lshl_b32 s5, s23, 4")
    a.i("v_add_u32 v6, s5, v6")
    a.i("v_lshrrev_b32 v7, 4, v2")
    a.i("v_max_u32 v8, 1, v7")
    a.i("v_sub_u32 v8, 4, v8")
    a.i("v_lshlrev_b32 v8, v8, v6")
    a.i("v_lshlrev_b32 v9, 2, v7")
    a.i("v_lshlrev_b32 v17, 7, v7")
    a.i("v_cmp_gt_u32 vcc, 2, v7")
    a.i("s_nop 1")
    a.i("v_cndmask_b32 v9, v17, v9, vcc")
    a.i("v_add_u32 v8, v8, v9")
    a.i("v_lshl_add_u32 v150, v8, 1, s26")
    a.i("v_cmp_eq_u32 vcc, 3, v7")
    a.i("v_mov_b32 v9, 4")
    a.i("v_mov_b32 v17, 128")
    a.i("v_cndmask_b32 v9, v9, v17, vcc")
    a.i("v_add_u32 v151, v150, v9")
    a.i("v_min_u32 v9, 2, v7")
    a.i("v_lshlrev_b32 v9, 7, v9")
    a.i("v_add3_u32 v9, v9, v6, 0")
    a.i("v_add_u32 v9, 512, v9")
    a.i("v_lshl_add_u32 v152, v9, 1, s26")
    a.i("v_and_b32 v8, 15, v2")
    a.i("v_mul_u32_u24 v8, 528, v8")
    a.i("v_lshl_add_u32 v8, v7, 4, v8")
    a.i("v_add_u32 v153, s25, v8")
    a.i(f"s_mul_i32 s5, s23, {16*528}")
    a.i(f"s_add_u32 s5, s5, {BT}")
    a.i("v_add_u32 v154, s5, v153")
    a.i("v_lshl_add_u32 v155, v2, 3, s25")
    a.vmem("global_load_dwordx4 v[172:175], v190, s[48:49]"); a.vmem("global_load_dwordx4 v[176:179], v190, s[48:49] offset:256")
    a.vmem("global_load_dwordx4 v[180:183], v189, s[48:49]"); xs = a.vmem("global_load_dwordx4 v[184:187], v189, s[48:49] offset:256")
    dg.mark("pre")
    a.wait_vm(pm)
    dg.mark("loaded")
    part(P_A)
    a.i("v_lshlrev_b32 v16, 16, v16")
    a.i(f"v_mul_f32 v17, {fl(L2E_hi)}, v16")
    a.i(f"v_mov_b32 v18, {fl(L2E_hi)}")
    a.i("v_fma_f32 v18, v16, v18, -v17")
    a.i(f"v_fmac_f32 v18, {fl(L2E_lo)}, v16")
    a.i("v_exp_f32 v17, v17")
    a.i(f"v_mul_f32 v18, {fl(math.log(2.0))}, v18")
    a.i("v_fmac_f32 v17, v17, v18")
    a.i("v_cvt_pk_bf16_f32 v17, v17, v17")
    a.i("v_lshlrev_b32 v16, 16, v17")
    a.i("v_lshlrev_b32 v20, 16, v10"); a.i("v_and_b32 v21, 0xffff0000, v10")
    a.i("v_lshlrev_b32 v22, 16, v11"); a.i("v_and_b32 v23, 0xffff0000, v11")
    for r in (20, 21, 22, 23): a.i(f"v_mul_f32 v{r}, v16, v{r}")
    for r in (20, 21): a.i(f"v_mul_f32 v{r}, {fl(L2E)}, v{r}")
    for r in (22, 23): a.i(f"v_mul_f32 v{r}, 0.15915494, v{r}")
    def direct(dst, vv):
        for m in range(2):
            a.i(f"v_mul_f32 v{24+m}, {fl(float(vv))}, v{20+m}")
            a.i(f"v_mul_f32 v{26+m}, {fl(float(vv))}, v{22+m}")
        for m in range(2):
            a.i(f"v_exp_f32 v{24+m}, v{24+m}")
            a.i(f"v_fract_f32 v{26+m}, v{26+m}")
        for m in range(2):
            a.i(f"v_cos_f32 v{28+m}, v{26+m}")
            a.i(f"v_sin_f32 v{30+m}, v{26+m}")
        a.i("s_nop 0")
        for m in range(2):
            a.i(f"v_mul_f32 v{dst+2*m}, v{24+m}, v{28+m}")
            a.i(f"v_mul_f32 v{dst+2*m+1}, v{24+m}, v{30+m}")
    def put(z, off, t):
        a.i(f"v_cvt_pk_f16_f32 v{t}, v{z}, v{z+1}")
        a.i(f"v_cvt_pk_f16_f32 v{t+1}, v{z+2}, v{z+3}")
        a.dsop(f"ds_write_b64 v155, v[{t}:{t+1}] offset:{off}")
    def cm2(d, z, w, t):
        for m in range(2): a.i(f"v_pk_mul_f32 v[{t+2*m}:{t+2*m+1}], v[{z+2*m}:{z+2*m+1}], v[{w+2*m}:{w+2*m+1}] op_sel:[0,0] op_sel_hi:[0,1]")
        for m in range(2): a.i(f"v_pk_fma_f32 v[{d+2*m}:{d+2*m+1}], v[{z+2*m}:{z+2*m+1}], v[{w+2*m}:{w+2*m+1}], v[{t+2*m}:{t+2*m+1}] op_sel:[1,1,0] op_sel_hi:[1,0,1] neg_lo:[1,0,0]")
    a.i("s_cmp_eq_u32 s23, 1")
    a.i("s_cbranch_scc1 kb_hi")
    direct(32, 8)
    direct(40, 128)
    a.i("v_mov_b32 v36, 1.0"); a.i("v_mov_b32 v37, 0"); a.i("v_mov_b32 v38, 1.0"); a.i("v_mov_b32 v39, 0")
    for r in range(16):
        put(36, BT + r * 528, 52 + 4 * (r & 1))
        put(40, BT + (16 + r) * 528, 54 + 4 * (r & 1))
        if r < 15:
            cm2(36, 36, 32, 44)
            cm2(40, 40, 32, 48)
    a.i("s_branch kb_join")
    a.raw("kb_hi:")
    a.i("v_xor_b32 v22, 0x80000000, v22"); a.i("v_xor_b32 v23, 0x80000000, v23")
    for k, src in enumerate((12, 13, 14, 15)):
        a.i(f"v_lshlrev_b32 v{40+2*k}, 16, v{src}"); a.i(f"v_and_b32 v{41+2*k}, 0xffff0000, v{src}")
    for r in (40, 41, 42, 43): a.i(f"v_mul_f32 v{r}, v16, v{r}")
    for m in range(2):
        a.i(f"v_mul_f32 v{36+2*m}, v{44+m}, v{40+m}")
        a.i(f"v_fma_f32 v{36+2*m}, -v{46+m}, v{42+m}, v{36+2*m}")
        a.i(f"v_mul_f32 v{37+2*m}, v{44+m}, v{42+m}")
        a.i(f"v_fma_f32 v{37+2*m}, -v{46+m}, v{40+m}, -v{37+2*m}")
    a.i("v_max3_f32 v48, abs(v36), abs(v37), abs(v38)")
    a.i("v_max_f32 v49, abs(v39), abs(v39)")
    a.i("v_max_f32 v48, v48, v49")
    for rr in (8, 4, 2, 1):
        a.i("s_nop 1")
        a.i(f"v_max_f32_dpp v48, v48, v48 row_ror:{rr} row_mask:0xf bank_mask:0xf")
    a.i("s_nop 1")
    for k, ln in enumerate((0, 16, 32, 48)): a.i(f"v_readlane_b32 s{56+k}, v48, {ln}")
    a.i("s_nop 3")
    a.i("s_max_u32 s56, s56, s57"); a.i("s_max_u32 s58, s58, s59"); a.i("s_max_u32 s56, s56, s58")
    a.i("s_lshr_b32 s56, s56, 23")
    a.i("s_max_u32 s56, s56, 1"); a.i("s_min_u32 s56, s56, 253")
    a.i("s_sub_u32 s57, 254, s56"); a.i("s_lshl_b32 s57, s57, 23")
    a.i("s_lshl_b32 s56, s56, 23")
    for r in (36, 37, 38, 39): a.i(f"v_mul_f32 v{r}, s57, v{r}")
    direct(32, 1)
    direct(40, 256)
    cm2(56, 36, 40, 44)
    cm2(60, 32, 32, 48)
    put(36, 0, 52)
    cm2(86, 60, 60, 48)
    put(56, 8 * 528, 54)
    cm2(94, 56, 60, 44)
    cm2(36, 36, 32, 48); put(94, 9 * 528, 90); put(36, 1 * 528, 52)
    cm2(94, 94, 60, 44); cm2(36, 36, 32, 48); put(94, 10 * 528, 90); put(36, 2 * 528, 52)
    cm2(94, 94, 60, 44); cm2(36, 36, 32, 48); put(94, 11 * 528, 90); put(36, 3 * 528, 52)
    cm2(56, 56, 40, 44); cm2(36, 36, 32, 48); put(56, 12 * 528, 90); put(36, 4 * 528, 52)
    cm2(94, 56, 86, 44); cm2(36, 36, 32, 48); put(94, 13 * 528, 90); put(36, 5 * 528, 52)
    cm2(56, 56, 40, 44); cm2(36, 36, 32, 48); put(56, 14 * 528, 90); put(36, 6 * 528, 52)
    cm2(94, 56, 86, 44); cm2(36, 36, 32, 48); put(94, 15 * 528, 90); put(36, 7 * 528, 52)
    for row in range(16, 21):
        cm2(56, 56, 40, 44); put(56, row * 528, 52 + 2 * (row & 1))
    a.i("v_mov_b32 v48, s56"); a.i(f"s_lshl_b32 s5, s22, 2"); a.i("v_mov_b32 v49, s5")
    a.i(f"ds_write_b32 v49, v48 offset:{0}") if False else None
    a.i(f"v_add_u32 v49, {SCL_OFF}, v49"); a.i("ds_write_b32 v49, v48")
    a.raw("kb_join:")
    a.i("s_waitcnt lgkmcnt(0)"); a.ds_done = a.ds
    a.i("s_barrier")
    dg.mark("tables")
    part(P_B)
    def fr(k):
        b = 96 + 12 * (k % 4)
        a.dsop(f"ds_read_b128 v[{b}:{b+3}], v153 offset:{k*64}")
        a.dsop(f"ds_read_b128 v[{b+4}:{b+7}], v153 offset:{k*64 + 16*528}")
        return a.dsop(f"ds_read_b128 v[{b+8}:{b+11}], v154 offset:{k*64}")
    ids = {k: fr(k) for k in range(4)}
    a.i("s_lshl_b32 s5, s22, 2"); a.i(f"s_add_u32 s5, s5, {SCL_OFF}"); a.i("v_mov_b32 v15, s5")
    a.dsop("ds_read_b32 v15, v15")
    for k in range(8):
        b = 96 + 12 * (k % 4)
        a.wait_ds(ids[k])
        c0 = "0" if k == 0 else "v[40:43]"; c1 = "0" if k == 0 else "v[44:47]"
        a.i(f"v_mfma_f32_16x16x32_f16 v[40:43], v[{b}:{b+3}], v[{b+8}:{b+11}], {c0}")
        a.i(f"v_mfma_f32_16x16x32_f16 v[44:47], v[{b+4}:{b+7}], v[{b+8}:{b+11}], {c1}")
        if k + 4 < 8: a.nop(4); ids[k + 4] = fr(k + 4)
    a.wait_vm(xs)
    for k in range(4): a.i(f"v_rcp_f32 v{52+2*k}, v{181+2*k}")
    for k in range(4): a.i(f"v_mov_b32 v{16+4*k}, v{172+2*k}"); a.i(f"v_mov_b32 v{17+4*k}, v{173+2*k}")
    a.i("v_cvt_pk_f16_f32 v48, v40, v41"); a.i("v_cvt_pk_f16_f32 v49, v42, v43")
    a.i("v_cvt_pk_f16_f32 v50, v44, v45"); a.i("v_cvt_pk_f16_f32 v51, v46, v47")
    a.dsop("ds_write_b32 v150, v48"); a.dsop("ds_write_b32 v151, v49")
    a.dsop("ds_write_b16 v152, v50"); a.dsop("ds_write_b16_d16_hi v152, v50 offset:64")
    a.dsop("ds_write_b16 v152, v51 offset:128"); a.dsop("ds_write_b16_d16_hi v152, v51 offset:192")
    def unp(d, s):
        a.i(f"v_lshlrev_b32 v{d}, 16, v{s}"); a.i(f"v_and_b32 v{d+1}, 0xffff0000, v{s}")
    E = 96
    for k in range(4):
        for h in range(2): unp(E + 8*k + 2*h, 16 + 4*k + h)
    for k in range(4):
        for h in range(2): a.i(f"v_pk_add_f32 v[{E+8*k+2*h}:{E+8*k+2*h+1}], v[{E+8*k+2*h}:{E+8*k+2*h+1}], v[{180+2*k}:{181+2*k}] op_sel:[0,0] op_sel_hi:[1,0] neg_lo:[0,1] neg_hi:[0,1]")
    for k in range(4):
        for h in range(2): a.i(f"v_cvt_pk_bf16_f32 v{18+4*k+h}, v{E+8*k+2*h}, v{E+8*k+2*h+1}")
    a.i("s_waitcnt lgkmcnt(0)"); a.ds_done = a.ds
    a.i("s_barrier")
    dg.mark("T")
    for e in range(19): a.dsop(f"ds_read_u16 v{128 + e}, v{64+e}")
    part(P_C)
    for k in range(4):
        for h in range(2): unp(E + 8*k + 2*h, 18 + 4*k + h)
    for k in range(4):
        for h in range(2): a.i(f"v_pk_mul_f32 v[{E+8*k+4+2*h}:{E+8*k+5+2*h}], v[{E+8*k+2*h}:{E+8*k+2*h+1}], v[{52+2*k}:{53+2*k}] op_sel:[0,0] op_sel_hi:[1,0]")
    for k in range(4):
        for h in range(2): a.i(f"v_pk_fma_f32 v[{E+8*k+2*h}:{E+8*k+2*h+1}], v[{E+8*k+4+2*h}:{E+8*k+5+2*h}], v[{180+2*k}:{181+2*k}], v[{E+8*k+2*h}:{E+8*k+2*h+1}] op_sel:[0,1,0] op_sel_hi:[1,1,1] neg_lo:[1,0,0] neg_hi:[1,0,0]")
    for k in range(4):
        for h in range(2): a.i(f"v_pk_fma_f32 v[{E+8*k+4+2*h}:{E+8*k+5+2*h}], v[{E+8*k+2*h}:{E+8*k+2*h+1}], v[{52+2*k}:{53+2*k}], v[{E+8*k+4+2*h}:{E+8*k+5+2*h}] op_sel:[0,0,0] op_sel_hi:[1,0,1]")
    for k in range(4):
        for h in range(2): a.i(f"v_cvt_pk_bf16_f32 v{18+4*k+h}, v{E+8*k+4+2*h}, v{E+8*k+5+2*h}")
    a.i("v_mov_b32 v3, v156"); a.i("v_mov_b32 v4, v157"); a.i("v_mov_b32 v5, v158"); a.i("v_mov_b32 v7, v188"); a.i("v_lshlrev_b32 v8, 4, v2")
    a.i(f"s_mul_i32 s6, s22, {KCH}"); a.i("s_lshl_b32 s7, s23, 11"); a.i("s_add_u32 s6, s6, s7")
    a.i("v_lshl_add_u32 v9, v2, 5, s6")
    a.i("s_waitcnt lgkmcnt(0)"); a.ds_done = a.ds
    for c in range(4):
        for e in range(8): a.i(f"v_lshl_or_b32 v{32+8*c+e}, v{128+2*e+1+3-c}, 16, v{128+2*e+3-c}")
        a.dsop(f"ds_write_b128 v9, v[{32+8*c}:{35+8*c}] offset:{c*CS}"); a.dsop(f"ds_write_b128 v9, v[{36+8*c}:{39+8*c}] offset:{c*CS+16}")
    for r in range(64, 68): a.i(f"v_mov_b32 v{r}, 0")
    a.i(f"s_mul_i32 s6, s22, {UCH}"); a.i(f"s_mul_i32 s7, s23, {U1}"); a.i("s_add_u32 s6, s6, s7"); a.i(f"s_add_u32 s6, s6, {U_OFF}")
    a.i("v_add_u32 v9, s6, v8")
    a.dsop("ds_write_b128 v9, v[64:67]"); a.dsop("ds_write_b128 v9, v[64:67] offset:1024")
    a.i("v_min_u32 v10, 15, v2"); a.i("v_lshl_add_u32 v10, v10, 4, s6")
    a.dsop("ds_write_b128 v10, v[64:67] offset:2048")
    a.i(f"s_mul_i32 s7, s23, {16*RS}"); a.i("s_add_u32 s6, s6, s7")
    a.i("v_mov_b32 v10, s6")
    a.dsop(f"ds_write_b64 v10, v[64:65]")
    a.i(f"s_mul_i32 s6, s22, {KCH}"); a.i(f"s_mul_i32 s7, s23, {2*CS}"); a.i("s_add_u32 s6, s6, s7")
    a.i("v_min_u32 v10, 6, v2"); a.i("v_lshl_add_u32 v10, v10, 4, s6")
    a.dsop("ds_write_b128 v10, v[64:67] offset:4096"); a.dsop(f"ds_write_b128 v10, v[64:67] offset:{4096+CS}")
    a.i(f"v_mul_u32_u24 v9, {RS}, v3"); a.i("v_lshl_add_u32 v9, v4, 2, v9"); a.i(f"v_add_u32 v9, {U_OFF + 16*RS}, v9")
    a.i("v_cmp_lt_u32 vcc, 13, v4")
    a.i("v_mov_b32 v10, 0"); a.i("v_mov_b32 v11, 16")
    a.i("v_cndmask_b32 v10, v10, v11, vcc")
    a.i("v_add_u32 v10, v9, v10")
    for pr in range(2):
        t0, t1 = 16 + 8*pr, 20 + 8*pr
        for c in range(4):
            r = 2 + c // 2
            if c % 2 == 0:
                a.i(f"v_lshlrev_b32 v68, 16, v{t0+r}"); a.i(f"v_lshlrev_b32 v69, 16, v{t1+r}")
            else:
                a.i(f"v_and_b32 v68, 0xffff0000, v{t0+r}"); a.i(f"v_and_b32 v69, 0xffff0000, v{t1+r}")
            pk = 70 + 4*pr + c
            a.i(f"v_cvt_pk_f16_f32 v{pk}, v68, v69")
            a.dsop(f"ds_write_b32 v9, v{pk} offset:{c*UCH + 64*pr}")
            if pr == 0: a.dsop(f"ds_write_b32 v9, v{pk} offset:{c*UCH + U1 + 8}")
            else:
                a.dsop(f"ds_write_b32 v10, v{pk} offset:{c*UCH + U1 + 8 + 64}")
    a.i("v_and_b32 v12, 3, v2"); a.i(f"v_mul_u32_u24 v12, {CS}, v12")
    a.i("v_lshrrev_b32 v13, 2, v2"); a.i("v_and_b32 v14, 7, v13"); a.i("v_lshrrev_b32 v13, 5, v2"); a.i("v_add_u32 v14, v14, v13")
    a.i("v_lshlrev_b32 v14, 4, v14"); a.i("v_sub_u32 v12, v12, v14")
    a.i(f"s_mul_i32 s6, s22, {KCH}"); a.i("s_lshl_b32 s7, s23, 10"); a.i("s_sub_u32 s6, s6, s7"); a.i(f"s_add_u32 s6, s6, {576*2}")
    a.i("v_add_u32 v12, s6, v12")
    a.i("v_bfe_u32 v14, v2, 1, 4"); a.i(f"v_mul_u32_u24 v14, {RS}, v14")
    a.i("v_and_b32 v78, 1, v2"); a.i("v_xor_b32 v78, 1, v78"); a.i(f"v_mul_u32_u24 v78, {U1}, v78"); a.i("v_add_u32 v14, v14, v78")
    a.i("v_lshlrev_b32 v78, 4, v13"); a.i("v_sub_u32 v14, v14, v78")
    a.i(f"s_mul_i32 s6, s22, {UCH}"); a.i(f"s_mul_i32 s7, s23, {8*RS}"); a.i("s_sub_u32 s6, s6, s7"); a.i(f"s_add_u32 s6, s6, {U_OFF}")
    a.i("v_add_u32 v14, s6, v14")
    a.i("s_waitcnt lgkmcnt(0)"); a.ds_done = a.ds
    a.i("s_barrier")
    dg.mark("conv")
    def zoff(z): return (z // 64) * RS + (z % 64) * 2
    def loads(st):
        b = 64 + 16 * (st % 3)
        ya = (31 - st) * 32
        zb = 1024 + 56 - 16 * st
        a.dsop(f"ds_read_b128 v[{b}:{b+3}], v12 offset:{ya + 2048}")
        a.dsop(f"ds_read_b128 v[{b+4}:{b+7}], v14 offset:{zoff(zb)}")
        i1 = a.dsop(f"ds_read_b128 v[{b+8}:{b+11}], v14 offset:{zoff(zb + 1024)}")
        i2 = a.dsop(f"ds_read_b128 v[{b+12}:{b+15}], v12 offset:{ya}")
        return i1, i2
    F = []
    SU, TT_, XX = 112, 32, 48
    def rnd2(d0, d1, t, L=None):
        o = [f"v_cvt_pk_bf16_f32 v{t}, v{d0}, v{d1}", f"v_lshlrev_b32 v{d0}, 16, v{t}", f"v_and_b32 v{d1}, 0xffff0000, v{t}"]
        return o
    for k in range(2):
        F += [f"s_lshl_b32 s{56+2*k}, s{16+k}, 16", f"s_and_b32 s{57+2*k}, s{16+k}, 0xffff0000", f"s_lshl_b32 s{60+2*k}, s{18+k}, 16", f"s_and_b32 s{61+2*k}, s{18+k}, 0xffff0000"]
    for k in range(4):
        for c in range(4):
            sh = "v_lshlrev_b32 v{d}, 16, v{s}" if c % 2 == 0 else "v_and_b32 v{d}, 0xffff0000, v{s}"
            F.append(sh.format(d=TT_ + 4*k + c, s=18 + 4*k + c // 2))
            F.append(sh.format(d=XX + 4*k + c, s=16 + 4*k + c // 2))
    for k in range(16): F.append(f"v_mul_f32 v{TT_+k}, s{56 + k % 4}, v{TT_+k}")
    def rnd_all(base):
        o = []
        for g in range(2):
            tr_ = [rnd2(base + 8*g + 2*k, base + 8*g + 2*k + 1, 16 + k) for k in range(4)]
            for j in range(3): o += [t[j] for t in tr_]
        return o
    F += rnd_all(TT_)
    for s_ in range(1, 8):
        F.append(('vm', 2 * s_ + 1))
        for r in range(8):
            for hh in range(2):
                d = SU + 2*r + hh
                if s_ == 1: F.append(f"v_fma_mix_f32 v{d}, v{PB+r}, 1.0, v{PB+8+r} op_sel:[{hh},0,{hh}] op_sel_hi:[1,0,1]")
                else: F.append(f"v_fma_mix_f32 v{d}, v{PB+8*s_+r}, 1.0, v{d} op_sel:[{hh},0,0] op_sel_hi:[1,0,0]")
    F += rnd_all(SU)
    for k in range(16): F.append(f"v_add_f32 v{SU+k}, s{60 + k % 4}, v{SU+k}")
    F += rnd_all(SU)
    def fill(n):
        while n > 0 and F:
            f = F.pop(0)
            if isinstance(f, tuple): a.wait_vm(pid[f[1]])
            else: a.i(f); n -= 1
    ld = {0: loads(0), 1: loads(1)}
    for st in range(32):
        b = 64 + 16 * (st % 3)
        if st + 2 < 32: ld[st + 2] = loads(st + 2)
        a.wait_ds(ld[st][0])
        c0 = "0" if st == 0 else "v[128:143]"; c1 = "0" if st == 0 else "v[144:159]"
        nf = F_N if st >= F_S else (3 if any(isinstance(f, tuple) for f in F[12:]) and not any(isinstance(f, tuple) for f in F[:12]) else 0)
        a.i(f"v_mfma_f32_32x32x16_f16 v[128:143], v[{b}:{b+3}], v[{b+4}:{b+7}], {c0}")
        fill(nf)
        a.i(f"v_mfma_f32_32x32x16_f16 v[144:159], v[{b}:{b+3}], v[{b+8}:{b+11}], {c1}")
        part(P_D)
        fill(nf)
        a.wait_ds(ld[st][1])
        a.i(f"v_mfma_f32_32x32x16_f16 v[144:159], v[{b+12}:{b+15}], v[{b+4}:{b+7}], v[144:159]")
        fill(nf)
    dg.mark("convend")
    a.i(f"s_lshl_b32 s6, s20, 12"); a.i(f"s_add_u32 s6, s6, {SC_OFF}"); a.i("v_add_u32 v9, s6, v8")
    a.i("s_xor_b32 s7, s20, 1"); a.i("s_lshl_b32 s7, s7, 12"); a.i(f"s_add_u32 s7, s7, {SC_OFF}"); a.i("v_add_u32 v10, s7, v8")
    a.i("v_bfe_u32 v11, v2, 1, 4"); a.i("v_lshlrev_b32 v11, 7, v11")
    a.i("v_and_b32 v12, 1, v2"); a.i("v_lshl_add_u32 v11, v12, 3, v11")
    a.i("v_lshl_add_u32 v11, v13, 4, v11")
    a.i(f"s_mul_i32 s6, s22, {YS}"); a.i("s_lshl_b32 s7, s23, 11"); a.i("s_add_u32 s6, s6, s7"); a.i("v_add_u32 v11, s6, v11")
    a.i("v_lshlrev_b32 v12, 1, v5")
    a.i("v_mul_u32_u24 v13, 1152, v5"); a.i("s_lshl_b32 s6, s21, 3")
    a.i("v_mov_b32 v14, v15")
    a.nop(4)
    a.i("s_cmp_eq_u32 s23, 0"); a.i("s_cbranch_scc1 kb_mu0")
    def xch(send, keep):
        for k in range(4): a.i(f"ds_write_b128 v9, v[{send+4*k}:{send+3+4*k}] offset:{k*1024}")
        a.i("s_waitcnt lgkmcnt(0)")
        a.i("s_barrier")
        for k in range(4): a.i(f"ds_read_b128 v[{176+4*k}:{179+4*k}], v10 offset:{k*1024}")
        for k in range(4):
            a.i(f"s_waitcnt lgkmcnt({3-k})")
            for h in range(2): a.i(f"v_pk_add_f32 v[{160+4*k+2*h}:{161+4*k+2*h}], v[{keep+4*k+2*h}:{keep+1+4*k+2*h}], v[{176+4*k+2*h}:{177+4*k+2*h}]")
    xch(128, 144)
    a.i("s_branch kb_j")
    a.raw("kb_mu0:")
    xch(144, 128)
    a.raw("kb_j:")
    for k in range(8): a.i(f"v_pk_mul_f32 v[{160+2*k}:{161+2*k}], v[{160+2*k}:{161+2*k}], v[14:15]")
    for k in range(8): a.i(f"v_cvt_pk_bf16_f32 v{176+k}, v{160+2*k}, v{161+2*k}")
    for k in range(4): a.i(f"ds_write_b64 v11, v[{176+2*k}:{177+2*k}] offset:{32*k}")
    dg.mark("ywr")
    fill(1000)
    a.i("s_waitcnt lgkmcnt(0)")
    a.i("s_barrier")
    dg.mark("yb")
    for c in range(4):
        a.i(f"ds_read_b32 v{152+2*c}, v12 offset:{c*YS}")
        a.i(f"ds_read_b32 v{153+2*c}, v12 offset:{c*YS + 64}")
    a.i("s_waitcnt lgkmcnt(0)")
    Y = 128
    for k in range(4):
        pr, u = divmod(k, 2)
        for c in range(4):
            shy = "v_lshlrev_b32 v{d}, 16, v{s}" if u == 0 else "v_and_b32 v{d}, 0xffff0000, v{s}"
            a.i(shy.format(d=Y + 4*k + c, s=152 + 2*c + pr))
    def padd(src):
        for k in range(8): a.i(f"v_pk_add_f32 v[{Y+2*k}:{Y+2*k+1}], v[{Y+2*k}:{Y+2*k+1}], v[{src(k)}:{src(k)+1}]")
    padd(lambda k: TT_ + 2*k)
    for f in rnd_all(Y): a.i(f)
    padd(lambda k: XX + 2*k)
    for f in rnd_all(Y): a.i(f)
    padd(lambda k: SU + 8 * ((k // 2) % 2) + 4 * (k // 4) + 2 * (k % 2))
    for k in range(4):
        pr, u = divmod(k, 2)
        a.i(f"v_cvt_pk_bf16_f32 v{172+2*k}, v{Y+4*k}, v{Y+4*k+1}"); a.i(f"v_cvt_pk_bf16_f32 v{173+2*k}, v{Y+4*k+2}, v{Y+4*k+3}")
        a.i(f"s_add_u32 s7, s6, {(32*pr + u) * 1152}")
        a.i(f"buffer_store_dwordx2 v[{172+2*k}:{173+2*k}], v13, s[{sOUT}:{sOUT+3}], s7 offen")
    a.raw("; SCOUTEND")
    dg.mark("st")
    dg.dump(48, 20, 8, 28)
    a.raw("kb_end:")
    a.i("s_endpgm")
    return a.text(), kd(name, 256, 256)
```

```python
import sys, os
sys.path.insert(0, os.path.dirname(__file__))
import ka, kb
ref = open("parallel_sum__ssm_conv_s4__dense_activation_gelu__prompt.s.ref").read().split("\n")
head = [l for l in ref if l.startswith(";") and "@launch" not in l and "Override" not in l and "grid=ceil" not in l]
t2, d2 = ka.gen(0); t3, d3 = kb.gen()
import scout
t2 = scout.add(t2, 'ka', 43, 4, int(os.environ.get('SPA', '0')), extra='\nk_code_end:\n')
out = head + [
 f"; @launch kernel=ka_kernel grid=(256,1,1) block=(256,1,1) lds={ka.K2_LDS}",
 f"; @launch kernel=kb_kernel grid=(144,1,1) block=(512,1,1) lds={kb.K3_LDS}",
 '.amdgcn_target "amdgcn-amd-amdhsa--gfx950"', ".text", t2, t3, "k_code_end:", "  s_endpgm", '.section .rodata,"a"', d2, d3]
dst = sys.argv[1] if len(sys.argv) > 1 else "c.s"
open(dst, "w").write("\n".join(out))
print("wrote", dst)
```

```python
from common import *
import math, os
NR = int(os.environ.get('NR', '10'))
RING = NR * 2048
XH = 73728
BIAS_OFF = XH + 4 * RING
K2_LDS = BIAS_OFF + 2304
R1, R2, R3 = 64, 128, 192
C0 = -2.0 * math.sqrt(2.0 / math.pi) * math.log2(math.e)
C1 = C0 * 0.044715
DP = int(os.environ.get('DP', '2')); DT = int(os.environ.get('DT', '4'))
ND0 = int(os.environ.get('ND0', '3'))
MAP2 = int(os.environ.get('MAP2', '1')); PF1AT = int(os.environ.get('PF1AT', '3')); PF2AT = int(os.environ.get('PF2AT', '3')); PF2S = int(os.environ.get('PF2S', '3'))
DM = int(os.environ.get('DM', '1')); XB = int(os.environ.get('XB', '3')); XE = int(os.environ.get('XE', '20'))
SLOTS = int(os.environ.get('SLOTS', '7'))
vW1 = {0: (4, 5), 1: (6, 7)}; vW2 = (8, 9)
vT = {1: (10, 11), 2: (12, 13)}
vX = (14, 15, 16, 17); vHo = (18, 19, 20, 21)
vS, vHw, vP = 22, 23, 25
vSt = (26, 30); vC0p = (0, 1); vC1p = (2, 24)
sSw, sSr = 62, 63
XT_OFF = XF_OFF; ST_OFF = XU_OFF
sX = 96 + 0; sDl = (97, 98, 99)
GT = 32
PK = 48
sW1, sW2, sWS, sB1 = 8, 12, 16, 20
sK1 = (24, 25, 26, 27); sA2 = {0: (28, 29, 30, 31), 1: (56, 57, 58, 59)}; sB2 = (32, 33, 34, 35)
sO1, sB2o, sP, sPo, sRing, sOff, sQ, sTmp = 36, 38, 39, 40, 41, 42, 43, 44
sA2o = {0: 37, 1: 60}; sBit = 61

def breg(phase, sigma, tt):
    if phase == 1:
        n = sigma * 2 + tt
        if n < 56: return f"a[{4*n}:{4*n+3}]"
        b = R3 + 4 * (n - 56); return f"v[{b}:{b+3}]"
    kind, k = sigma
    n = 2 * k + tt
    if kind == 's1': return f"a[{4*n}:{4*n+3}]"
    if n < 16: return f"a[{160+4*n}:{160+4*n+3}]"
    b = R2 + 4 * (n - 16); return f"v[{b}:{b+3}]"

class Item:
    __slots__ = ("cost", "fn", "deps", "key", "fence", "at")
    def __init__(s, cost, fn, deps, key, fence): s.cost, s.fn, s.deps, s.key, s.fence, s.at = cost, fn, deps, key, fence, None

def gen(code_pf_bytes):
    a = Asm(); name = "ka_kernel"
    header(a, name)
    a.i("s_cmp_ge_u32 s2, 256"); a.i("s_cbranch_scc1 ka_end")
    dg = Diag(a, 1); dg.start(); dg.mark("start")
    a.i("s_load_dwordx2 s[100:101], s[0:1], 0")
    a.i("s_load_dwordx4 s[48:51], s[0:1], 80")
    a.i("s_load_dwordx2 s[52:53], s[0:1], 96")
    a.i("s_load_dwordx2 s[54:55], s[0:1], 128")
    a.i("v_lshrrev_b32 v1, 6, v0"); a.i("v_and_b32 v2, 63, v0")
    a.i(f"v_readfirstlane_b32 s{sQ}, v1")
    a.i("s_getpc_b64 s[46:47]")
    a.raw("ka_pc:")
    a.i("s_lshr_b32 s5, s2, 3"); a.i("s_lshl_b32 s5, s5, 2"); a.i(f"s_add_u32 s5, s5, s{sQ}"); a.i("s_lshl_b32 s5, s5, 12")
    a.i("v_lshl_add_u32 v44, v2, 6, s5"); a.i("v_min_u32 v44, k_code_end-ka_pc, v44")
    a.i("v_mov_b32 v73, s47"); a.i("v_add_co_u32 v72, vcc, s46, v44"); a.i("s_nop 1"); a.i("v_addc_co_u32 v73, vcc, 0, v73, vcc")
    a.vmem("global_load_dword v68, v[72:73], off")
    if MAP2:
        a.i("s_and_b32 s3, s2, 3"); a.i("s_lshl_b32 s3, s3, 1"); a.i("s_bfe_u32 s4, s2, 0x10003"); a.i("s_add_u32 s3, s3, s4")
        a.i("s_bfe_u32 s4, s2, 0x10002"); a.i("s_lshl_b32 s4, s4, 4"); a.i("s_lshr_b32 s5, s2, 4"); a.i("s_add_u32 s4, s4, s5")
    else:
        a.i("s_and_b32 s3, s2, 7"); a.i("s_lshr_b32 s4, s2, 3")
    a.i(f"s_and_b32 s{sBit}, s4, 1"); a.i("s_and_b32 s96, s4, 15")
    a.i("v_lshlrev_b32 v3, 4, v2")
    RX = 128
    a.i(f"s_lshl_b32 s5, s4, 6"); a.i(f"s_lshl_b32 s6, s{sQ}, 4"); a.i("s_add_u32 s5, s5, s6"); a.i("s_mul_i32 s5, s5, 1152")
    a.i("v_lshrrev_b32 v32, 3, v2"); a.i("v_and_b32 v33, 7, v2")
    a.i("v_mul_u32_u24 v34, 1152, v32"); a.i("v_lshl_add_u32 v34, v33, 4, v34"); a.i("v_add_u32 v34, s5, v34"); a.i(f"v_add_u32 v35, {8*1152}, v34")
    a.i("s_waitcnt lgkmcnt(0)")
    xl = {}
    for p in range(2):
        for i in range(9):
            xl[(p, i)] = a.vmem(f"global_load_dwordx4 v[{RX+36*p+4*i}:{RX+36*p+4*i+3}], v{34+p}, s[100:101] offset:{128*i}")
    a.i("s_mul_i32 s7, s3, 1152")
    a.i(f"s_lshl_b32 s{sTmp}, s{sQ}, 8")
    a.i(f"s_lshl_b32 s46, s{sBit}, 7")
    a.i(f"s_mul_i32 s47, s{sBit}, {64*1152}")
    for g in range(4):
        a.i(f"s_add_u32 s5, s{sQ}, {g}"); a.i("s_and_b32 s5, s5, 3")
        a.i(f"s_mul_i32 s{sK1[g]}, s5, {144*9216}"); a.i(f"s_add_u32 s{sK1[g]}, s{sK1[g]}, s7")
        a.i("s_mul_i32 s6, s3, 663552")
        a.i(f"s_mul_i32 s{sA2[1][g]}, s5, {128*1152}"); a.i(f"s_add_u32 s{sA2[1][g]}, s{sA2[1][g]}, s6")
        a.i(f"s_add_u32 s{sA2[0][g]}, s{sA2[1][g]}, s47")
        a.i(f"s_sub_u32 s{sA2[1][g]}, s{sA2[1][g]}, s47"); a.i(f"s_add_u32 s{sA2[1][g]}, s{sA2[1][g]}, {64*1152}")
        a.i(f"s_mul_i32 s{sB2[g]}, s5, {16*1152}"); a.i(f"s_add_u32 s{sB2[g]}, s{sB2[g]}, s6"); a.i(f"s_add_u32 s{sB2[g]}, s{sB2[g]}, {512*1152}")
        if g > 0: a.i("s_cmp_eq_u32 s5, 0"); a.i(f"s_cselect_b32 s{sDl[g-1]}, -3, 1"); a.i(f"s_mul_i32 s{sDl[g-1]}, s{sDl[g-1]}, 9216")
        a.i("s_lshl_b32 s6, s5, 10"); a.i("s_add_u32 s6, s6, 32768"); a.i(f"v_add_u32 v{vHo[g]}, s6, v3")
    for d, s_ in ((sO1, sK1[0]), (sA2o[0], sA2[0][0]), (sA2o[1], sA2[1][0]), (sB2o, sB2[0])):
        a.i(f"s_add_u32 s{d}, s{s_}, 1024"); a.i(f"s_sub_u32 s{d}, s{d}, s{sTmp}")
    a.i(f"s_sub_u32 s{sO1}, s{sO1}, s46")
    a.i(f"s_mul_i32 s{sRing}, s{sQ}, {RING}"); a.i(f"s_add_u32 s{sRing}, s{sRing}, {XH}")
    a.i("v_lshrrev_b32 v32, 3, v2")
    a.i("v_bfe_u32 v33, v2, 4, 1"); a.i("v_lshlrev_b32 v33, 2, v33")
    a.i("v_and_b32 v34, 7, v2"); a.i("v_xor_b32 v33, v33, v34")
    a.i(f"v_lshl_add_u32 v33, v33, 4, s{sTmp}")
    a.i(f"v_mul_u32_u24 v34, 9216, v32"); a.i("v_add_u32 v34, v34, v33")
    a.i(f"v_add_u32 v{vW1[0][0]}, s46, v34"); a.i(f"v_add_u32 v{vW1[0][1]}, {8*9216-1024}, v{vW1[0][0]}")
    a.i(f"v_xor_b32 v{vW1[1][0]}, 128, v{vW1[0][0]}"); a.i(f"v_add_u32 v{vW1[1][1]}, {8*9216-1024}, v{vW1[1][0]}")
    a.i(f"v_mul_u32_u24 v{vW2[0]}, 1152, v32"); a.i(f"v_add_u32 v{vW2[0]}, v{vW2[0]}, v33")
    a.i(f"v_add_u32 v{vW2[1]}, {8*1152-1024}, v{vW2[0]}")
    srd(a, sWS, 54, WS_BYTES); srd(a, sW1, 48, 5308416); srd(a, sW2, 52, 5308416); srd(a, sB1, 50, 9216)

    steps = []
    def add(ph, vo, sbase, imm, sigma, acc, cinit, tag):
        steps.append(dict(ph=ph, vo=vo, sbase=sbase, imm=imm, sigma=sigma, acc=acc, cinit=cinit, tag=tag))
    for i in range(9): add(1, vW1[0], sO1, i * 16 * 9216, i, R2, None, ('O1', i))
    for p, acc in ((0, R1), (1, R2)):
        for sg in range(36):
            add(1, vW1[p], sK1[sg // 9], (sg % 9) * 16 * 9216, sg, acc, None, ('P%d' % p, sg))
    def s1(n):
        g, i = divmod(n, 5)
        return (sA2[0][g], i * 16 * 1152) if i < 4 else (sB2[g], 0)
    def s2(n):
        g, i = divmod(n, 4); return (sA2[1][g], i * 16 * 1152)
    for p, acc in ((0, R1), (1, R3)):
        for n in range(20):
            sb, im = s1(n); add(2, vW2, sb, im + 128 * p, ('s1', n), acc, 'zero' if n == 0 else None, ('D%ds1' % p, n))
    for n in range(16):
        sb, im = s2(n); add(2, vW2, sb, im, ('s2', n), R1, None, ('D0s2', n))
    for n in range(16):
        sb, im = s2(n); add(2, vW2, sb, im + 128, ('s2', n), R3, None, ('D1s2', n))
    odd2 = [(sA2o[0], i * 16 * 1152, ('s1', i)) for i in range(4)] + [(sB2o, 0, ('s1', 4))] + [(sA2o[1], i * 16 * 1152, ('s2', i)) for i in range(4)]
    for i, (sb, im, sg) in enumerate(odd2): add(2, vW2, sb, im, sg, R1, 'zero' if i == 0 else None, ('O2', i))
    NS = len(steps); assert NS == 162
    dma_id = {}
    def dma(k):
        st = steps[k]
        srdr = sW1 if st['ph'] == 1 else sW2
        va, vb = st['vo']
        a.i(f"s_add_u32 m0, s{sRing}, {(k % NR) * 2048}")
        a.i(f"s_add_u32 s{sOff}, s{st['sbase']}, {st['imm']}")
        a.vmem(f"buffer_load_dwordx4 v{va}, s[{srdr}:{srdr+3}], s{sOff} offen lds")
        dma_id[k] = a.vmem(f"buffer_load_dwordx4 v{vb}, s[{srdr}:{srdr+3}], s{sOff} offen offset:1024 lds")
    a.i("v_lshrrev_b32 v36, 5, v2"); a.i("v_and_b32 v37, 31, v2"); a.i("v_lshlrev_b32 v37, 1, v37"); a.i("v_lshl_add_u32 v36, v36, 14, v37")
    a.i(f"s_lshl_b32 s5, s{sQ}, 14"); a.i("s_add_u32 s5, s5, 1024"); a.i("s_add_u32 s5, s5, s7"); a.i("v_add_u32 v53, s5, v36")
    a.i(f"s_add_u32 s5, s{sTmp}, s46"); a.i("v_add_u32 v54, s5, v36"); a.i("v_xor_b32 v55, 128, v54"); a.i("v_add_u32 v54, s7, v54"); a.i("v_add_u32 v55, s7, v55")
    ids = {}
    LATE = []
    for k in range(ND0): dma(k)
    a.raw('; SCOUT')
    for k in range(ND0, NR): LATE.append(lambda k=k: dma(k))
    for n in range(6):
        LATE.append(lambda n=n: ids.__setitem__('b', a.vmem(f"buffer_load_ushort v{228+n}, v{53 + n // 2}, s[{sB1}:{sB1+3}], 0 offen offset:{64 * (n % 2)}")))
    a.i("s_lshl_b32 s5, s4, 6"); a.i("v_add_u32 v52, s5, v2"); a.i("v_mul_u32_u24 v56, 1152, v52")
    a.i("s_mul_i32 s5, s3, 144"); a.i("v_add_u32 v56, s5, v56"); a.i(f"s_lshl_b32 s5, s{sQ}, 4"); a.i("v_add_u32 v57, s5, v56")
    XTL = [lambda: a.vmem("global_load_dwordx4 v[216:219], v57, s[100:101]"), lambda: a.vmem("global_load_dwordx4 v[220:223], v57, s[100:101] offset:64"),
           lambda: ids.__setitem__('xt', a.vmem("global_load_dwordx4 v[224:227], v56, s[100:101] offset:128"))]
    NPF = 2; CH = 81; assert MAP2
    a.i(f"s_and_b32 s5, s4, {15 if MAP2 else 31}"); a.i("s_lshl_b32 s5, s5, 2"); a.i(f"s_add_u32 s5, s5, s{sQ}"); a.i(f"s_mul_i32 s6, s5, {CH}")
    a.i("s_mul_i32 s45, s3, 663552")
    for j in range(NPF):
        a.i(f"v_add_u32 v43, {64*j}, v2"); a.i(f"v_min_u32 v43, {CH-1}, v43"); a.i("v_add_u32 v43, s6, v43")
        a.i("v_mul_u32_u24 v44, 7282, v43"); a.i("v_lshrrev_b32 v44, 16, v44")
        a.i(f"v_mul_u32_u24 v44, {9216 - 18*64}, v44"); a.i("v_lshlrev_b32 v43, 7, v43"); a.i(f"v_add3_u32 v{69+j}, v44, v43, s7"); a.i(f"v_add_u32 v{58+j}, s45, v43")
    PF1 = [lambda j=j: ids.__setitem__('pf', a.vmem(f"buffer_load_dword v{64+j}, v{69+j}, s[{sW1}:{sW1+3}], 0 offen")) for j in range(NPF)]
    nb = NR - ND0
    LATE = LATE[:nb] + [lambda k=k, L=LATE: (L[nb + 2*k](), L[nb + 2*k + 1]()) for k in range(3)]
    if PF1AT == 0: LATE = LATE + XTL + PF1
    elif PF1AT == 1: LATE = LATE + PF1 + XTL
    elif PF1AT == 2: LATE = PF1 + LATE + XTL
    else: LATE = LATE[:nb] + PF1 + LATE[nb:]
    if PF1AT < 3: XTL = []
    def pf2():
        for j in range(NPF): ids['pf2'] = a.vmem(f"buffer_load_dword v{61+j}, v{58+j}, s[{sW2}:{sW2+3}], 0 offen")
    PF2T = {0: 'sum', 1: 'ln1', 2: ('P0', 4), 3: None}[PF2AT]
    a.i("v_lshrrev_b32 v32, 5, v2")
    a.i("v_bfe_u32 v33, v2, 2, 2")
    a.i("v_bfe_u32 v34, v2, 4, 1"); a.i("v_lshlrev_b32 v34, 5, v34")
    a.i("v_and_b32 v36, 3, v2"); a.i("v_lshl_add_u32 v34, v36, 3, v34")
    a.i("v_lshl_add_u32 v34, v33, 7, v34"); a.i(f"v_add_u32 v34, s{sRing}, v34")
    a.i("v_bfe_u32 v36, v2, 3, 1"); a.i("v_lshlrev_b32 v36, 6, v36")
    a.i("v_xor_b32 v37, 64, v36")
    a.i("v_lshl_add_u32 v40, v32, 10, v34")
    a.i(f"v_add_u32 v{vT[1][0]}, v40, v36"); a.i(f"v_add_u32 v{vT[1][1]}, v40, v37")
    a.i("v_lshl_add_u32 v40, v32, 9, v34")
    a.i(f"v_add_u32 v{vT[2][0]}, v40, v36"); a.i(f"v_add_u32 v{vT[2][1]}, v40, v37")
    a.i(f"s_lshr_b32 s5, s{sQ}, 1"); a.i(f"s_lshl_b32 s6, s{sQ}, 4"); a.i("s_lshl_b32 s7, s5, 2"); a.i("s_add_u32 s6, s6, s7"); a.i("s_lshl_b32 s6, s6, 10")
    a.i(f"s_mov_b32 s{sSw}, s6")
    a.i(f"s_and_b32 s6, s{sQ}, 1"); a.i("s_lshl_b32 s6, s6, 1"); a.i("s_lshl_b32 s7, s5, 3"); a.i("s_add_u32 s6, s6, s7")
    a.i(f"s_lshl_b32 s{sSr}, s6, 10")
    a.i("v_bfe_u32 v33, v2, 1, 4"); a.i("v_and_b32 v36, 1, v2"); a.i("v_lshlrev_b32 v33, 4, v33"); a.i("v_lshl_add_u32 v33, v36, 8, v33"); a.i(f"v_lshl_add_u32 v{vP}, v32, 17, v33")
    a.i(f"s_lshl_b32 s7, s{sQ}, 13"); a.i(f"v_add_u32 v{vHw}, s7, v3")
    a.i(f"s_add_u32 s7, s{sTmp}, s3"); a.i("s_lshl_b32 s7, s7, 14"); a.i("s_lshl_b32 s45, s4, 9"); a.i(f"s_add_u32 s45, s45, {PART_OFF}")
    a.i(f"s_add_u32 s{sP}, s7, s45")
    a.i(f"s_lshl_b32 s7, s{sQ}, 2"); a.i("s_add_u32 s7, s7, 128"); a.i("s_lshl_b32 s7, s7, 3"); a.i("s_add_u32 s7, s7, s3"); a.i("s_lshl_b32 s7, s7, 14")
    a.i(f"s_add_u32 s{sPo}, s7, s45")
    a.i("v_and_b32 v33, 31, v2"); a.i(f"s_mul_i32 s7, s{sQ}, 9216"); a.i("v_lshl_add_u32 v34, v32, 9, s7")
    for c in range(4):
        a.i(f"s_add_u32 s5, s{sQ}, {c}"); a.i("s_and_b32 s5, s5, 3"); a.i("s_lshl_b32 s5, s5, 1")
        a.i("v_add_u32 v36, s5, v32"); a.i("v_xor_b32 v36, v36, v33"); a.i(f"v_lshl_add_u32 v{vX[c]}, v36, 4, v34")
    a.i(f"v_lshlrev_b32 v46, 2, v33"); a.i(f"v_add_u32 v46, {BIAS_OFF}, v46")
    a.i("v_lshrrev_b32 v32, 3, v2"); a.i("v_and_b32 v33, 7, v2")
    a.i(f"s_lshr_b32 s5, s{sQ}, 1"); a.i("s_mul_i32 s5, s5, 36864"); a.i(f"s_and_b32 s6, s{sQ}, 1"); a.i("s_lshl_b32 s6, s6, 8"); a.i("s_add_u32 s5, s5, s6")
    a.i("v_xor_b32 v34, v32, v33"); a.i("v_lshl_add_u32 v34, v34, 4, s5"); a.i("v_lshl_add_u32 v47, v33, 9, v34")
    a.i(f"s_lshl_b32 s5, s{sQ}, 6"); a.i(f"s_add_u32 s5, s5, {BIAS_OFF}"); a.i("v_lshl_add_u32 v48, v32, 2, s5")
    a.i("s_lshl_b32 s5, s4, 9"); a.i(f"s_lshl_b32 s6, s{sQ}, 7"); a.i("s_add_u32 s5, s5, s6"); a.i(f"s_add_u32 s5, s5, {ST_OFF}")
    a.i("v_lshl_add_u32 v49, v32, 3, s5")
    a.i("v_lshlrev_b32 v40, 3, v52"); a.i(f"s_mul_i32 s5, s3, {18*16384}"); a.i(f"s_add_u32 s5, s5, {XT_OFF}"); a.i("v_add_u32 v40, s5, v40")
    a.i(f"s_lshl_b32 s5, s{sQ}, 15"); a.i("v_add_u32 v41, s5, v40")
    for r in (27, 28, 29, 31): a.i(f"v_mov_b32 v{r}, 0")
    for r in range(240, 256):
        if r % 2 or r in (240, 254): a.i(f"v_accvgpr_write_b32 a{r}, 0")
    a.i("s_mov_b32 s5, 0x3f803f80"); a.i("s_mov_b32 s6, 0x00003f80"); a.i("s_mov_b32 s7, 0x3f800000")
    dg.mark("ln0")
    A = 32
    for p in range(2):
        for i in range(9):
            a.wait_vm(xl[(p, i)])
            for r in range(4):
                x = RX + 36*p + 4*i + r; h = r & 1
                c0 = "0" if (i == 0 and r < 2) else f"v{A+4*p+h}"; c1 = "0" if (i == 0 and r < 2) else f"v{A+4*p+2+h}"
                a.i(f"v_dot2_f32_bf16 v{A+4*p+h}, v{x}, s5, {c0}")
                a.i(f"v_dot2_f32_bf16 v{A+4*p+2+h}, v{x}, v{x}, {c1}")
            if LATE: LATE.pop(0)()
        if p == 1: dg.mark("sum")
        a.nop(3)
        a.i(f"v_add_f32 v{A+4*p}, v{A+4*p}, v{A+4*p+1}"); a.i(f"v_add_f32 v{A+4*p+2}, v{A+4*p+2}, v{A+4*p+3}")
        for dpp in ("quad_perm:[1,0,3,2]", "quad_perm:[2,3,0,1]", "row_half_mirror"):
            a.nop(1)
            for r in (A+4*p, A+4*p+2): a.i(f"v_add_f32_dpp v{r}, v{r}, v{r} {dpp} row_mask:0xf bank_mask:0xf")
        def both(f): a.i(f.format(m=A+4*p, s=A+4*p+1, v=A+4*p+2, t=A+4*p+3, u=50))
        both(f"v_mul_f32 v{{m}}, {fl(1.0/576)}, v{{m}}"); both(f"v_mul_f32 v{{v}}, {fl(1.0/576)}, v{{v}}")
        both("v_fma_f32 v{v}, -v{m}, v{m}, v{v}"); both("v_max_f32 v{v}, 0, v{v}")
        both("v_cvt_pk_bf16_f32 v{t}, v{m}, v{v}"); both("v_lshlrev_b32 v{m}, 16, v{t}"); both("v_and_b32 v{v}, 0xffff0000, v{t}")
        both("v_xor_b32 v{u}, 0x80000000, v{m}")
        ST = [f"v_add_f32 v{{v}}, {fl(1e-5)}, v{{v}}", "v_cvt_pk_bf16_f32 v{v}, v{v}, v{v}", "v_lshlrev_b32 v{v}, 16, v{v}", "v_sqrt_f32 v{s}, v{v}",
              "v_rcp_f32 v{t}, v{s}", "v_fma_f32 v{v}, -v{s}, v{s}, v{v}", "v_mul_f32 v{t}, 0.5, v{t}", "v_fmac_f32 v{s}, v{v}, v{t}",
              "v_cvt_pk_bf16_f32 v{s}, v{s}, v{s}", "v_lshlrev_b32 v{s}, 16, v{s}"]
        for i in range(9):
            t = 200 + 8 * (i & 1)
            for r in range(4):
                x = RX + 36*p + 4*i + r
                if DM == 0:
                    a.i(f"v_dot2_f32_bf16 v{t+2*r}, v{x}, s6, v50"); a.i(f"v_dot2_f32_bf16 v{t+2*r+1}, v{x}, s7, v50")
                else:
                    a.i(f"v_lshlrev_b32 v{t+2*r}, 16, v{x}"); a.i(f"v_and_b32 v{t+2*r+1}, 0xffff0000, v{x}")
            if DM:
                for r in range(4): a.i(f"v_pk_add_f32 v[{t+2*r}:{t+2*r+1}], v[{t+2*r}:{t+2*r+1}], v[50:51] op_sel_hi:[1,0]")
            both(ST.pop(0))
            if i == 8: both(ST.pop(0))
            if LATE: LATE.pop(0)()
            elif XTL and i % 3 == 2 and p == 1: XTL.pop(0)()
            for r in range(4):
                x = RX + 36*p + 4*i + r
                a.i(f"v_cvt_pk_bf16_f32 v{x}, v{t+2*r}, v{t+2*r+1}")
            a.dsop(f"ds_write_b128 v47, v[{RX+36*p+4*i}:{RX+36*p+4*i+3}] offset:{128*p + 4096*i}")
        a.dsop(f"ds_write_b32 v48, v{A+4*p+1} offset:{32*p}")
    assert not LATE and not XTL
    a.wait_vm(ids['b'])
    for n in range(6): a.i(f"v_lshlrev_b32 v{228+n}, 16, v{228+n}")
    for n in range(6): a.i(f"v_accvgpr_write_b32 a{242+2*n}, v{228+n}")
    if PF2T == 'ln1': pf2()
    a.wait_ds(a.ds); a.i("s_barrier")
    dg.mark("ln1")
    for tt in range(2): sid = a.dsop(f"ds_read_b32 v{vSt[tt]}, v46 offset:{128*tt}")

    Q = []
    bready = {}
    def push(cost, fn, deps=(), key=None, fence=False):
        it = Item(cost, fn, list(deps), key, fence); Q.append(it); return it
    def emit(it):
        for d, dist in it.deps:
            assert d.at is not None
            gap = a.n - d.at
            if gap < min(dist, 2): a.nop(min(dist, 2) - gap)
        Q.remove(it); it.fn(); it.at = a.n
    def ready(it): return all(d.at is not None and a.n - d.at >= dist for d, dist in it.deps)
    def fill(budget):
        while budget > 0 and Q:
            pick = None
            for idx, it in enumerate(Q[:64]):
                if it.fence:
                    if idx == 0 and it.cost <= budget: pick = it
                    break
                if it.cost <= budget and ready(it): pick = it; break
            if pick is None: return
            n0 = a.n; emit(pick); budget -= max(pick.cost, a.n - n0)
    def flush_until(key):
        if not any(it.key == key for it in Q): return
        while True:
            it = Q[0]
            for idx, c in enumerate(Q[:64]):
                if c.fence or c.key == key: break
                if ready(c): it = c; break
            emit(it)
            if it.key == key: break
    def push_bload(ph, sigma, tt, addr, imm, vmw=None):
        def fn():
            if vmw: a.wait_vm(vmw)
            bready[(ph, sigma, tt)] = a.dsop(f"ds_read_b128 {breg(ph, sigma, tt)}, v{addr} offset:{imm}")
        return push(1, fn, key=('B', ph, sigma, tt), fence=bool(vmw))
    def push_barrier(key=None, vmw=None):
        def fn():
            if vmw: a.wait_vm(vmw)
            a.wait_ds(a.ds); a.i("s_barrier")
        push(2, fn, key=key, fence=True)
    def push_fence(key=None): push(0, lambda: None, key=key, fence=True)
    gq = [0]; gp = [0]
    last_t = {}; last_pk = {}
    def push_gelu8(x, waddr, wimm, tt):
        ps = gp[0] % 4; pk = PK + 4 * ps; gp[0] += 1
        cv = []
        for hq in range(2):
            ts = gq[0] % 4; gq[0] += 1
            xs = x[4*hq:4*hq+4]; t = [GT + 4 * ts + e for e in range(4)]
            fin = []
            for e in range(4):
                d0 = [(z, 0) for z in last_t.get(ts, [])]
                def f1(e=e, xs=xs, t=t):
                    a.need_mfma([xs[e]]); a.i(f"v_mul_f32 v{t[e]}, v{xs[e]}, v{xs[e]}")
                i1 = push(1, f1, d0)
                i2 = push(1, lambda e=e, t=t: a.i(f"v_fma_f32 v{t[e]}, v{t[e]}, v{vC1p[tt]}, v{vC0p[tt]}"), [(i1, DP)])
                i3 = push(1, lambda e=e, t=t, xs=xs: a.i(f"v_mul_f32 v{t[e]}, v{xs[e]}, v{t[e]}"), [(i2, DP)])
                i4 = push(2, lambda e=e, t=t: a.i(f"v_exp_f32 v{t[e]}, v{t[e]}"), [(i3, DP)])
                i5 = push(1, lambda e=e, t=t: a.i(f"v_fma_f32 v{t[e]}, v{t[e]}, v{vSt[tt]}, v{vSt[tt]}"), [(i4, DT)])
                i6 = push(2, lambda e=e, t=t: a.i(f"v_rcp_f32 v{t[e]}, v{t[e]}"), [(i5, DP)])
                i7 = push(1, lambda e=e, t=t, xs=xs: a.i(f"v_mul_f32 v{t[e]}, v{xs[e]}, v{t[e]}"), [(i6, DT)])
                fin.append(i7)
            c = []
            for e in range(2):
                dd = [(fin[2*e], DP), (fin[2*e+1], DP)] + [(z, 2) for z in last_pk.get(ps, [])]
                c.append(push(1, lambda e=e, t=t, hq=hq: a.i(f"v_cvt_pk_bf16_f32 v{pk+2*hq+e}, v{t[2*e]}, v{t[2*e+1]}"), dd))
            last_t[ts] = c; cv += c
        w = push(1, lambda: a.dsop(f"ds_write_b128 v{waddr}, v[{pk}:{pk+3}] offset:{wimm}"), [(z, 0) for z in cv])
        last_pk[ps] = [w]
    def unit(acc, t, tt): return acc + 16 * (2 * t + tt)
    def push_gelu_pair(acc, p):
        for t in range(2):
            for tt in range(2):
                for kp in range(2):
                    b = unit(acc, t, tt) + 8 * kp
                    push_gelu8(list(range(b, b + 8)), vHw, tt * 36864 + (4 * p + 2 * t + kp) * 1024, tt)
    SB = (0, 16, 36, 52)
    def push_odd_reduce(acc, first):
        first = False
        push(1, lambda: a.i(f"v_add_u32 v{vS}, s{sSw}, v3"), fence=True)
        push_fence()
        for n in range(16):
            def f(n=n):
                a.need_mfma(list(range(acc + 4*n, acc + 4*n + 4)))
                a.dsop(f"ds_write_b128 v{vS}, v[{acc+4*n}:{acc+4*n+3}] offset:{n*1024}")
            push(1, f)
        push_barrier()
        push(1, lambda: a.i(f"v_add_u32 v{vS}, s{sSr}, v3"), fence=True)
        push_fence()
        rid = {}
        for src in range(4):
            for tt in range(2):
                for jj in range(2):
                    b = acc + 16 * src + 8 * tt + 4 * jj
                    def f(b=b, src=src, tt=tt, jj=jj):
                        rid[(src, tt, jj)] = a.dsop(f"ds_read_b128 v[{b}:{b+3}], v{vS} offset:{(SB[src] + 4*tt + jj)*1024}")
                    push(1, f)
        if first:
            for jj in range(2):
                def f(jj=jj): rid[('b', jj)] = a.dsop(f"ds_read_b128 v[{GT+4*jj}:{GT+3+4*jj}], v{vBo} offset:{512 + jj*32}")
                push(1, f)
        push_fence()
        for src in range(1, 4):
            for tt in range(2):
                for jj in range(2):
                    for e in range(4):
                        def f(src=src, tt=tt, jj=jj, e=e):
                            a.wait_ds(rid[(src, tt, jj)])
                            d = acc + 8*tt + 4*jj + e
                            a.i(f"v_add_f32 v{d}, v{d}, v{d + 16*src}")
                        push(1, f)
        if first:
            for tt in range(2):
                for jj in range(2):
                    for e in range(4):
                        def f(tt=tt, jj=jj, e=e):
                            a.wait_ds(rid[('b', jj)])
                            d = acc + 8*tt + 4*jj + e
                            a.i(f"v_add_f32 v{d}, v{d}, v{GT+4*jj+e}")
                        push(1, f)
        push_fence()
    def push_store(x0, x1, sreg, imm):
        ps = gp[0] % 4; pk = PK + 4 * ps; gp[0] += 1
        c = []
        for k, xb in enumerate((x0, x0 + 2, x1, x1 + 2)):
            def f(k=k, xb=xb):
                a.need_mfma([xb, xb + 1]); a.i(f"v_cvt_pk_f16_f32 v{pk+k}, v{xb}, v{xb+1}")
            c.append(push(1, f, [(z, 2) for z in last_pk.get(ps, [])]))
        def f():
            a.i(f"s_add_u32 s{sTmp}, s{sreg}, {imm}")
            a.vmem(f"buffer_store_dwordx4 v[{pk}:{pk+3}], v{vP}, s[{sWS}:{sWS+3}], s{sTmp} offen sc1")
        last_pk[ps] = [push(2, f, [(z, 0) for z in c])]
    def push_epi(acc, p):
        for t in range(2):
            for j in range(4):
                push_store(unit(acc, t, 0) + 4*j, unit(acc, t, 1) + 4*j, sP, (16*p + 8*t + 2*j) * 131072)

    def push_x(sg):
        g, i = divmod(sg, 9)
        if i == 0 and g > 0:
            for c in range(4): push(1, lambda c=c, g=g: a.i(f"v_add_u32 v{vX[c]}, s{sDl[g-1]}, v{vX[c]}"))
        for tt in range(2): push_bload(1, sg, tt, vX[(g + i) & 3], tt * 36864 + i * 1024)
    for sg in range(3): push_x(sg)
    def fst():
        a.wait_ds(sid)
        for tt in range(2): a.i(f"v_rcp_f32 v{vC0p[tt]}, v{vSt[tt]}")
        a.i(f"s_lshl_b32 s5, s{sQ}, 1"); a.i("s_sub_u32 s5, s5, s3")
        for tt in range(2): a.i(f"v_mul_f32 v{vC1p[tt]}, v{vC0p[tt]}, v{vC0p[tt]}")
        for tt in range(2): a.i(f"v_mul_f32 v{vC1p[tt]}, v{vC1p[tt]}, v{vC0p[tt]}")
        for tt in range(2): a.i(f"v_mul_f32 v{vC1p[tt]}, {fl(C1)}, v{vC1p[tt]}")
        for tt in range(2): a.i(f"v_mul_f32 v{vC0p[tt]}, {fl(C0)}, v{vC0p[tt]}")
    push(10, fst, fence=True, key=('st',))
    def exports():
        for p in range(2):
            def f(p=p):
                a.i(f"s_add_u32 s6, s5, {p}"); a.i("s_cmp_eq_u32 s6, 0"); a.i(f"s_cselect_b32 s6, {64*p}, {WS_BYTES}")
                a.i(f"v_add_u32 v{50+p}, s6, v49")
                a.vmem(f"buffer_store_dwordx2 v[{A+4*p}:{A+4*p+1}], v{50+p}, s[{sWS}:{sWS+3}], 0 offen")
            push(5, f)
        for k, (va, cgo) in enumerate(((41, 0), (41, 8), (40, 16))):
            for h in range(2):
                def f(k=k, h=h, va=va, cgo=cgo):
                    a.wait_vm(ids['xt']); a.i(f"s_mov_b32 s6, {(cgo + h) * 16384}")
                    a.vmem(f"buffer_store_dwordx2 v[{216+4*k+2*h}:{217+4*k+2*h}], v{va}, s[{sWS}:{sWS+3}], s6 offen")
                push(2, f)
    def bias_mfma(acc, n0):
        for t in range(2):
            for tt in range(2):
                d = unit(acc, t, tt); ab = 242 + 2 * (n0 + t) - 2 * tt; bb = 26 + 2 * tt
                a.i(f"v_mfma_f32_32x32x16_bf16 v[{d}:{d+15}], a[{ab}:{ab+3}], v[{bb}:{bb+3}], 0")
                a.mfma_wrote(d, 16); fill(SLOTS - 1)
    def areg(k, t): return 224 + 8 * (k % 2) + 4 * t
    tr_id = {}
    def tr(k, t):
        st = steps[k]; b = areg(k, t); jo = 512 if st['ph'] == 1 else 1024
        a.wait_vm(dma_id[k])
        a.dsop(f"ds_read_b64_tr_b16 a[{b}:{b+1}], v{vT[st['ph']][t]} offset:{(k % NR)*2048}")
        tr_id[(k, t)] = a.dsop(f"ds_read_b64_tr_b16 a[{b+2}:{b+3}], v{vT[st['ph']][t]} offset:{(k % NR)*2048 + jo}")
    tr(0, 0); tr(0, 1)
    flush_until(('st',))
    for sg in range(3, 9): push_x(sg)
    def event(tag):
        if tag == ('O1', 0): bias_mfma(R2, 0)
        if tag == ('P0', 0): a.raw('; SCOUTEND')
        if tag == ('P0', 0): a.wait_vm(ids['pf']); bias_mfma(R1, 2)
        if tag == PF2T: pf2()
        if PF2AT == 3 and tag[0] == 'P0':
            for j in range(16):
                if j * PF2S // 2 == tag[1]:
                    a.i(f"s_cmp_lg_u32 s96, {j}"); a.i(f"s_cbranch_scc1 ka_pf{j}")
                    for jj in range(2): a.i(f"buffer_load_dword v{61+jj}, v{58+jj}, s[{sW2}:{sW2+3}], 0 offen")
                    a.raw(f"ka_pf{j}:"); a.n -= 2
        if tag == ('P0', XE - 9 + 1):
            push_barrier()
            push_odd_reduce(R2, True)
            for tt in range(2):
                push_gelu8(list(range(R2 + 8*tt, R2 + 8*tt + 8)), vHo[0], tt * 36864, tt)
            push_barrier(('B4',))
        if tag == ('P1', 0):
            flush_until(('B4',)); a.wait_vm(ids.get('pf2', 0))
            push_gelu_pair(R1, 0)
            bias_mfma(R2, 4)
            for g in range(4):
                i1 = push(1, lambda g=g: a.i(f"v_sub_u32 v{vX[g]}, v{vHo[g]}, v3"))
                i2 = push(1, lambda g=g: a.i(f"v_add_u32 v{vX[g]}, {(-32768) & 0xffffffff}, v{vX[g]}"), [(i1, 0)])
                push(1, lambda g=g: a.i(f"v_lshl_add_u32 v{vX[g]}, v{vX[g]}, 3, v3"), [(i2, 0)])
            push_barrier(('B5',))
        if tag == ('D0s1', 0):
            flush_until(('B5',))
            for n in range(20):
                g, i = divmod(n, 5)
                for tt in range(2):
                    if i < 4: push_bload(2, ('s1', n), tt, vX[g], tt * 36864 + i * 1024)
                    else: push_bload(2, ('s1', n), tt, vHo[g], tt * 36864)
            flush_until(('B', 2, ('s1', 1), 1))
            push_gelu_pair(R2, 1)
            push_barrier(('B6',))
            for n in range(16):
                g, i = divmod(n, 4)
                for tt in range(2): push_bload(2, ('s2', n), tt, vX[g], tt * 36864 + (4 + i) * 1024)
            push_barrier(('B7',))
        def epi1(acc, p, n):
            t, j = divmod(n, 4)
            push_store(unit(acc, t, 0) + 4*j, unit(acc, t, 1) + 4*j, sP, (16*p + 8*t + 2*j) * 131072)
        if tag[0] == 'D1s2' and tag[1] % 2 == 0: epi1(R1, 0, tag[1] // 2)
        if tag == ('O2', 0):
            push_fence(('epi0',)); flush_until(('epi0',))
        if tag[0] == 'O2' and tag[1] < 8: epi1(R3, 1, tag[1])
    for k, st in enumerate(steps):
        if st['tag'] in (('P0',0),('P1',0),('D0s1',0),('D1s1',0),('D0s2',0),('D1s2',0),('O2',0)): dg.mark(str(st['tag']))
        for sg in range(9, 36):
            if (sg - 9) * (XE - XB) // 26 + XB == k: push_x(sg)
        if k == 2: exports()
        event(st['tag'])
        ph, sg, acc = st['ph'], st['sigma'], st['acc']
        for m in range(4):
            t, tt = divmod(m, 2)
            if (ph, sg, tt) not in bready: flush_until(('B', ph, sg, tt))
            a.wait_ds(max(bready[(ph, sg, tt)], tr_id[(k, t)]))
            d = unit(acc, t, tt)
            if st['cinit'] == 'zero': c = "0"
            elif st['cinit'] == 'bias':
                flush_until(('bias', acc, t, 3)); a.wait_ds(bready[('bias', acc, t)])
                cb = unit(acc, t, 1); c = f"v[{cb}:{cb+15}]"
            else: c = f"v[{d}:{d+15}]"
            ab = areg(k, t)
            n0 = a.n
            a.i(f"v_mfma_f32_32x32x16_bf16 v[{d}:{d+15}], a[{ab}:{ab+3}], {breg(ph, sg, tt)}, {c}")
            a.mfma_wrote(d, 16)
            if m == 0 and k + 1 < NS: tr(k + 1, 0)
            if m == 1 and k + 1 < NS: tr(k + 1, 1)
            if m == 2 and k + NR < NS: dma(k + NR)
            used = a.n - n0 - 1
            fill(SLOTS - used - (1 if m in (1, 3) else 0))
    dg.mark("last")
    push_odd_reduce(R1, False)
    for jj in range(2):
        push_store(R1 + 4*jj, R1 + 8 + 4*jj, sPo, jj * 2 * 131072)
    push_fence(('fin',)); flush_until(('fin',))
    dg.dump(54, sQ, 4, 28)
    a.raw("ka_end:")
    a.i("s_endpgm")
    return a.text(), kd(name, 512, 256)
```

```python
from common import *
import math
CS = 4416; KCH = 4 * CS; RS = 144; U1 = 48 * RS + 128; UCH = 13968
U_OFF = 4 * KCH
SC_OFF = U_OFF + 4 * UCH
K3_LDS = SC_OFF + 32768
YS = 4096 + 64
CHB = 27984; BT = 11088; TS = 1808
T_OFF = SC_OFF + 16384
SCL_OFF = T_OFF + 4 * TS
ST_OFF = XU_OFF
L2E = math.log2(math.e)
L2E_hi = struct.unpack("<f", struct.pack("<f", L2E))[0]
L2E_lo = L2E - L2E_hi
sWS, sOUT = 8, 12
PB = 192
XN0, XN1 = [int(x) for x in os.environ.get('XNS', '16,16').split(',')]
P_EARLY, P_A, P_B, P_C, P_D, F_S, F_N = [int(x) for x in os.environ.get('PSCH', '0,2,4,4,1,12,4').split(',')]
def gen():
    a = Asm(); name = "kb_kernel"
    header(a, name)
    a.i("s_cmp_ge_u32 s2, 144"); a.i("s_cbranch_scc1 kb_end")
    dg = Diag(a, 2); dg.start(); dg.mark("start")
    a.i("s_load_dwordx16 s[32:47], s[0:1], 0")
    a.i("s_load_dwordx2 s[48:49], s[0:1], 128")
    a.i("s_load_dwordx4 s[52:55], s[0:1], 104")
    a.i("s_load_dwordx2 s[50:51], s[0:1], 64")
    a.i("v_lshrrev_b32 v1, 6, v0"); a.i("v_and_b32 v2, 63, v0")
    a.i("v_readfirstlane_b32 s20, v1")
    a.i("s_and_b32 s3, s2, 7"); a.i("s_lshr_b32 s4, s2, 3")
    a.i("s_lshl_b32 s5, s3, 4"); a.i("s_add_u32 s5, s5, s4")
    a.i("s_lshl_b32 s6, s3, 1"); a.i("s_add_u32 s6, s6, s4"); a.i("s_add_u32 s6, s6, 112")
    a.i("s_cmp_lt_u32 s4, 16"); a.i("s_cselect_b32 s21, s5, s6")
    a.i("s_lshr_b32 s22, s20, 1"); a.i("s_and_b32 s23, s20, 1")
    a.i("s_lshl_b32 s24, s21, 2"); a.i("s_add_u32 s24, s24, s22")
    a.i("s_lshl_b32 s5, s24, 8"); a.i("v_lshl_add_u32 v3, v2, 2, s5")
    a.i("s_lshl_b32 s5, s24, 1"); a.i("v_mov_b32 v4, s5")
    a.i("v_lshrrev_b32 v156, 4, v0"); a.i("v_and_b32 v157, 15, v0")
    a.i("v_lshlrev_b32 v158, 6, v156"); a.i("v_lshl_add_u32 v158, v157, 1, v158")
    a.i("s_lshl_b32 s6, s21, 14"); a.i("v_lshl_add_u32 v190, v158, 3, s6")
    a.i(f"v_lshlrev_b32 v189, 3, v158"); a.i(f"v_add_u32 v189, {ST_OFF}, v189")
    a.i("v_lshlrev_b32 v188, 9, v156"); a.i("v_lshl_add_u32 v188, v157, 4, v188")
    a.i(f"s_mul_i32 s25, s22, {CHB}")
    a.i(f"s_mul_i32 s26, s22, {TS}"); a.i(f"s_add_u32 s26, s26, {T_OFF}")
    a.i("s_waitcnt lgkmcnt(0)")
    for k, sb in enumerate((34, 36, 38, 40, 42, 44)):
        a.vmem(f"global_load_dword v{10+k}, v3, s[{sb}:{sb+1}]")
    pm = a.vmem("global_load_ushort v16, v4, s[46:47]")
    a.vmem("global_load_dwordx4 v[172:175], v190, s[48:49]"); a.vmem("global_load_dwordx4 v[176:179], v190, s[48:49] offset:256")
    a.vmem("global_load_dwordx4 v[180:183], v189, s[48:49]"); xs = a.vmem("global_load_dwordx4 v[184:187], v189, s[48:49] offset:256")
    srd(a, sWS, 48, WS_BYTES); srd(a, sOUT, 54, 2359296)
    a.i("s_lshl_b32 s5, s21, 3")
    a.i("s_add_u32 s56, s50, s5"); a.i("s_addc_u32 s57, s51, 0")
    a.i("s_load_dwordx2 s[16:17], s[56:57], 0")
    a.i("s_add_u32 s56, s52, s5"); a.i("s_addc_u32 s57, s53, 0")
    a.i("s_load_dwordx2 s[18:19], s[56:57], 0")
    a.i("s_lshl_b32 s27, s21, 17"); a.i(f"s_add_u32 s27, s27, {PART_OFF}")
    pn = [0]; pid = {}
    def part(cnt):
        for _ in range(cnt):
            n = pn[0]
            if n >= 16: return
            pn[0] += 1
            s_, u = divmod(n, 2)
            if u == 0 and s_ > 0: a.i(f"s_add_u32 s27, s27, 16384")
            pid[n] = a.vmem(f"buffer_load_dwordx4 v[{PB+8*s_+4*u}:{PB+3+8*s_+4*u}], v188, s[{sWS}:{sWS+3}], s27 offen offset:{256*u}")
    part(P_EARLY)
    a.raw('; SCOUT')
    a.i("s_lshl_b32 s5, s23, 10"); a.i("s_sub_u32 s5, 2047, s5")
    a.i("v_lshlrev_b32 v5, 4, v2"); a.i("v_sub_u32 v5, s5, v5")
    for e in range(0, 20, 2):
        a.i(f"v_subrev_u32 v6, {e}, v5"); a.i(f"v_subrev_u32 v7, {e+1}, v5")
        a.i("v_cvt_f32_u32 v8, v6"); a.i("v_cvt_f32_u32 v9, v7")
        a.i("v_cvt_pk_bf16_f32 v8, v8, v9")
        a.i("v_min_u32 v6, 256, v6"); a.i("v_min_u32 v7, 256, v7")
        a.i("v_lshrrev_b32 v9, 16, v8"); a.i("v_and_b32 v8, 0xffff, v8")
        a.i(f"v_add_u32 v8, {(-0x4280) & 0xffffffff}, v8"); a.i(f"v_add_u32 v9, {(-0x4280) & 0xffffffff}, v9")
        a.i("v_max_i32 v6, v6, v8"); a.i("v_max_i32 v7, v7, v9")
        if e >= 16: a.i("v_min_u32 v6, 896, v6"); a.i("v_min_u32 v7, 896, v7")
        a.i(f"v_lshl_add_u32 v{64+e}, v6, 1, s26"); a.i(f"v_lshl_add_u32 v{65+e}, v7, 1, s26")
    a.i("v_mov_b32 v8, 0"); a.i("v_mov_b32 v9, s26")
    a.i("s_mov_b64 exec, 1"); a.dsop("ds_write_b32 v9, v8 offset:1792"); a.i("s_mov_b64 exec, -1")
    a.i("v_and_b32 v6, 15, v2")
    a.i("s_lshl_b32 s5, s23, 4")
    a.i("v_add_u32 v6, s5, v6")
    a.i("v_lshrrev_b32 v7, 4, v2")
    a.i("v_max_u32 v8, 1, v7")
    a.i("v_sub_u32 v8, 4, v8")
    a.i("v_lshlrev_b32 v8, v8, v6")
    a.i("v_lshlrev_b32 v9, 2, v7")
    a.i("v_lshlrev_b32 v17, 7, v7")
    a.i("v_cmp_gt_u32 vcc, 2, v7")
    a.i("s_nop 1")
    a.i("v_cndmask_b32 v9, v17, v9, vcc")
    a.i("v_add_u32 v8, v8, v9")
    a.i("v_lshl_add_u32 v150, v8, 1, s26")
    a.i("v_cmp_eq_u32 vcc, 3, v7")
    a.i("v_mov_b32 v9, 4")
    a.i("v_mov_b32 v17, 128")
    a.i("v_cndmask_b32 v9, v9, v17, vcc")
    a.i("v_add_u32 v151, v150, v9")
    a.i("v_min_u32 v9, 2, v7")
    a.i("v_lshlrev_b32 v9, 7, v9")
    a.i("v_add3_u32 v9, v9, v6, 0")
    a.i("v_add_u32 v9, 512, v9")
    a.i("v_lshl_add_u32 v152, v9, 1, s26")
    a.i("v_and_b32 v8, 15, v2")
    a.i("v_mul_u32_u24 v8, 528, v8")
    a.i("v_lshl_add_u32 v8, v7, 4, v8")
    a.i("v_add_u32 v153, s25, v8")
    a.i(f"s_mul_i32 s5, s23, {16*528}")
    a.i(f"s_add_u32 s5, s5, {BT}")
    a.i("v_add_u32 v154, s5, v153")
    a.i("v_lshl_add_u32 v155, v2, 3, s25")
    a.i("v_lshlrev_b32 v170, 4, v2"); a.i("v_lshrrev_b32 v169, 5, v2")
    a.i(f"s_mul_i32 s6, s22, {KCH}"); a.i("s_lshl_b32 s7, s23, 11"); a.i("s_add_u32 s6, s6, s7"); a.i("v_lshl_add_u32 v160, v2, 5, s6")
    for r in range(144, 148): a.i(f"v_mov_b32 v{r}, 0")
    a.i(f"s_mul_i32 s6, s22, {UCH}"); a.i(f"s_mul_i32 s7, s23, {U1}"); a.i("s_add_u32 s6, s6, s7"); a.i(f"s_add_u32 s6, s6, {U_OFF}")
    a.i("v_add_u32 v161, s6, v170"); a.i("v_min_u32 v162, 15, v2"); a.i("v_lshl_add_u32 v162, v162, 4, s6")
    a.i(f"s_mul_i32 s7, s23, {16*RS}"); a.i("s_add_u32 s6, s6, s7"); a.i("v_mov_b32 v163, s6")
    a.i(f"s_mul_i32 s6, s22, {KCH}"); a.i(f"s_mul_i32 s7, s23, {2*CS}"); a.i("s_add_u32 s6, s6, s7")
    a.i("v_min_u32 v164, 6, v2"); a.i("v_lshl_add_u32 v164, v164, 4, s6")
    a.i(f"v_mul_u32_u24 v165, {RS}, v156"); a.i("v_lshl_add_u32 v165, v157, 2, v165"); a.i(f"v_add_u32 v165, {U_OFF + 16*RS}, v165")
    a.i("v_cmp_lt_u32 vcc, 13, v157"); a.i("v_mov_b32 v166, 0"); a.i("v_mov_b32 v6, 16")
    a.i("v_cndmask_b32 v166, v166, v6, vcc"); a.i("v_add_u32 v166, v165, v166")
    a.i("v_and_b32 v167, 3, v2"); a.i(f"v_mul_u32_u24 v167, {CS}, v167")
    a.i("v_bfe_u32 v6, v2, 2, 3"); a.i("v_add_u32 v6, v6, v169"); a.i("v_lshlrev_b32 v6, 4, v6"); a.i("v_sub_u32 v167, v167, v6")
    a.i(f"s_mul_i32 s6, s22, {KCH}"); a.i("s_lshl_b32 s7, s23, 10"); a.i("s_sub_u32 s6, s6, s7"); a.i(f"s_add_u32 s6, s6, {576*2}")
    a.i("v_add_u32 v167, s6, v167")
    a.i("v_bfe_u32 v168, v2, 1, 4"); a.i(f"v_mul_u32_u24 v168, {RS}, v168")
    a.i("v_and_b32 v6, 1, v2"); a.i("v_xor_b32 v6, 1, v6"); a.i(f"v_mul_u32_u24 v6, {U1}, v6"); a.i("v_add_u32 v168, v168, v6")
    a.i("v_lshlrev_b32 v6, 4, v169"); a.i("v_sub_u32 v168, v168, v6")
    a.i(f"s_mul_i32 s6, s22, {UCH}"); a.i(f"s_mul_i32 s7, s23, {8*RS}"); a.i("s_sub_u32 s6, s6, s7"); a.i(f"s_add_u32 s6, s6, {U_OFF}")
    a.i("v_add_u32 v168, s6, v168"); a.i("v_mov_b32 v171, v158")
    dg.mark("pre")
    a.wait_vm(pm)
    dg.mark("loaded")
    part(P_A)
    if int(os.environ.get('PT', '7')) & 4:
        a.i("v_mul_u32_u24 v148, 36864, v2"); a.vmem(f"buffer_load_dword v191, v148, s[{sOUT}:{sOUT+3}], 0 offen")
    a.i("v_lshlrev_b32 v16, 16, v16")
    a.i(f"v_mul_f32 v17, {fl(L2E_hi)}, v16")
    a.i(f"v_mov_b32 v18, {fl(L2E_hi)}")
    a.i("v_fma_f32 v18, v16, v18, -v17")
    a.i(f"v_fmac_f32 v18, {fl(L2E_lo)}, v16")
    a.i("v_exp_f32 v17, v17")
    a.i(f"v_mul_f32 v18, {fl(math.log(2.0))}, v18")
    a.i("v_fmac_f32 v17, v17, v18")
    a.i("v_cvt_pk_bf16_f32 v17, v17, v17")
    a.i("v_lshlrev_b32 v16, 16, v17")
    a.i("v_lshlrev_b32 v20, 16, v10"); a.i("v_and_b32 v21, 0xffff0000, v10")
    a.i("v_lshlrev_b32 v22, 16, v11"); a.i("v_and_b32 v23, 0xffff0000, v11")
    for r in (20, 21, 22, 23): a.i(f"v_mul_f32 v{r}, v16, v{r}")
    for r in (20, 21): a.i(f"v_mul_f32 v{r}, {fl(L2E)}, v{r}")
    for r in (22, 23): a.i(f"v_mul_f32 v{r}, 0.15915494, v{r}")
    def direct(dst, vv):
        for m in range(2):
            a.i(f"v_mul_f32 v{24+m}, {fl(float(vv))}, v{20+m}")
            a.i(f"v_mul_f32 v{26+m}, {fl(float(vv))}, v{22+m}")
        for m in range(2):
            a.i(f"v_exp_f32 v{24+m}, v{24+m}")
            a.i(f"v_fract_f32 v{26+m}, v{26+m}")
        for m in range(2):
            a.i(f"v_cos_f32 v{28+m}, v{26+m}")
            a.i(f"v_sin_f32 v{30+m}, v{26+m}")
        a.i("s_nop 0")
        for m in range(2):
            a.i(f"v_mul_f32 v{dst+2*m}, v{24+m}, v{28+m}")
            a.i(f"v_mul_f32 v{dst+2*m+1}, v{24+m}, v{30+m}")
    def put(z, off, t):
        a.i(f"v_cvt_pk_f16_f32 v{t}, v{z}, v{z+1}")
        a.i(f"v_cvt_pk_f16_f32 v{t+1}, v{z+2}, v{z+3}")
        a.dsop(f"ds_write_b64 v155, v[{t}:{t+1}] offset:{off}")
    def cm2(d, z, w, t):
        for m in range(2): a.i(f"v_pk_mul_f32 v[{t+2*m}:{t+2*m+1}], v[{z+2*m}:{z+2*m+1}], v[{w+2*m}:{w+2*m+1}] op_sel:[0,0] op_sel_hi:[0,1]")
        for m in range(2): a.i(f"v_pk_fma_f32 v[{d+2*m}:{d+2*m+1}], v[{z+2*m}:{z+2*m+1}], v[{w+2*m}:{w+2*m+1}], v[{t+2*m}:{t+2*m+1}] op_sel:[1,1,0] op_sel_hi:[1,0,1] neg_lo:[1,0,0]")
    a.i("s_cmp_eq_u32 s23, 1")
    a.i("s_cbranch_scc1 kb_hi")
    direct(32, 8)
    direct(40, 128)
    a.i("v_mov_b32 v36, 1.0"); a.i("v_mov_b32 v37, 0"); a.i("v_mov_b32 v38, 1.0"); a.i("v_mov_b32 v39, 0")
    for r in range(16):
        put(36, BT + r * 528, 52 + 4 * (r & 1))
        put(40, BT + (16 + r) * 528, 54 + 4 * (r & 1))
        if r < 15:
            cm2(36, 36, 32, 44)
            cm2(40, 40, 32, 48)
    a.i("s_branch kb_join")
    a.raw("kb_hi:")
    a.i("v_xor_b32 v22, 0x80000000, v22"); a.i("v_xor_b32 v23, 0x80000000, v23")
    for k, src in enumerate((12, 13, 14, 15)):
        a.i(f"v_lshlrev_b32 v{40+2*k}, 16, v{src}"); a.i(f"v_and_b32 v{41+2*k}, 0xffff0000, v{src}")
    for r in (40, 41, 42, 43): a.i(f"v_mul_f32 v{r}, v16, v{r}")
    for m in range(2):
        a.i(f"v_mul_f32 v{36+2*m}, v{44+m}, v{40+m}")
        a.i(f"v_fma_f32 v{36+2*m}, -v{46+m}, v{42+m}, v{36+2*m}")
        a.i(f"v_mul_f32 v{37+2*m}, v{44+m}, v{42+m}")
        a.i(f"v_fma_f32 v{37+2*m}, -v{46+m}, v{40+m}, -v{37+2*m}")
    a.i("v_max3_f32 v48, abs(v36), abs(v37), abs(v38)")
    a.i("v_max_f32 v49, abs(v39), abs(v39)")
    a.i("v_max_f32 v48, v48, v49")
    for rr in (8, 4, 2, 1):
        a.i("s_nop 1")
        a.i(f"v_max_f32_dpp v48, v48, v48 row_ror:{rr} row_mask:0xf bank_mask:0xf")
    a.i("s_nop 1")
    for k, ln in enumerate((0, 16, 32, 48)): a.i(f"v_readlane_b32 s{56+k}, v48, {ln}")
    a.i("s_nop 3")
    a.i("s_max_u32 s56, s56, s57"); a.i("s_max_u32 s58, s58, s59"); a.i("s_max_u32 s56, s56, s58")
    a.i("s_lshr_b32 s56, s56, 23")
    a.i("s_max_u32 s56, s56, 1"); a.i("s_min_u32 s56, s56, 253")
    a.i("s_sub_u32 s57, 254, s56"); a.i("s_lshl_b32 s57, s57, 23")
    a.i("s_lshl_b32 s56, s56, 23")
    for r in (36, 37, 38, 39): a.i(f"v_mul_f32 v{r}, s57, v{r}")
    direct(32, 1)
    direct(40, 256)
    cm2(56, 36, 40, 44)
    cm2(60, 32, 32, 48)
    put(36, 0, 52)
    cm2(86, 60, 60, 48)
    put(56, 8 * 528, 54)
    cm2(94, 56, 60, 44)
    cm2(36, 36, 32, 48); put(94, 9 * 528, 90); put(36, 1 * 528, 52)
    cm2(94, 94, 60, 44); cm2(36, 36, 32, 48); put(94, 10 * 528, 90); put(36, 2 * 528, 52)
    cm2(94, 94, 60, 44); cm2(36, 36, 32, 48); put(94, 11 * 528, 90); put(36, 3 * 528, 52)
    cm2(56, 56, 40, 44); cm2(36, 36, 32, 48); put(56, 12 * 528, 90); put(36, 4 * 528, 52)
    cm2(94, 56, 86, 44); cm2(36, 36, 32, 48); put(94, 13 * 528, 90); put(36, 5 * 528, 52)
    cm2(56, 56, 40, 44); cm2(36, 36, 32, 48); put(56, 14 * 528, 90); put(36, 6 * 528, 52)
    cm2(94, 56, 86, 44); cm2(36, 36, 32, 48); put(94, 15 * 528, 90); put(36, 7 * 528, 52)
    for row in range(16, 21):
        cm2(56, 56, 40, 44); put(56, row * 528, 52 + 2 * (row & 1))
    a.i("v_mov_b32 v48, s56"); a.i(f"s_lshl_b32 s5, s22, 2"); a.i("v_mov_b32 v49, s5")
    a.i(f"ds_write_b32 v49, v48 offset:{0}") if False else None
    a.i(f"v_add_u32 v49, {SCL_OFF}, v49"); a.i("s_mov_b64 exec, 1"); a.i("ds_write_b32 v49, v48"); a.i("s_mov_b64 exec, -1")
    a.raw("kb_join:")
    a.i("s_waitcnt lgkmcnt(0)"); a.ds_done = a.ds
    a.i("s_barrier")
    dg.mark("tables")
    part(P_B)
    def fr(k):
        b = 96 + 12 * (k % 4)
        a.dsop(f"ds_read_b128 v[{b}:{b+3}], v153 offset:{k*64}")
        a.dsop(f"ds_read_b128 v[{b+4}:{b+7}], v153 offset:{k*64 + 16*528}")
        return a.dsop(f"ds_read_b128 v[{b+8}:{b+11}], v154 offset:{k*64}")
    ids = {k: fr(k) for k in range(4)}
    a.i("s_lshl_b32 s5, s22, 2"); a.i(f"s_add_u32 s5, s5, {SCL_OFF}"); a.i("v_mov_b32 v15, s5")
    a.dsop("ds_read_b32 v15, v15")
    XN = []
    pool = list(range(84, 96)) + list(range(60, 64))
    def unp(d, s_): XN.extend([f"v_lshlrev_b32 v{d}, 16, v{s_}", f"v_and_b32 v{d+1}, 0xffff0000, v{s_}"])
    for k in range(4): XN.append(f"v_rcp_f32 v{52+2*k}, v{181+2*k}")
    for k in range(4): XN.extend([f"v_mov_b32 v{16+4*k}, v{172+2*k}", f"v_mov_b32 v{17+4*k}, v{173+2*k}"])
    for pr in range(2):
        KH = [(k, h) for k in (2*pr, 2*pr+1) for h in range(2)]
        def e(k, h): return pool[8*(k % 2) + 2*h]
        def q(k, h): return pool[8*(k % 2) + 4 + 2*h]
        def P(r): return f"v[{r}:{r+1}]"
        for k, h in KH: unp(e(k, h), 172 + 2*k + h)
        for k, h in KH: XN.append(f"v_pk_add_f32 {P(e(k,h))}, {P(e(k,h))}, {P(180+2*k)} op_sel:[0,0] op_sel_hi:[1,0] neg_lo:[0,1] neg_hi:[0,1]")
        for k, h in KH: XN.append(f"v_cvt_pk_bf16_f32 v{18+4*k+h}, v{e(k,h)}, v{e(k,h)+1}")
        for k, h in KH: unp(e(k, h), 18 + 4*k + h)
        for k, h in KH: XN.append(f"v_pk_mul_f32 {P(q(k,h))}, {P(e(k,h))}, {P(52+2*k)} op_sel:[0,0] op_sel_hi:[1,0]")
        for k, h in KH: XN.append(f"v_pk_fma_f32 {P(e(k,h))}, {P(q(k,h))}, {P(180+2*k)}, {P(e(k,h))} op_sel:[0,1,0] op_sel_hi:[1,1,1] neg_lo:[1,0,0] neg_hi:[1,0,0]")
        for k, h in KH: XN.append(f"v_pk_fma_f32 {P(q(k,h))}, {P(e(k,h))}, {P(52+2*k)}, {P(q(k,h))} op_sel:[0,0,0] op_sel_hi:[1,0,1]")
        for k, h in KH: XN.append(f"v_cvt_pk_bf16_f32 v{18+4*k+h}, v{q(k,h)}, v{q(k,h)+1}")
        for k, h in KH: unp(e(k, h), 18 + 4*k + h)
        for c in range(4): XN.append(f"v_cvt_pk_f16_f32 v{32+4*pr+c}, v{e(2*pr, c//2) + c%2}, v{e(2*pr+1, c//2) + c%2}")
    def xn(n):
        for _ in range(n):
            if XN: a.i(XN.pop(0))
    a.wait_vm(xs)
    xn(XN0)
    for k in range(8):
        b = 96 + 12 * (k % 4)
        a.wait_ds(ids[k])
        c0 = "0" if k == 0 else "v[40:43]"; c1 = "0" if k == 0 else "v[44:47]"
        a.i(f"v_mfma_f32_16x16x32_f16 v[40:43], v[{b}:{b+3}], v[{b+8}:{b+11}], {c0}")
        a.i(f"v_mfma_f32_16x16x32_f16 v[44:47], v[{b+4}:{b+7}], v[{b+8}:{b+11}], {c1}")
        xn(4)
        if k + 4 < 8: ids[k + 4] = fr(k + 4)
        if k == 3: xn(XN1)
    xn(10)
    a.i("v_cvt_pk_f16_f32 v48, v40, v41"); a.i("v_cvt_pk_f16_f32 v49, v42, v43")
    a.i("v_cvt_pk_f16_f32 v50, v44, v45"); a.i("v_cvt_pk_f16_f32 v51, v46, v47")
    a.dsop("ds_write_b32 v150, v48"); a.dsop("ds_write_b32 v151, v49")
    a.dsop("ds_write_b16 v152, v50"); a.dsop("ds_write_b16_d16_hi v152, v50 offset:64")
    a.dsop("ds_write_b16 v152, v51 offset:128"); a.dsop("ds_write_b16_d16_hi v152, v51 offset:192")
    xn(8)
    a.i("s_waitcnt lgkmcnt(0)"); a.ds_done = a.ds
    a.i("s_barrier")
    dg.mark("T")
    for e_ in range(19): gid = a.dsop(f"ds_read_u16 v{96 + e_}, v{64+e_}")
    a.dsop("ds_write_b128 v161, v[144:147]"); a.dsop("ds_write_b128 v161, v[144:147] offset:1024")
    a.i("s_mov_b64 exec, 0xffff"); a.dsop("ds_write_b128 v162, v[144:147] offset:2048")
    a.i("s_mov_b64 exec, 1"); a.dsop("ds_write_b64 v163, v[144:145]")
    a.i("s_mov_b64 exec, 0x7f")
    a.dsop("ds_write_b128 v164, v[144:147] offset:4096"); a.dsop(f"ds_write_b128 v164, v[144:147] offset:{4096+CS}")
    a.i("s_mov_b64 exec, -1")
    part(P_C)
    xn(1000)
    for c in range(4):
        a.dsop(f"ds_write_b32 v165, v{32+c} offset:{c*UCH}"); a.dsop(f"ds_write_b32 v165, v{32+c} offset:{c*UCH + U1 + 8}")
    a.wait_ds(gid)
    for c in range(4):
        for e_ in range(8): a.i(f"v_lshl_or_b32 v{64+8*c+e_}, v{96+2*e_+1+3-c}, 16, v{96+2*e_+3-c}")
        a.dsop(f"ds_write_b128 v160, v[{64+8*c}:{67+8*c}] offset:{c*CS}"); a.dsop(f"ds_write_b128 v160, v[{68+8*c}:{71+8*c}] offset:{c*CS+16}")
        a.dsop(f"ds_write_b32 v165, v{36+c} offset:{c*UCH + 64}"); a.dsop(f"ds_write_b32 v166, v{36+c} offset:{c*UCH + U1 + 8 + 64}")
    a.i("v_mov_b32 v12, v167"); a.i("v_mov_b32 v14, v168"); a.i("v_mov_b32 v13, v169"); a.i("v_mov_b32 v8, v170"); a.i("v_mov_b32 v5, v171")
    a.i("s_waitcnt lgkmcnt(0)"); a.ds_done = a.ds
    a.i("s_barrier")
    dg.mark("conv")
    def zoff(z): return (z // 64) * RS + (z % 64) * 2
    def loads(st):
        b = 64 + 16 * (st % 3)
        ya = (31 - st) * 32
        zb = 1024 + 56 - 16 * st
        a.dsop(f"ds_read_b128 v[{b}:{b+3}], v12 offset:{ya + 2048}")
        a.dsop(f"ds_read_b128 v[{b+4}:{b+7}], v14 offset:{zoff(zb)}")
        i1 = a.dsop(f"ds_read_b128 v[{b+8}:{b+11}], v14 offset:{zoff(zb + 1024)}")
        i2 = a.dsop(f"ds_read_b128 v[{b+12}:{b+15}], v12 offset:{ya}")
        return i1, i2
    F = []
    SU, TT_, XX = 112, 32, 48
    def rnd2(d0, d1, t, L=None):
        o = [f"v_cvt_pk_bf16_f32 v{t}, v{d0}, v{d1}", f"v_lshlrev_b32 v{d0}, 16, v{t}", f"v_and_b32 v{d1}, 0xffff0000, v{t}"]
        return o
    for k in range(2):
        F += [f"s_lshl_b32 s{56+2*k}, s{16+k}, 16", f"s_and_b32 s{57+2*k}, s{16+k}, 0xffff0000", f"s_lshl_b32 s{60+2*k}, s{18+k}, 16", f"s_and_b32 s{61+2*k}, s{18+k}, 0xffff0000"]
    for k in range(4):
        for c in range(4):
            sh = "v_lshlrev_b32 v{d}, 16, v{s}" if c % 2 == 0 else "v_and_b32 v{d}, 0xffff0000, v{s}"
            F.append(sh.format(d=TT_ + 4*k + c, s=18 + 4*k + c // 2))
            F.append(sh.format(d=XX + 4*k + c, s=16 + 4*k + c // 2))
    for k in range(16): F.append(f"v_mul_f32 v{TT_+k}, s{56 + k % 4}, v{TT_+k}")
    def rnd_all(base):
        o = []
        for g in range(2):
            tr_ = [rnd2(base + 8*g + 2*k, base + 8*g + 2*k + 1, 16 + k) for k in range(4)]
            for j in range(3): o += [t[j] for t in tr_]
        return o
    F += rnd_all(TT_)
    for s_ in range(1, 8):
        F.append(('vm', 2 * s_ + 1))
        for r in range(8):
            for hh in range(2):
                d = SU + 2*r + hh
                if s_ == 1: F.append(f"v_fma_mix_f32 v{d}, v{PB+r}, 1.0, v{PB+8+r} op_sel:[{hh},0,{hh}] op_sel_hi:[1,0,1]")
                else: F.append(f"v_fma_mix_f32 v{d}, v{PB+8*s_+r}, 1.0, v{d} op_sel:[{hh},0,0] op_sel_hi:[1,0,0]")
    F += rnd_all(SU)
    for k in range(16): F.append(f"v_add_f32 v{SU+k}, s{60 + k % 4}, v{SU+k}")
    F += rnd_all(SU)
    def fill(n):
        while n > 0 and F:
            f = F.pop(0)
            if isinstance(f, tuple): a.wait_vm(pid[f[1]])
            else: a.i(f); n -= 1
    ld = {0: loads(0), 1: loads(1)}
    for st in range(32):
        b = 64 + 16 * (st % 3)
        if st + 2 < 32: ld[st + 2] = loads(st + 2)
        a.wait_ds(ld[st][0])
        c0 = "0" if st == 0 else "v[128:143]"; c1 = "0" if st == 0 else "v[144:159]"
        nf = F_N if st >= F_S else (3 if any(isinstance(f, tuple) for f in F[12:]) and not any(isinstance(f, tuple) for f in F[:12]) else 0)
        a.i(f"v_mfma_f32_32x32x16_f16 v[128:143], v[{b}:{b+3}], v[{b+4}:{b+7}], {c0}")
        fill(nf)
        a.i(f"v_mfma_f32_32x32x16_f16 v[144:159], v[{b}:{b+3}], v[{b+8}:{b+11}], {c1}")
        part(P_D)
        fill(nf)
        a.wait_ds(ld[st][1])
        a.i(f"v_mfma_f32_32x32x16_f16 v[144:159], v[{b+12}:{b+15}], v[{b+4}:{b+7}], v[144:159]")
        fill(nf)
    dg.mark("convend")
    a.i(f"s_lshl_b32 s6, s20, 12"); a.i(f"s_add_u32 s6, s6, {SC_OFF}"); a.i("v_add_u32 v9, s6, v8")
    a.i("s_xor_b32 s7, s20, 1"); a.i("s_lshl_b32 s7, s7, 12"); a.i(f"s_add_u32 s7, s7, {SC_OFF}"); a.i("v_add_u32 v10, s7, v8")
    a.i("v_bfe_u32 v11, v2, 1, 4"); a.i("v_lshlrev_b32 v11, 7, v11")
    a.i("v_and_b32 v12, 1, v2"); a.i("v_lshl_add_u32 v11, v12, 3, v11")
    a.i("v_lshl_add_u32 v11, v13, 4, v11")
    a.i(f"s_mul_i32 s6, s22, {YS}"); a.i("s_lshl_b32 s7, s23, 11"); a.i("s_add_u32 s6, s6, s7"); a.i("v_add_u32 v11, s6, v11")
    a.i("v_lshlrev_b32 v12, 1, v5")
    a.i("v_mul_u32_u24 v13, 1152, v5"); a.i("s_lshl_b32 s6, s21, 3")
    a.i("v_mov_b32 v14, v15")
    a.nop(4)
    a.i("s_cmp_eq_u32 s23, 0"); a.i("s_cbranch_scc1 kb_mu0")
    def xch(send, keep):
        for k in range(4): a.i(f"ds_write_b128 v9, v[{send+4*k}:{send+3+4*k}] offset:{k*1024}")
        a.i("s_waitcnt lgkmcnt(0)")
        a.i("s_barrier")
        for k in range(4): a.i(f"ds_read_b128 v[{176+4*k}:{179+4*k}], v10 offset:{k*1024}")
        for k in range(4):
            a.i(f"s_waitcnt lgkmcnt({3-k})")
            for h in range(2): a.i(f"v_pk_add_f32 v[{160+4*k+2*h}:{161+4*k+2*h}], v[{keep+4*k+2*h}:{keep+1+4*k+2*h}], v[{176+4*k+2*h}:{177+4*k+2*h}]")
    xch(128, 144)
    a.i("s_branch kb_j")
    a.raw("kb_mu0:")
    xch(144, 128)
    a.raw("kb_j:")
    for k in range(8): a.i(f"v_pk_mul_f32 v[{160+2*k}:{161+2*k}], v[{160+2*k}:{161+2*k}], v[14:15]")
    for k in range(8): a.i(f"v_cvt_pk_bf16_f32 v{176+k}, v{160+2*k}, v{161+2*k}")
    for k in range(4): a.i(f"ds_write_b64 v11, v[{176+2*k}:{177+2*k}] offset:{32*k}")
    dg.mark("ywr")
    fill(1000)
    a.i("s_waitcnt lgkmcnt(0)")
    a.i("s_barrier")
    dg.mark("yb")
    for c in range(4):
        a.i(f"ds_read_b32 v{152+2*c}, v12 offset:{c*YS}")
        a.i(f"ds_read_b32 v{153+2*c}, v12 offset:{c*YS + 64}")
    a.i("s_waitcnt lgkmcnt(0)")
    Y = 128
    for pr in range(2):
        for u in range(2):
            for c in range(4):
                shy = "v_lshlrev_b32 v{d}, 16, v{s}" if u == 0 else "v_and_b32 v{d}, 0xffff0000, v{s}"
                a.i(shy.format(d=Y + 8*pr + 4*u + c, s=152 + 2*c + pr))
        def padd(src):
            for k in range(4*pr, 4*pr + 4): a.i(f"v_pk_add_f32 v[{Y+2*k}:{Y+2*k+1}], v[{Y+2*k}:{Y+2*k+1}], v[{src(k)}:{src(k)+1}]")
        padd(lambda k: TT_ + 2*k)
        for f in rnd_all(Y)[12*pr:12*pr+12]: a.i(f)
        padd(lambda k: XX + 2*k)
        for f in rnd_all(Y)[12*pr:12*pr+12]: a.i(f)
        padd(lambda k: SU + 8 * ((k // 2) % 2) + 4 * (k // 4) + 2 * (k % 2))
        for u in range(2):
            k = 2*pr + u
            a.i(f"v_cvt_pk_bf16_f32 v{172+2*k}, v{Y+4*k}, v{Y+4*k+1}"); a.i(f"v_cvt_pk_bf16_f32 v{173+2*k}, v{Y+4*k+2}, v{Y+4*k+3}")
            a.i(f"s_add_u32 s7, s6, {(32*pr + u) * 1152}")
            a.i(f"buffer_store_dwordx2 v[{172+2*k}:{173+2*k}], v13, s[{sOUT}:{sOUT+3}], s7 offen")
    a.raw("; SCOUTEND")
    dg.mark("st")
    dg.dump(48, 20, 8, 28)
    a.raw("kb_end:")
    a.i("s_endpgm")
    return a.text(), kd(name, 256, 256)
```

```python
import struct
def f2u(x): return struct.unpack("<I", struct.pack("<f", x))[0]
def fl(x): return "0x%08x" % f2u(x)

XF_OFF = 0
XU_OFF = 0x240000
KG_OFF = 0x6C0000
KG_STRIDE = 4112
KS_OFF = 0x904000
PART_OFF = 0xA00000
WS_BYTES = 268435456

class Asm:
    def __init__(self):
        self.L = []
        self.n = 0
        self.vm = 0; self.ds = 0
        self.vm_done = 0; self.ds_done = 0
        self.mfma_w = {}
    def raw(self, s): self.L.append(s)
    def i(self, s):
        self.L.append("  " + s); self.n += 1
    def nop(self, k):
        while k > 0:
            c = min(k, 16); self.L.append("  s_nop %d" % (c - 1)); self.n += c; k -= c
    def vmem(self, s):
        self.i(s); self.vm += 1; return self.vm
    def dsop(self, s):
        self.i(s); self.ds += 1; return self.ds
    def wait_vm(self, idn):
        if idn <= self.vm_done: return
        n = self.vm - idn
        assert n <= 63, "vmcnt overflow %d" % n
        self.i("s_waitcnt vmcnt(%d)" % n); self.vm_done = idn
    def wait_ds(self, idn):
        if idn <= self.ds_done: return
        n = min(self.ds - idn, 15)
        self.i("s_waitcnt lgkmcnt(%d)" % n); self.ds_done = self.ds - n
    def wait_all(self):
        self.i("s_waitcnt vmcnt(0) lgkmcnt(0)"); self.vm_done = self.vm; self.ds_done = self.ds
    def mfma_wrote(self, base, cnt):
        for r in range(base, base + cnt): self.mfma_w[r] = self.n
    def need_mfma(self, regs, dist=14):
        last = max([self.mfma_w.get(r, -1000) for r in regs])
        gap = self.n - last
        if gap < dist: self.nop(dist - gap)
    def text(self): return "\n".join(self.L) + "\n"

def kd(name, nv, acc_off, ns=102):
    return f""".p2align 6
.amdhsa_kernel {name}
  .amdhsa_next_free_vgpr {nv}
  .amdhsa_next_free_sgpr {ns}
  .amdhsa_accum_offset {acc_off}
  .amdhsa_group_segment_fixed_size 0
  .amdhsa_kernarg_size 136
  .amdhsa_user_sgpr_count 2
  .amdhsa_user_sgpr_kernarg_segment_ptr 1
  .amdhsa_system_sgpr_workgroup_id_x 1
  .amdhsa_float_denorm_mode_32 3
  .amdhsa_float_denorm_mode_16_64 3
.end_amdhsa_kernel
"""
def srd(a, d, b, nbytes):
    a.i(f"s_mov_b32 s{d}, s{b}")
    a.i(f"s_mov_b32 s{d+1}, s{b+1}")
    a.i(f"s_mov_b32 s{d+2}, {nbytes}")
    a.i(f"s_mov_b32 s{d+3}, 0x00020000")
def header(a, name):
    a.raw(f".globl {name}\n.p2align 8\n.type {name},@function\n{name}:")

import os
DIAG = int(os.environ.get("DIAG", "0"))
DIAG_OFF = 0x3000000
class Diag:
    def __init__(self, a, kidx):
        self.a = a; self.k = kidx; self.n = 0; self.names = []
    def start(self):
        if DIAG: self.a.i("s_memrealtime s[64:65]")
    def mark(self, name):
        if not DIAG: return
        assert self.n < 13
        self.a.i(f"s_memtime s[{68+2*self.n}:{69+2*self.n}]"); self.n += 1; self.names.append(name)
    def dump(self, wsreg, wave_sreg, waves_per_wg, vt):
        if not DIAG: return
        a = self.a
        a.i("s_waitcnt vmcnt(0)")
        self.mark("end")
        a.i("s_memrealtime s[66:67]")
        if DIAG == 2:
            a.i("s_load_dwordx2 s[94:95], s[0:1], 120")
            a.i("s_waitcnt lgkmcnt(0)")
            a.i(f"s_lshl_b32 s96, s2, 3"); a.i(f"s_add_u32 s96, s96, s{wave_sreg}"); a.i("s_cmp_lg_u32 s96, 800"); a.i(f"s_cbranch_scc1 dg_skip{self.k}")
            a.i("s_mov_b64 exec, 1"); a.i(f"v_mov_b32 v{vt}, 0")
            a.i("s_sub_u32 s96, s66, s64"); a.i(f"v_mov_b32 v{vt+2}, s96"); a.i(f"global_store_dword v{vt}, v{vt+2}, s[94:95]")
            for j in range(1, self.n):
                a.i(f"s_sub_u32 s96, s{68+2*j}, s68"); a.i(f"v_mov_b32 v{vt+2+(j&1)}, s96"); a.i(f"global_store_dword v{vt}, v{vt+2+(j&1)}, s[94:95] offset:{4*j}"); a.i("s_nop 1")
            a.i(f"v_mov_b32 v{vt+4}, s64"); a.i(f"global_store_dword v{vt}, v{vt+4}, s[94:95] offset:56")
            a.raw(f"dg_skip{self.k}:")
            return
        a.i("s_getreg_b32 s94, hwreg(HW_REG_XCC_ID)")
        a.i("s_mov_b32 s95, 0")
        a.i("s_waitcnt lgkmcnt(0)")
        a.i(f"s_mul_i32 s96, s2, {waves_per_wg}"); a.i(f"s_add_u32 s96, s96, s{wave_sreg}"); a.i("s_lshl_b32 s96, s96, 7")
        a.i(f"s_add_u32 s96, s96, {DIAG_OFF + self.k * 0x100000}")
        a.i("s_mov_b64 exec, 1")
        a.i(f"v_mov_b32 v{vt}, s96")
        for j in range(0, 32, 4):
            for e in range(4): a.i(f"v_mov_b32 v{vt+2+e}, s{64+j+e}")
            a.i(f"global_store_dwordx4 v{vt}, v[{vt+2}:{vt+5}], s[{wsreg}:{wsreg+1}] offset:{j*4}")
            a.i("s_nop 1")
        print("DIAG", self.k, self.names)
```

```python
import struct
def f2u(x): return struct.unpack("<I", struct.pack("<f", x))[0]
def fl(x): return "0x%08x" % f2u(x)

XF_OFF = 0
XU_OFF = 0x240000
KG_OFF = 0x6C0000
KG_STRIDE = 4112
KS_OFF = 0x904000
PART_OFF = 0xA00000
WS_BYTES = 268435456

class Asm:
    def __init__(self):
        self.L = []
        self.n = 0
        self.vm = 0; self.ds = 0
        self.vm_done = 0; self.ds_done = 0
        self.mfma_w = {}
    def raw(self, s): self.L.append(s)
    def i(self, s):
        self.L.append("  " + s); self.n += 1
    def nop(self, k):
        while k > 0:
            c = min(k, 16); self.L.append("  s_nop %d" % (c - 1)); self.n += c; k -= c
    def vmem(self, s):
        self.i(s); self.vm += 1; return self.vm
    def dsop(self, s):
        self.i(s); self.ds += 1; return self.ds
    def wait_vm(self, idn):
        if idn <= self.vm_done: return
        n = self.vm - idn
        assert n <= 63, "vmcnt overflow %d" % n
        self.i("s_waitcnt vmcnt(%d)" % n); self.vm_done = idn
    def wait_ds(self, idn):
        if idn <= self.ds_done: return
        n = min(self.ds - idn, 15)
        self.i("s_waitcnt lgkmcnt(%d)" % n); self.ds_done = self.ds - n
    def wait_all(self):
        self.i("s_waitcnt vmcnt(0) lgkmcnt(0)"); self.vm_done = self.vm; self.ds_done = self.ds
    def mfma_wrote(self, base, cnt):
        for r in range(base, base + cnt): self.mfma_w[r] = self.n
    def need_mfma(self, regs, dist=14):
        last = max([self.mfma_w.get(r, -1000) for r in regs])
        gap = self.n - last
        if gap < dist: self.nop(dist - gap)
    def text(self): return "\n".join(self.L) + "\n"

def kd(name, nv, acc_off, ns=102):
    return f""".p2align 6
.amdhsa_kernel {name}
  .amdhsa_next_free_vgpr {nv}
  .amdhsa_next_free_sgpr {ns}
  .amdhsa_accum_offset {acc_off}
  .amdhsa_group_segment_fixed_size 0
  .amdhsa_kernarg_size 136
  .amdhsa_user_sgpr_count 2
  .amdhsa_user_sgpr_kernarg_segment_ptr 1
  .amdhsa_system_sgpr_workgroup_id_x 1
  .amdhsa_float_denorm_mode_32 3
  .amdhsa_float_denorm_mode_16_64 3
.end_amdhsa_kernel
"""
def srd(a, d, b, nbytes):
    a.i(f"s_mov_b32 s{d}, s{b}")
    a.i(f"s_mov_b32 s{d+1}, s{b+1}")
    a.i(f"s_mov_b32 s{d+2}, {nbytes}")
    a.i(f"s_mov_b32 s{d+3}, 0x00020000")
def header(a, name):
    a.raw(f".globl {name}\n.p2align 8\n.type {name},@function\n{name}:")

import os
DIAG = int(os.environ.get("DIAG", "0"))
DIAG_OFF = 0x3000000
class Diag:
    def __init__(self, a, kidx):
        self.a = a; self.k = kidx; self.n = 0; self.names = []
    def start(self):
        if DIAG: self.a.i("s_memrealtime s[64:65]")
    def mark(self, name):
        if not DIAG: return
        assert self.n < 13
        self.a.i(f"s_memtime s[{68+2*self.n}:{69+2*self.n}]"); self.n += 1; self.names.append(name)
    def dump(self, wsreg, wave_sreg, waves_per_wg, vt):
        if not DIAG: return
        a = self.a
        a.i("s_waitcnt vmcnt(0)")
        self.mark("end")
        a.i("s_memrealtime s[66:67]")
        if DIAG == 2:
            a.i("s_load_dwordx2 s[94:95], s[0:1], 120")
            a.i("s_waitcnt lgkmcnt(0)")
            a.i(f"s_lshl_b32 s96, s2, 3"); a.i(f"s_add_u32 s96, s96, s{wave_sreg}"); a.i("s_cmp_lg_u32 s96, 800"); a.i(f"s_cbranch_scc1 dg_skip{self.k}")
            if self.k == 2:
                a.i("s_mov_b64 exec, 0xffff"); a.i(f"v_mbcnt_lo_u32_b32 v{vt}, -1, 0"); a.i(f"v_lshlrev_b32 v{vt}, 2, v{vt}"); a.i(f"v_add_u32 v{vt+1}, {DIAG_OFF}, v{vt}")
                a.i(f"global_load_dword v{vt+2}, v{vt+1}, s[{wsreg}:{wsreg+1}]"); a.i("s_waitcnt vmcnt(0)")
                a.i(f"global_store_dword v{vt}, v{vt+2}, s[94:95]"); a.i("s_waitcnt vmcnt(0)")
                a.i("s_mov_b64 exec, 1")
                a.i("s_sub_u32 s96, s66, s64"); a.i(f"v_mov_b32 v{vt+2}, s96"); a.i(f"global_store_dword v{vt}, v{vt+2}, s[94:95] offset:52")
                a.i(f"v_mov_b32 v{vt+4}, s64"); a.i(f"global_store_dword v{vt}, v{vt+4}, s[94:95] offset:60")
                a.raw(f"dg_skip{self.k}:")
                return
            a.i(f"s_mov_b32 s94, s{wsreg}"); a.i(f"s_mov_b32 s95, s{wsreg+1}")
            a.i("s_mov_b64 exec, 1"); a.i(f"v_mov_b32 v{vt}, {DIAG_OFF}")
            a.i("s_sub_u32 s96, s66, s64"); a.i(f"v_mov_b32 v{vt+2}, s96"); a.i(f"global_store_dword v{vt}, v{vt+2}, s[94:95]")
            for j in range(1, self.n):
                a.i(f"s_sub_u32 s96, s{68+2*j}, s68"); a.i(f"v_mov_b32 v{vt+2+(j&1)}, s96"); a.i(f"global_store_dword v{vt}, v{vt+2+(j&1)}, s[94:95] offset:{4*j}"); a.i("s_nop 1")
            a.i(f"v_mov_b32 v{vt+4}, s64"); a.i(f"global_store_dword v{vt}, v{vt+4}, s[94:95] offset:56")
            a.raw(f"dg_skip{self.k}:")
            return
        a.i("s_getreg_b32 s94, hwreg(HW_REG_XCC_ID)")
        a.i("s_mov_b32 s95, 0")
        a.i("s_waitcnt lgkmcnt(0)")
        a.i(f"s_mul_i32 s96, s2, {waves_per_wg}"); a.i(f"s_add_u32 s96, s96, s{wave_sreg}"); a.i("s_lshl_b32 s96, s96, 7")
        a.i(f"s_add_u32 s96, s96, {DIAG_OFF + self.k * 0x100000}")
        a.i("s_mov_b64 exec, 1")
        a.i(f"v_mov_b32 v{vt}, s96")
        for j in range(0, 32, 4):
            for e in range(4): a.i(f"v_mov_b32 v{vt+2+e}, s{64+j+e}")
            a.i(f"global_store_dwordx4 v{vt}, v[{vt+2}:{vt+5}], s[{wsreg}:{wsreg+1}] offset:{j*4}")
            a.i("s_nop 1")
        print("DIAG", self.k, self.names)
```

```python
from common import *
import math, os
NR = int(os.environ.get('NR', '10'))
RING = NR * 2048
XH = 73728
BIAS_OFF = XH + 4 * RING
K2_LDS = BIAS_OFF + 2304
R1, R2, R3 = 64, 128, 192
C0 = -2.0 * math.sqrt(2.0 / math.pi) * math.log2(math.e)
C1 = C0 * 0.044715
DP = int(os.environ.get('DP', '2')); DT = int(os.environ.get('DT', '4'))
ND0 = int(os.environ.get('ND0', '3'))
MAP2 = int(os.environ.get('MAP2', '1')); PF1AT = int(os.environ.get('PF1AT', '3')); PF2AT = int(os.environ.get('PF2AT', '3')); PF2S = int(os.environ.get('PF2S', '3'))
DM = int(os.environ.get('DM', '1')); XB = int(os.environ.get('XB', '3')); XE = int(os.environ.get('XE', '20'))
PT = int(os.environ.get('PT', '7'))
SLOTS = int(os.environ.get('SLOTS', '7'))
vW1 = {0: (4, 5), 1: (6, 7)}; vW2 = (8, 9)
vT = {1: (10, 11), 2: (12, 13)}
vX = (14, 15, 16, 17); vHo = (18, 19, 20, 21)
vS, vHw, vP = 22, 23, 25
vSt = (26, 30); vC0p = (0, 1); vC1p = (2, 24)
sSw, sSr = 62, 63
XT_OFF = XF_OFF; ST_OFF = XU_OFF
sX = 96 + 0; sDl = (97, 98, 99)
GT = 32
PK = 48
sW1, sW2, sWS, sB1 = 8, 12, 16, 20
sK1 = (24, 25, 26, 27); sA2 = {0: (28, 29, 30, 31), 1: (56, 57, 58, 59)}; sB2 = (32, 33, 34, 35)
sO1, sB2o, sP, sPo, sRing, sOff, sQ, sTmp = 36, 38, 39, 40, 41, 42, 43, 44
sA2o = {0: 37, 1: 60}; sBit = 61

def breg(phase, sigma, tt):
    if phase == 1:
        n = sigma * 2 + tt
        if n < 56: return f"a[{4*n}:{4*n+3}]"
        b = R3 + 4 * (n - 56); return f"v[{b}:{b+3}]"
    kind, k = sigma
    n = 2 * k + tt
    if kind == 's1': return f"a[{4*n}:{4*n+3}]"
    if n < 16: return f"a[{160+4*n}:{160+4*n+3}]"
    b = R2 + 4 * (n - 16); return f"v[{b}:{b+3}]"

class Item:
    __slots__ = ("cost", "fn", "deps", "key", "fence", "at")
    def __init__(s, cost, fn, deps, key, fence): s.cost, s.fn, s.deps, s.key, s.fence, s.at = cost, fn, deps, key, fence, None

def gen(code_pf_bytes):
    a = Asm(); name = "ka_kernel"
    header(a, name)
    a.i("s_cmp_ge_u32 s2, 256"); a.i("s_cbranch_scc1 ka_end")
    dg = Diag(a, 1); dg.start(); dg.mark("start")
    a.i("s_load_dwordx2 s[100:101], s[0:1], 0")
    a.i("s_load_dwordx4 s[48:51], s[0:1], 80")
    a.i("s_load_dwordx2 s[52:53], s[0:1], 96")
    a.i("s_load_dwordx2 s[54:55], s[0:1], 128")
    a.i("v_lshrrev_b32 v1, 6, v0"); a.i("v_and_b32 v2, 63, v0")
    a.i(f"v_readfirstlane_b32 s{sQ}, v1")
    a.i("s_getpc_b64 s[46:47]")
    a.raw("ka_pc:")
    a.i("s_lshr_b32 s5, s2, 3"); a.i("s_lshl_b32 s5, s5, 2"); a.i(f"s_add_u32 s5, s5, s{sQ}"); a.i("s_lshl_b32 s5, s5, 12")
    a.i("v_lshl_add_u32 v44, v2, 6, s5"); a.i("v_min_u32 v44, k_code_end-ka_pc, v44")
    a.i("v_mov_b32 v73, s47"); a.i("v_add_co_u32 v72, vcc, s46, v44"); a.i("s_nop 1"); a.i("v_addc_co_u32 v73, vcc, 0, v73, vcc")
    a.vmem("global_load_dword v68, v[72:73], off")
    if MAP2:
        a.i("s_and_b32 s3, s2, 3"); a.i("s_lshl_b32 s3, s3, 1"); a.i("s_bfe_u32 s4, s2, 0x10003"); a.i("s_add_u32 s3, s3, s4")
        a.i("s_bfe_u32 s4, s2, 0x10002"); a.i("s_lshl_b32 s4, s4, 4"); a.i("s_lshr_b32 s5, s2, 4"); a.i("s_add_u32 s4, s4, s5")
    else:
        a.i("s_and_b32 s3, s2, 7"); a.i("s_lshr_b32 s4, s2, 3")
    a.i(f"s_and_b32 s{sBit}, s4, 1"); a.i("s_and_b32 s96, s4, 15")
    a.i("v_lshlrev_b32 v3, 4, v2")
    RX = 128
    if PT & 1:
        a.i("s_lshr_b32 s5, s2, 3"); a.i("s_lshl_b32 s5, s5, 2"); a.i(f"s_add_u32 s5, s5, s{sQ}")
        a.i("s_mul_i32 s6, s5, 43"); a.i("s_lshr_b32 s6, s6, 8"); a.i("s_mul_i32 s7, s6, 6"); a.i("s_sub_u32 s5, s5, s7")
        a.i("s_lshl_b32 s5, s5, 3"); a.i("s_add_u32 s5, s5, 8"); a.i("s_load_dwordx2 s[62:63], s[0:1], s5")
        a.i("s_mul_i32 s7, s6, 86"); a.i("s_lshr_b32 s7, s7, 8"); a.i("s_mul_i32 s7, s7, 3"); a.i("s_sub_u32 s6, s6, s7"); a.i("s_mul_i32 s6, s6, 48")
        a.i("v_min_u32 v74, 47, v2"); a.i("v_add_u32 v74, s6, v74")
        a.i("s_and_b32 s5, s2, 7"); a.i("s_lshl_b32 s6, s5, 14"); a.i("s_lshl_b32 s5, s5, 11"); a.i(f"s_add_u32 s5, s5, {512*256 - 128*128}")
        a.i("v_cmp_gt_u32 vcc, 128, v74"); a.i("v_mov_b32 v75, s5"); a.i("v_mov_b32 v76, s6")
        a.i("v_cndmask_b32 v75, v75, v76, vcc"); a.i("v_lshl_add_u32 v74, v74, 7, v75")
    a.i(f"s_lshl_b32 s5, s4, 6"); a.i(f"s_lshl_b32 s6, s{sQ}, 4"); a.i("s_add_u32 s5, s5, s6"); a.i("s_mul_i32 s5, s5, 1152")
    a.i("v_lshrrev_b32 v32, 3, v2"); a.i("v_and_b32 v33, 7, v2")
    a.i("v_mul_u32_u24 v34, 1152, v32"); a.i("v_lshl_add_u32 v34, v33, 4, v34"); a.i("v_add_u32 v34, s5, v34"); a.i(f"v_add_u32 v35, {8*1152}, v34")
    a.i("s_waitcnt lgkmcnt(0)")
    xl = {}
    for p in range(2):
        for i in range(9):
            xl[(p, i)] = a.vmem(f"global_load_dwordx4 v[{RX+36*p+4*i}:{RX+36*p+4*i+3}], v{34+p}, s[100:101] offset:{128*i}")
    if PT & 1: a.vmem("global_load_dword v75, v74, s[62:63]")
    a.i("s_mul_i32 s7, s3, 1152")
    a.i(f"s_lshl_b32 s{sTmp}, s{sQ}, 8")
    a.i(f"s_lshl_b32 s46, s{sBit}, 7")
    a.i(f"s_mul_i32 s47, s{sBit}, {64*1152}")
    for g in range(4):
        a.i(f"s_add_u32 s5, s{sQ}, {g}"); a.i("s_and_b32 s5, s5, 3")
        a.i(f"s_mul_i32 s{sK1[g]}, s5, {144*9216}"); a.i(f"s_add_u32 s{sK1[g]}, s{sK1[g]}, s7")
        a.i("s_mul_i32 s6, s3, 663552")
        a.i(f"s_mul_i32 s{sA2[1][g]}, s5, {128*1152}"); a.i(f"s_add_u32 s{sA2[1][g]}, s{sA2[1][g]}, s6")
        a.i(f"s_add_u32 s{sA2[0][g]}, s{sA2[1][g]}, s47")
        a.i(f"s_sub_u32 s{sA2[1][g]}, s{sA2[1][g]}, s47"); a.i(f"s_add_u32 s{sA2[1][g]}, s{sA2[1][g]}, {64*1152}")
        a.i(f"s_mul_i32 s{sB2[g]}, s5, {16*1152}"); a.i(f"s_add_u32 s{sB2[g]}, s{sB2[g]}, s6"); a.i(f"s_add_u32 s{sB2[g]}, s{sB2[g]}, {512*1152}")
        if g > 0: a.i("s_cmp_eq_u32 s5, 0"); a.i(f"s_cselect_b32 s{sDl[g-1]}, -3, 1"); a.i(f"s_mul_i32 s{sDl[g-1]}, s{sDl[g-1]}, 9216")
        a.i("s_lshl_b32 s6, s5, 10"); a.i("s_add_u32 s6, s6, 32768"); a.i(f"v_add_u32 v{vHo[g]}, s6, v3")
    for d, s_ in ((sO1, sK1[0]), (sA2o[0], sA2[0][0]), (sA2o[1], sA2[1][0]), (sB2o, sB2[0])):
        a.i(f"s_add_u32 s{d}, s{s_}, 1024"); a.i(f"s_sub_u32 s{d}, s{d}, s{sTmp}")
    a.i(f"s_sub_u32 s{sO1}, s{sO1}, s46")
    a.i(f"s_mul_i32 s{sRing}, s{sQ}, {RING}"); a.i(f"s_add_u32 s{sRing}, s{sRing}, {XH}")
    a.i("v_lshrrev_b32 v32, 3, v2")
    a.i("v_bfe_u32 v33, v2, 4, 1"); a.i("v_lshlrev_b32 v33, 2, v33")
    a.i("v_and_b32 v34, 7, v2"); a.i("v_xor_b32 v33, v33, v34")
    a.i(f"v_lshl_add_u32 v33, v33, 4, s{sTmp}")
    a.i(f"v_mul_u32_u24 v34, 9216, v32"); a.i("v_add_u32 v34, v34, v33")
    a.i(f"v_add_u32 v{vW1[0][0]}, s46, v34"); a.i(f"v_add_u32 v{vW1[0][1]}, {8*9216-1024}, v{vW1[0][0]}")
    a.i(f"v_xor_b32 v{vW1[1][0]}, 128, v{vW1[0][0]}"); a.i(f"v_add_u32 v{vW1[1][1]}, {8*9216-1024}, v{vW1[1][0]}")
    a.i(f"v_mul_u32_u24 v{vW2[0]}, 1152, v32"); a.i(f"v_add_u32 v{vW2[0]}, v{vW2[0]}, v33")
    a.i(f"v_add_u32 v{vW2[1]}, {8*1152-1024}, v{vW2[0]}")
    srd(a, sWS, 54, WS_BYTES); srd(a, sW1, 48, 5308416); srd(a, sW2, 52, 5308416); srd(a, sB1, 50, 9216)

    steps = []
    def add(ph, vo, sbase, imm, sigma, acc, cinit, tag):
        steps.append(dict(ph=ph, vo=vo, sbase=sbase, imm=imm, sigma=sigma, acc=acc, cinit=cinit, tag=tag))
    for i in range(9): add(1, vW1[0], sO1, i * 16 * 9216, i, R2, None, ('O1', i))
    for p, acc in ((0, R1), (1, R2)):
        for sg in range(36):
            add(1, vW1[p], sK1[sg // 9], (sg % 9) * 16 * 9216, sg, acc, None, ('P%d' % p, sg))
    def s1(n):
        g, i = divmod(n, 5)
        return (sA2[0][g], i * 16 * 1152) if i < 4 else (sB2[g], 0)
    def s2(n):
        g, i = divmod(n, 4); return (sA2[1][g], i * 16 * 1152)
    for p, acc in ((0, R1), (1, R3)):
        for n in range(20):
            sb, im = s1(n); add(2, vW2, sb, im + 128 * p, ('s1', n), acc, 'zero' if n == 0 else None, ('D%ds1' % p, n))
    for n in range(16):
        sb, im = s2(n); add(2, vW2, sb, im, ('s2', n), R1, None, ('D0s2', n))
    for n in range(16):
        sb, im = s2(n); add(2, vW2, sb, im + 128, ('s2', n), R3, None, ('D1s2', n))
    odd2 = [(sA2o[0], i * 16 * 1152, ('s1', i)) for i in range(4)] + [(sB2o, 0, ('s1', 4))] + [(sA2o[1], i * 16 * 1152, ('s2', i)) for i in range(4)]
    for i, (sb, im, sg) in enumerate(odd2): add(2, vW2, sb, im, sg, R1, 'zero' if i == 0 else None, ('O2', i))
    NS = len(steps); assert NS == 162
    dma_id = {}
    def dma(k):
        st = steps[k]
        srdr = sW1 if st['ph'] == 1 else sW2
        va, vb = st['vo']
        a.i(f"s_add_u32 m0, s{sRing}, {(k % NR) * 2048}")
        a.i(f"s_add_u32 s{sOff}, s{st['sbase']}, {st['imm']}")
        a.vmem(f"buffer_load_dwordx4 v{va}, s[{srdr}:{srdr+3}], s{sOff} offen lds")
        dma_id[k] = a.vmem(f"buffer_load_dwordx4 v{vb}, s[{srdr}:{srdr+3}], s{sOff} offen offset:1024 lds")
    a.i("v_lshrrev_b32 v36, 5, v2"); a.i("v_and_b32 v37, 31, v2"); a.i("v_lshlrev_b32 v37, 1, v37"); a.i("v_lshl_add_u32 v36, v36, 14, v37")
    a.i(f"s_lshl_b32 s5, s{sQ}, 14"); a.i("s_add_u32 s5, s5, 1024"); a.i("s_add_u32 s5, s5, s7"); a.i("v_add_u32 v53, s5, v36")
    a.i(f"s_add_u32 s5, s{sTmp}, s46"); a.i("v_add_u32 v54, s5, v36"); a.i("v_xor_b32 v55, 128, v54"); a.i("v_add_u32 v54, s7, v54"); a.i("v_add_u32 v55, s7, v55")
    ids = {}
    LATE = []
    for k in range(ND0): dma(k)
    a.raw('; SCOUT')
    for k in range(ND0, NR): LATE.append(lambda k=k: dma(k))
    for n in range(6):
        LATE.append(lambda n=n: ids.__setitem__('b', a.vmem(f"buffer_load_ushort v{228+n}, v{53 + n // 2}, s[{sB1}:{sB1+3}], 0 offen offset:{64 * (n % 2)}")))
    a.i("s_lshl_b32 s5, s4, 6"); a.i("v_add_u32 v52, s5, v2"); a.i("v_mul_u32_u24 v56, 1152, v52")
    a.i("s_mul_i32 s5, s3, 144"); a.i("v_add_u32 v56, s5, v56"); a.i(f"s_lshl_b32 s5, s{sQ}, 4"); a.i("v_add_u32 v57, s5, v56")
    XTL = [lambda: a.vmem("global_load_dwordx4 v[216:219], v57, s[100:101]"), lambda: a.vmem("global_load_dwordx4 v[220:223], v57, s[100:101] offset:64"),
           lambda: ids.__setitem__('xt', a.vmem("global_load_dwordx4 v[224:227], v56, s[100:101] offset:128"))]
    NPF = 2; CH = 81; assert MAP2
    a.i(f"s_and_b32 s5, s4, {15 if MAP2 else 31}"); a.i("s_lshl_b32 s5, s5, 2"); a.i(f"s_add_u32 s5, s5, s{sQ}"); a.i(f"s_mul_i32 s6, s5, {CH}")
    a.i("s_mul_i32 s45, s3, 663552")
    for j in range(NPF):
        a.i(f"v_add_u32 v43, {64*j}, v2"); a.i(f"v_min_u32 v43, {CH-1}, v43"); a.i("v_add_u32 v43, s6, v43")
        a.i("v_mul_u32_u24 v44, 7282, v43"); a.i("v_lshrrev_b32 v44, 16, v44")
        a.i(f"v_mul_u32_u24 v44, {9216 - 18*64}, v44"); a.i("v_lshlrev_b32 v43, 7, v43"); a.i(f"v_add3_u32 v{69+j}, v44, v43, s7"); a.i(f"v_add_u32 v{58+j}, s45, v43")
    PF1 = [lambda j=j: ids.__setitem__('pf', a.vmem(f"buffer_load_dword v{64+j}, v{69+j}, s[{sW1}:{sW1+3}], 0 offen")) for j in range(NPF)]
    nb = NR - ND0
    LATE = LATE[:nb] + [lambda k=k, L=LATE: (L[nb + 2*k](), L[nb + 2*k + 1]()) for k in range(3)]
    if PF1AT == 0: LATE = LATE + XTL + PF1
    elif PF1AT == 1: LATE = LATE + PF1 + XTL
    elif PF1AT == 2: LATE = PF1 + LATE + XTL
    else: LATE = LATE[:nb] + PF1 + LATE[nb:]
    if PF1AT < 3: XTL = []
    def pf2():
        for j in range(NPF): ids['pf2'] = a.vmem(f"buffer_load_dword v{61+j}, v{58+j}, s[{sW2}:{sW2+3}], 0 offen")
    PF2T = {0: 'sum', 1: 'ln1', 2: ('P0', 4), 3: None}[PF2AT]
    a.i("v_lshrrev_b32 v32, 5, v2")
    a.i("v_bfe_u32 v33, v2, 2, 2")
    a.i("v_bfe_u32 v34, v2, 4, 1"); a.i("v_lshlrev_b32 v34, 5, v34")
    a.i("v_and_b32 v36, 3, v2"); a.i("v_lshl_add_u32 v34, v36, 3, v34")
    a.i("v_lshl_add_u32 v34, v33, 7, v34"); a.i(f"v_add_u32 v34, s{sRing}, v34")
    a.i("v_bfe_u32 v36, v2, 3, 1"); a.i("v_lshlrev_b32 v36, 6, v36")
    a.i("v_xor_b32 v37, 64, v36")
    a.i("v_lshl_add_u32 v40, v32, 10, v34")
    a.i(f"v_add_u32 v{vT[1][0]}, v40, v36"); a.i(f"v_add_u32 v{vT[1][1]}, v40, v37")
    a.i("v_lshl_add_u32 v40, v32, 9, v34")
    a.i(f"v_add_u32 v{vT[2][0]}, v40, v36"); a.i(f"v_add_u32 v{vT[2][1]}, v40, v37")
    a.i(f"s_lshr_b32 s5, s{sQ}, 1"); a.i(f"s_lshl_b32 s6, s{sQ}, 4"); a.i("s_lshl_b32 s7, s5, 2"); a.i("s_add_u32 s6, s6, s7"); a.i("s_lshl_b32 s6, s6, 10")
    a.i(f"s_mov_b32 s{sSw}, s6")
    a.i(f"s_and_b32 s6, s{sQ}, 1"); a.i("s_lshl_b32 s6, s6, 1"); a.i("s_lshl_b32 s7, s5, 3"); a.i("s_add_u32 s6, s6, s7")
    a.i(f"s_lshl_b32 s{sSr}, s6, 10")
    a.i("v_bfe_u32 v33, v2, 1, 4"); a.i("v_and_b32 v36, 1, v2"); a.i("v_lshlrev_b32 v33, 4, v33"); a.i("v_lshl_add_u32 v33, v36, 8, v33"); a.i(f"v_lshl_add_u32 v{vP}, v32, 17, v33")
    a.i(f"s_lshl_b32 s7, s{sQ}, 13"); a.i(f"v_add_u32 v{vHw}, s7, v3")
    a.i(f"s_add_u32 s7, s{sTmp}, s3"); a.i("s_lshl_b32 s7, s7, 14"); a.i("s_lshl_b32 s45, s4, 9"); a.i(f"s_add_u32 s45, s45, {PART_OFF}")
    a.i(f"s_add_u32 s{sP}, s7, s45")
    a.i(f"s_lshl_b32 s7, s{sQ}, 2"); a.i("s_add_u32 s7, s7, 128"); a.i("s_lshl_b32 s7, s7, 3"); a.i("s_add_u32 s7, s7, s3"); a.i("s_lshl_b32 s7, s7, 14")
    a.i(f"s_add_u32 s{sPo}, s7, s45")
    a.i("v_and_b32 v33, 31, v2"); a.i(f"s_mul_i32 s7, s{sQ}, 9216"); a.i("v_lshl_add_u32 v34, v32, 9, s7")
    for c in range(4):
        a.i(f"s_add_u32 s5, s{sQ}, {c}"); a.i("s_and_b32 s5, s5, 3"); a.i("s_lshl_b32 s5, s5, 1")
        a.i("v_add_u32 v36, s5, v32"); a.i("v_xor_b32 v36, v36, v33"); a.i(f"v_lshl_add_u32 v{vX[c]}, v36, 4, v34")
    a.i(f"v_lshlrev_b32 v46, 2, v33"); a.i(f"v_add_u32 v46, {BIAS_OFF}, v46")
    a.i("v_lshrrev_b32 v32, 3, v2"); a.i("v_and_b32 v33, 7, v2")
    a.i(f"s_lshr_b32 s5, s{sQ}, 1"); a.i("s_mul_i32 s5, s5, 36864"); a.i(f"s_and_b32 s6, s{sQ}, 1"); a.i("s_lshl_b32 s6, s6, 8"); a.i("s_add_u32 s5, s5, s6")
    a.i("v_xor_b32 v34, v32, v33"); a.i("v_lshl_add_u32 v34, v34, 4, s5"); a.i("v_lshl_add_u32 v47, v33, 9, v34")
    a.i(f"s_lshl_b32 s5, s{sQ}, 6"); a.i(f"s_add_u32 s5, s5, {BIAS_OFF}"); a.i("v_lshl_add_u32 v48, v32, 2, s5")
    a.i("s_lshl_b32 s5, s4, 9"); a.i(f"s_lshl_b32 s6, s{sQ}, 7"); a.i("s_add_u32 s5, s5, s6"); a.i(f"s_add_u32 s5, s5, {ST_OFF}")
    a.i("v_lshl_add_u32 v49, v32, 3, s5")
    a.i("v_lshlrev_b32 v40, 3, v52"); a.i(f"s_mul_i32 s5, s3, {18*16384}"); a.i(f"s_add_u32 s5, s5, {XT_OFF}"); a.i("v_add_u32 v40, s5, v40")
    a.i(f"s_lshl_b32 s5, s{sQ}, 15"); a.i("v_add_u32 v41, s5, v40")
    for r in (27, 28, 29, 31): a.i(f"v_mov_b32 v{r}, 0")
    for r in range(240, 256):
        if r % 2 or r in (240, 254): a.i(f"v_accvgpr_write_b32 a{r}, 0")
    a.i("s_mov_b32 s5, 0x3f803f80"); a.i("s_mov_b32 s6, 0x00003f80"); a.i("s_mov_b32 s7, 0x3f800000")
    if PT & 2:
        a.i("v_and_b32 v76, 31, v2"); a.i(f"v_lshl_add_u32 v76, v76, 17, s{sP}")
        a.i("v_and_b32 v77, 3, v2"); a.i(f"v_lshl_add_u32 v77, v77, 17, s{sPo}")
        a.i("v_cmp_gt_u32 vcc, 32, v2"); a.i("s_nop 1"); a.i("v_cndmask_b32 v76, v77, v76, vcc")
        PF1.append(0); LATE.insert(nb + NPF, lambda: ids.__setitem__('pf', a.vmem(f"buffer_load_dword v77, v76, s[{sWS}:{sWS+3}], 0 offen")))
    dg.mark("ln0")
    A = 32
    for p in range(2):
        for i in range(9):
            a.wait_vm(xl[(p, i)])
            for r in range(4):
                x = RX + 36*p + 4*i + r; h = r & 1
                c0 = "0" if (i == 0 and r < 2) else f"v{A+4*p+h}"; c1 = "0" if (i == 0 and r < 2) else f"v{A+4*p+2+h}"
                a.i(f"v_dot2_f32_bf16 v{A+4*p+h}, v{x}, s5, {c0}")
                a.i(f"v_dot2_f32_bf16 v{A+4*p+2+h}, v{x}, v{x}, {c1}")
            if LATE: LATE.pop(0)()
        if p == 1: dg.mark("sum")
        a.nop(3)
        a.i(f"v_add_f32 v{A+4*p}, v{A+4*p}, v{A+4*p+1}"); a.i(f"v_add_f32 v{A+4*p+2}, v{A+4*p+2}, v{A+4*p+3}")
        for dpp in ("quad_perm:[1,0,3,2]", "quad_perm:[2,3,0,1]", "row_half_mirror"):
            a.nop(1)
            for r in (A+4*p, A+4*p+2): a.i(f"v_add_f32_dpp v{r}, v{r}, v{r} {dpp} row_mask:0xf bank_mask:0xf")
        def both(f): a.i(f.format(m=A+4*p, s=A+4*p+1, v=A+4*p+2, t=A+4*p+3, u=50))
        both(f"v_mul_f32 v{{m}}, {fl(1.0/576)}, v{{m}}"); both(f"v_mul_f32 v{{v}}, {fl(1.0/576)}, v{{v}}")
        both("v_fma_f32 v{v}, -v{m}, v{m}, v{v}"); both("v_max_f32 v{v}, 0, v{v}")
        both("v_cvt_pk_bf16_f32 v{t}, v{m}, v{v}"); both("v_lshlrev_b32 v{m}, 16, v{t}"); both("v_and_b32 v{v}, 0xffff0000, v{t}")
        both("v_xor_b32 v{u}, 0x80000000, v{m}")
        ST = [f"v_add_f32 v{{v}}, {fl(1e-5)}, v{{v}}", "v_cvt_pk_bf16_f32 v{v}, v{v}, v{v}", "v_lshlrev_b32 v{v}, 16, v{v}", "v_sqrt_f32 v{s}, v{v}",
              "v_rcp_f32 v{t}, v{s}", "v_fma_f32 v{v}, -v{s}, v{s}, v{v}", "v_mul_f32 v{t}, 0.5, v{t}", "v_fmac_f32 v{s}, v{v}, v{t}",
              "v_cvt_pk_bf16_f32 v{s}, v{s}, v{s}", "v_lshlrev_b32 v{s}, 16, v{s}"]
        for i in range(9):
            t = 200 + 8 * (i & 1)
            for r in range(4):
                x = RX + 36*p + 4*i + r
                if DM == 0:
                    a.i(f"v_dot2_f32_bf16 v{t+2*r}, v{x}, s6, v50"); a.i(f"v_dot2_f32_bf16 v{t+2*r+1}, v{x}, s7, v50")
                else:
                    a.i(f"v_lshlrev_b32 v{t+2*r}, 16, v{x}"); a.i(f"v_and_b32 v{t+2*r+1}, 0xffff0000, v{x}")
            if DM:
                for r in range(4): a.i(f"v_pk_add_f32 v[{t+2*r}:{t+2*r+1}], v[{t+2*r}:{t+2*r+1}], v[50:51] op_sel_hi:[1,0]")
            both(ST.pop(0))
            if i == 8: both(ST.pop(0))
            if LATE: LATE.pop(0)()
            elif XTL and i % 3 == 2 and p == 1: XTL.pop(0)()
            for r in range(4):
                x = RX + 36*p + 4*i + r
                a.i(f"v_cvt_pk_bf16_f32 v{x}, v{t+2*r}, v{t+2*r+1}")
            a.dsop(f"ds_write_b128 v47, v[{RX+36*p+4*i}:{RX+36*p+4*i+3}] offset:{128*p + 4096*i}")
        a.dsop(f"ds_write_b32 v48, v{A+4*p+1} offset:{32*p}")
    assert not LATE and not XTL
    a.wait_vm(ids['b'])
    for n in range(6): a.i(f"v_lshlrev_b32 v{228+n}, 16, v{228+n}")
    for n in range(6): a.i(f"v_accvgpr_write_b32 a{242+2*n}, v{228+n}")
    if PF2T == 'ln1': pf2()
    a.wait_ds(a.ds); a.i("s_barrier")
    dg.mark("ln1")
    for tt in range(2): sid = a.dsop(f"ds_read_b32 v{vSt[tt]}, v46 offset:{128*tt}")

    Q = []
    bready = {}
    def push(cost, fn, deps=(), key=None, fence=False):
        it = Item(cost, fn, list(deps), key, fence); Q.append(it); return it
    def emit(it):
        for d, dist in it.deps:
            assert d.at is not None
            gap = a.n - d.at
            if gap < min(dist, 2): a.nop(min(dist, 2) - gap)
        Q.remove(it); it.fn(); it.at = a.n
    def ready(it): return all(d.at is not None and a.n - d.at >= dist for d, dist in it.deps)
    def fill(budget):
        while budget > 0 and Q:
            pick = None
            for idx, it in enumerate(Q[:64]):
                if it.fence:
                    if idx == 0 and it.cost <= budget: pick = it
                    break
                if it.cost <= budget and ready(it): pick = it; break
            if pick is None: return
            n0 = a.n; emit(pick); budget -= max(pick.cost, a.n - n0)
    def flush_until(key):
        if not any(it.key == key for it in Q): return
        while True:
            it = Q[0]
            for idx, c in enumerate(Q[:64]):
                if c.fence or c.key == key: break
                if ready(c): it = c; break
            emit(it)
            if it.key == key: break
    def push_bload(ph, sigma, tt, addr, imm, vmw=None):
        def fn():
            if vmw: a.wait_vm(vmw)
            bready[(ph, sigma, tt)] = a.dsop(f"ds_read_b128 {breg(ph, sigma, tt)}, v{addr} offset:{imm}")
        return push(1, fn, key=('B', ph, sigma, tt), fence=bool(vmw))
    def push_barrier(key=None, vmw=None):
        def fn():
            if vmw: a.wait_vm(vmw)
            a.wait_ds(a.ds); a.i("s_barrier")
        push(2, fn, key=key, fence=True)
    def push_fence(key=None): push(0, lambda: None, key=key, fence=True)
    gq = [0]; gp = [0]
    last_t = {}; last_pk = {}
    def push_gelu8(x, waddr, wimm, tt):
        ps = gp[0] % 4; pk = PK + 4 * ps; gp[0] += 1
        cv = []
        for hq in range(2):
            ts = gq[0] % 4; gq[0] += 1
            xs = x[4*hq:4*hq+4]; t = [GT + 4 * ts + e for e in range(4)]
            fin = []
            for e in range(4):
                d0 = [(z, 0) for z in last_t.get(ts, [])]
                def f1(e=e, xs=xs, t=t):
                    a.need_mfma([xs[e]]); a.i(f"v_mul_f32 v{t[e]}, v{xs[e]}, v{xs[e]}")
                i1 = push(1, f1, d0)
                i2 = push(1, lambda e=e, t=t: a.i(f"v_fma_f32 v{t[e]}, v{t[e]}, v{vC1p[tt]}, v{vC0p[tt]}"), [(i1, DP)])
                i3 = push(1, lambda e=e, t=t, xs=xs: a.i(f"v_mul_f32 v{t[e]}, v{xs[e]}, v{t[e]}"), [(i2, DP)])
                i4 = push(2, lambda e=e, t=t: a.i(f"v_exp_f32 v{t[e]}, v{t[e]}"), [(i3, DP)])
                i5 = push(1, lambda e=e, t=t: a.i(f"v_fma_f32 v{t[e]}, v{t[e]}, v{vSt[tt]}, v{vSt[tt]}"), [(i4, DT)])
                i6 = push(2, lambda e=e, t=t: a.i(f"v_rcp_f32 v{t[e]}, v{t[e]}"), [(i5, DP)])
                i7 = push(1, lambda e=e, t=t, xs=xs: a.i(f"v_mul_f32 v{t[e]}, v{xs[e]}, v{t[e]}"), [(i6, DT)])
                fin.append(i7)
            c = []
            for e in range(2):
                dd = [(fin[2*e], DP), (fin[2*e+1], DP)] + [(z, 2) for z in last_pk.get(ps, [])]
                c.append(push(1, lambda e=e, t=t, hq=hq: a.i(f"v_cvt_pk_bf16_f32 v{pk+2*hq+e}, v{t[2*e]}, v{t[2*e+1]}"), dd))
            last_t[ts] = c; cv += c
        w = push(1, lambda: a.dsop(f"ds_write_b128 v{waddr}, v[{pk}:{pk+3}] offset:{wimm}"), [(z, 0) for z in cv])
        last_pk[ps] = [w]
    def unit(acc, t, tt): return acc + 16 * (2 * t + tt)
    def push_gelu_pair(acc, p):
        for t in range(2):
            for tt in range(2):
                for kp in range(2):
                    b = unit(acc, t, tt) + 8 * kp
                    push_gelu8(list(range(b, b + 8)), vHw, tt * 36864 + (4 * p + 2 * t + kp) * 1024, tt)
    SB = (0, 16, 36, 52)
    def push_odd_reduce(acc, first):
        first = False
        push(1, lambda: a.i(f"v_add_u32 v{vS}, s{sSw}, v3"), fence=True)
        push_fence()
        for n in range(16):
            def f(n=n):
                a.need_mfma(list(range(acc + 4*n, acc + 4*n + 4)))
                a.dsop(f"ds_write_b128 v{vS}, v[{acc+4*n}:{acc+4*n+3}] offset:{n*1024}")
            push(1, f)
        push_barrier()
        push(1, lambda: a.i(f"v_add_u32 v{vS}, s{sSr}, v3"), fence=True)
        push_fence()
        rid = {}
        for src in range(4):
            for tt in range(2):
                for jj in range(2):
                    b = acc + 16 * src + 8 * tt + 4 * jj
                    def f(b=b, src=src, tt=tt, jj=jj):
                        rid[(src, tt, jj)] = a.dsop(f"ds_read_b128 v[{b}:{b+3}], v{vS} offset:{(SB[src] + 4*tt + jj)*1024}")
                    push(1, f)
        if first:
            for jj in range(2):
                def f(jj=jj): rid[('b', jj)] = a.dsop(f"ds_read_b128 v[{GT+4*jj}:{GT+3+4*jj}], v{vBo} offset:{512 + jj*32}")
                push(1, f)
        push_fence()
        for src in range(1, 4):
            for tt in range(2):
                for jj in range(2):
                    for e in range(4):
                        def f(src=src, tt=tt, jj=jj, e=e):
                            a.wait_ds(rid[(src, tt, jj)])
                            d = acc + 8*tt + 4*jj + e
                            a.i(f"v_add_f32 v{d}, v{d}, v{d + 16*src}")
                        push(1, f)
        if first:
            for tt in range(2):
                for jj in range(2):
                    for e in range(4):
                        def f(tt=tt, jj=jj, e=e):
                            a.wait_ds(rid[('b', jj)])
                            d = acc + 8*tt + 4*jj + e
                            a.i(f"v_add_f32 v{d}, v{d}, v{GT+4*jj+e}")
                        push(1, f)
        push_fence()
    def push_store(x0, x1, sreg, imm):
        ps = gp[0] % 4; pk = PK + 4 * ps; gp[0] += 1
        c = []
        for k, xb in enumerate((x0, x0 + 2, x1, x1 + 2)):
            def f(k=k, xb=xb):
                a.need_mfma([xb, xb + 1]); a.i(f"v_cvt_pk_f16_f32 v{pk+k}, v{xb}, v{xb+1}")
            c.append(push(1, f, [(z, 2) for z in last_pk.get(ps, [])]))
        def f():
            a.i(f"s_add_u32 s{sTmp}, s{sreg}, {imm}")
            a.vmem(f"buffer_store_dwordx4 v[{pk}:{pk+3}], v{vP}, s[{sWS}:{sWS+3}], s{sTmp} offen sc1")
        last_pk[ps] = [push(2, f, [(z, 0) for z in c])]
    def push_epi(acc, p):
        for t in range(2):
            for j in range(4):
                push_store(unit(acc, t, 0) + 4*j, unit(acc, t, 1) + 4*j, sP, (16*p + 8*t + 2*j) * 131072)

    def push_x(sg):
        g, i = divmod(sg, 9)
        if i == 0 and g > 0:
            for c in range(4): push(1, lambda c=c, g=g: a.i(f"v_add_u32 v{vX[c]}, s{sDl[g-1]}, v{vX[c]}"))
        for tt in range(2): push_bload(1, sg, tt, vX[(g + i) & 3], tt * 36864 + i * 1024)
    for sg in range(3): push_x(sg)
    def fst():
        a.wait_ds(sid)
        for tt in range(2): a.i(f"v_rcp_f32 v{vC0p[tt]}, v{vSt[tt]}")
        a.i(f"s_lshl_b32 s5, s{sQ}, 1"); a.i("s_sub_u32 s5, s5, s3")
        for tt in range(2): a.i(f"v_mul_f32 v{vC1p[tt]}, v{vC0p[tt]}, v{vC0p[tt]}")
        for tt in range(2): a.i(f"v_mul_f32 v{vC1p[tt]}, v{vC1p[tt]}, v{vC0p[tt]}")
        for tt in range(2): a.i(f"v_mul_f32 v{vC1p[tt]}, {fl(C1)}, v{vC1p[tt]}")
        for tt in range(2): a.i(f"v_mul_f32 v{vC0p[tt]}, {fl(C0)}, v{vC0p[tt]}")
    push(10, fst, fence=True, key=('st',))
    def exports():
        for p in range(2):
            def f(p=p):
                a.i(f"s_add_u32 s6, s5, {p}"); a.i("s_cmp_eq_u32 s6, 0"); a.i(f"s_cselect_b32 s6, {64*p}, {WS_BYTES}")
                a.i(f"v_add_u32 v{50+p}, s6, v49")
                a.vmem(f"buffer_store_dwordx2 v[{A+4*p}:{A+4*p+1}], v{50+p}, s[{sWS}:{sWS+3}], 0 offen")
            push(5, f)
        for k, (va, cgo) in enumerate(((41, 0), (41, 8), (40, 16))):
            for h in range(2):
                def f(k=k, h=h, va=va, cgo=cgo):
                    a.wait_vm(ids['xt']); a.i(f"s_mov_b32 s6, {(cgo + h) * 16384}")
                    a.vmem(f"buffer_store_dwordx2 v[{216+4*k+2*h}:{217+4*k+2*h}], v{va}, s[{sWS}:{sWS+3}], s6 offen")
                push(2, f)
    def bias_mfma(acc, n0):
        for t in range(2):
            for tt in range(2):
                d = unit(acc, t, tt); ab = 242 + 2 * (n0 + t) - 2 * tt; bb = 26 + 2 * tt
                a.i(f"v_mfma_f32_32x32x16_bf16 v[{d}:{d+15}], a[{ab}:{ab+3}], v[{bb}:{bb+3}], 0")
                a.mfma_wrote(d, 16); fill(SLOTS - 1)
    def areg(k, t): return 224 + 8 * (k % 2) + 4 * t
    tr_id = {}
    def tr(k, t):
        st = steps[k]; b = areg(k, t); jo = 512 if st['ph'] == 1 else 1024
        a.wait_vm(dma_id[k])
        a.dsop(f"ds_read_b64_tr_b16 a[{b}:{b+1}], v{vT[st['ph']][t]} offset:{(k % NR)*2048}")
        tr_id[(k, t)] = a.dsop(f"ds_read_b64_tr_b16 a[{b+2}:{b+3}], v{vT[st['ph']][t]} offset:{(k % NR)*2048 + jo}")
    tr(0, 0); tr(0, 1)
    flush_until(('st',))
    for sg in range(3, 9): push_x(sg)
    def event(tag):
        if tag == ('O1', 0): bias_mfma(R2, 0)
        if tag == ('P0', 0): a.raw('; SCOUTEND')
        if tag == ('P0', 0): a.wait_vm(ids['pf']); bias_mfma(R1, 2)
        if tag == PF2T: pf2()
        if PF2AT == 3 and tag[0] == 'P0':
            for j in range(16):
                if j * PF2S // 2 == tag[1]:
                    a.i(f"s_cmp_lg_u32 s96, {j}"); a.i(f"s_cbranch_scc1 ka_pf{j}")
                    for jj in range(2): a.i(f"buffer_load_dword v{61+jj}, v{58+jj}, s[{sW2}:{sW2+3}], 0 offen")
                    a.raw(f"ka_pf{j}:"); a.n -= 2
        if tag == ('P0', XE - 9 + 1):
            push_barrier()
            push_odd_reduce(R2, True)
            for tt in range(2):
                push_gelu8(list(range(R2 + 8*tt, R2 + 8*tt + 8)), vHo[0], tt * 36864, tt)
            push_barrier(('B4',))
        if tag == ('P1', 0):
            flush_until(('B4',)); a.wait_vm(ids.get('pf2', 0))
            push_gelu_pair(R1, 0)
            bias_mfma(R2, 4)
            for g in range(4):
                i1 = push(1, lambda g=g: a.i(f"v_sub_u32 v{vX[g]}, v{vHo[g]}, v3"))
                i2 = push(1, lambda g=g: a.i(f"v_add_u32 v{vX[g]}, {(-32768) & 0xffffffff}, v{vX[g]}"), [(i1, 0)])
                push(1, lambda g=g: a.i(f"v_lshl_add_u32 v{vX[g]}, v{vX[g]}, 3, v3"), [(i2, 0)])
            push_barrier(('B5',))
        if tag == ('D0s1', 0):
            flush_until(('B5',))
            for n in range(20):
                g, i = divmod(n, 5)
                for tt in range(2):
                    if i < 4: push_bload(2, ('s1', n), tt, vX[g], tt * 36864 + i * 1024)
                    else: push_bload(2, ('s1', n), tt, vHo[g], tt * 36864)
            flush_until(('B', 2, ('s1', 1), 1))
            push_gelu_pair(R2, 1)
            push_barrier(('B6',))
            for n in range(16):
                g, i = divmod(n, 4)
                for tt in range(2): push_bload(2, ('s2', n), tt, vX[g], tt * 36864 + (4 + i) * 1024)
            push_barrier(('B7',))
        def epi1(acc, p, n):
            t, j = divmod(n, 4)
            push_store(unit(acc, t, 0) + 4*j, unit(acc, t, 1) + 4*j, sP, (16*p + 8*t + 2*j) * 131072)
        if tag[0] == 'D1s2' and tag[1] % 2 == 0: epi1(R1, 0, tag[1] // 2)
        if tag == ('O2', 0):
            push_fence(('epi0',)); flush_until(('epi0',))
        if tag[0] == 'O2' and tag[1] < 8: epi1(R3, 1, tag[1])
    for k, st in enumerate(steps):
        if st['tag'] in (('P0',0),('P1',0),('D0s1',0),('D1s1',0),('D0s2',0),('D1s2',0),('O2',0)): dg.mark(str(st['tag']))
        for sg in range(9, 36):
            if (sg - 9) * (XE - XB) // 26 + XB == k: push_x(sg)
        if k == 2: exports()
        event(st['tag'])
        ph, sg, acc = st['ph'], st['sigma'], st['acc']
        for m in range(4):
            t, tt = divmod(m, 2)
            if (ph, sg, tt) not in bready: flush_until(('B', ph, sg, tt))
            a.wait_ds(max(bready[(ph, sg, tt)], tr_id[(k, t)]))
            d = unit(acc, t, tt)
            if st['cinit'] == 'zero': c = "0"
            elif st['cinit'] == 'bias':
                flush_until(('bias', acc, t, 3)); a.wait_ds(bready[('bias', acc, t)])
                cb = unit(acc, t, 1); c = f"v[{cb}:{cb+15}]"
            else: c = f"v[{d}:{d+15}]"
            ab = areg(k, t)
            n0 = a.n
            a.i(f"v_mfma_f32_32x32x16_bf16 v[{d}:{d+15}], a[{ab}:{ab+3}], {breg(ph, sg, tt)}, {c}")
            a.mfma_wrote(d, 16)
            if m == 0 and k + 1 < NS: tr(k + 1, 0)
            if m == 1 and k + 1 < NS: tr(k + 1, 1)
            if m == 2 and k + NR < NS: dma(k + NR)
            used = a.n - n0 - 1
            fill(SLOTS - used - (1 if m in (1, 3) else 0))
    dg.mark("last")
    push_odd_reduce(R1, False)
    for jj in range(2):
        push_store(R1 + 4*jj, R1 + 8 + 4*jj, sPo, jj * 2 * 131072)
    push_fence(('fin',)); flush_until(('fin',))
    dg.dump(54, sQ, 4, 28)
    a.raw("ka_end:")
    a.i("s_endpgm")
    return a.text(), kd(name, 512, 256)
```

```python
from common import *
import math, os
NR = int(os.environ.get('NR', '10'))
RING = NR * 2048
XH = 73728
BIAS_OFF = XH + 4 * RING
K2_LDS = BIAS_OFF + 2304
R1, R2, R3 = 64, 128, 192
C0 = -2.0 * math.sqrt(2.0 / math.pi) * math.log2(math.e)
C1 = C0 * 0.044715
DP = int(os.environ.get('DP', '2')); DT = int(os.environ.get('DT', '4'))
ND0 = int(os.environ.get('ND0', '3'))
MAP2 = int(os.environ.get('MAP2', '1')); PF1AT = int(os.environ.get('PF1AT', '3')); PF2AT = int(os.environ.get('PF2AT', '3')); PF2S = int(os.environ.get('PF2S', '3'))
DM = int(os.environ.get('DM', '1')); XB = int(os.environ.get('XB', '3')); XE = int(os.environ.get('XE', '20'))
PT = int(os.environ.get('PT', '1'))
PPA = int(os.environ.get('PPA', '0'))
SLOTS = int(os.environ.get('SLOTS', '7'))
vW1 = {0: (4, 5), 1: (6, 7)}; vW2 = (8, 9)
vT = {1: (10, 11), 2: (12, 13)}
vX = (14, 15, 16, 17); vHo = (18, 19, 20, 21)
vS, vHw, vP = 22, 23, 25
vSt = (26, 30); vC0p = (0, 1); vC1p = (2, 24)
sSw, sSr = 62, 63
XT_OFF = XF_OFF; ST_OFF = XU_OFF
sX = 96 + 0; sDl = (97, 98, 99)
GT = 32
PK = 48
sW1, sW2, sWS, sB1 = 8, 12, 16, 20
sK1 = (24, 25, 26, 27); sA2 = {0: (28, 29, 30, 31), 1: (56, 57, 58, 59)}; sB2 = (32, 33, 34, 35)
sO1, sB2o, sP, sPo, sRing, sOff, sQ, sTmp = 36, 38, 39, 40, 41, 42, 43, 44
sA2o = {0: 37, 1: 60}; sBit = 61

def breg(phase, sigma, tt):
    if phase == 1:
        n = sigma * 2 + tt
        if n < 56: return f"a[{4*n}:{4*n+3}]"
        b = R3 + 4 * (n - 56); return f"v[{b}:{b+3}]"
    kind, k = sigma
    n = 2 * k + tt
    if kind == 's1': return f"a[{4*n}:{4*n+3}]"
    if n < 16: return f"a[{160+4*n}:{160+4*n+3}]"
    b = R2 + 4 * (n - 16); return f"v[{b}:{b+3}]"

class Item:
    __slots__ = ("cost", "fn", "deps", "key", "fence", "at")
    def __init__(s, cost, fn, deps, key, fence): s.cost, s.fn, s.deps, s.key, s.fence, s.at = cost, fn, deps, key, fence, None

def gen(code_pf_bytes):
    a = Asm(); name = "ka_kernel"
    header(a, name)
    a.i("s_cmp_ge_u32 s2, 256"); a.i("s_cbranch_scc1 ka_end")
    dg = Diag(a, 1); dg.start(); dg.mark("start")
    a.i("s_load_dwordx2 s[100:101], s[0:1], 0")
    a.i("s_load_dwordx4 s[48:51], s[0:1], 80")
    a.i("s_load_dwordx2 s[52:53], s[0:1], 96")
    a.i("s_load_dwordx2 s[54:55], s[0:1], 128")
    a.i("v_lshrrev_b32 v1, 6, v0"); a.i("v_and_b32 v2, 63, v0")
    a.i(f"v_readfirstlane_b32 s{sQ}, v1")
    a.i("s_getpc_b64 s[46:47]")
    a.raw("ka_pc:")
    a.i("s_lshr_b32 s5, s2, 3"); a.i("s_lshl_b32 s5, s5, 2"); a.i(f"s_add_u32 s5, s5, s{sQ}"); a.i("s_lshl_b32 s5, s5, 12")
    a.i("v_lshl_add_u32 v44, v2, 6, s5"); a.i("v_min_u32 v44, k_code_end-ka_pc, v44")
    a.i("v_mov_b32 v73, s47"); a.i("v_add_co_u32 v72, vcc, s46, v44"); a.i("s_nop 1"); a.i("v_addc_co_u32 v73, vcc, 0, v73, vcc")
    a.vmem("global_load_dword v68, v[72:73], off")
    if MAP2:
        a.i("s_and_b32 s3, s2, 3"); a.i("s_lshl_b32 s3, s3, 1"); a.i("s_bfe_u32 s4, s2, 0x10003"); a.i("s_add_u32 s3, s3, s4")
        a.i("s_bfe_u32 s4, s2, 0x10002"); a.i("s_lshl_b32 s4, s4, 4"); a.i("s_lshr_b32 s5, s2, 4"); a.i("s_add_u32 s4, s4, s5")
    else:
        a.i("s_and_b32 s3, s2, 7"); a.i("s_lshr_b32 s4, s2, 3")
    a.i(f"s_and_b32 s{sBit}, s4, 1"); a.i("s_and_b32 s96, s4, 15")
    a.i("v_lshlrev_b32 v3, 4, v2")
    RX = 128
    if PT & 1:
        a.i("s_lshr_b32 s5, s2, 3"); a.i("s_lshl_b32 s5, s5, 2"); a.i(f"s_add_u32 s5, s5, s{sQ}")
        a.i("s_mul_i32 s6, s5, 43"); a.i("s_lshr_b32 s6, s6, 8"); a.i("s_mul_i32 s7, s6, 6"); a.i("s_sub_u32 s5, s5, s7")
        a.i("s_lshl_b32 s5, s5, 3"); a.i("s_add_u32 s5, s5, 8"); a.i("s_load_dwordx2 s[94:95], s[0:1], s5")
        a.i("s_mul_i32 s7, s6, 86"); a.i("s_lshr_b32 s7, s7, 8"); a.i("s_mul_i32 s7, s7, 3"); a.i("s_sub_u32 s6, s6, s7"); a.i("s_mul_i32 s6, s6, 48")
        a.i("v_min_u32 v74, 47, v2"); a.i("v_add_u32 v74, s6, v74")
        a.i("s_and_b32 s5, s2, 7"); a.i("s_lshl_b32 s6, s5, 14"); a.i("s_lshl_b32 s5, s5, 11"); a.i(f"s_add_u32 s5, s5, {512*256 - 128*128}")
        a.i("v_cmp_gt_u32 vcc, 128, v74"); a.i("v_mov_b32 v75, s5"); a.i("v_mov_b32 v76, s6")
        a.i("v_cndmask_b32 v75, v75, v76, vcc"); a.i("v_lshl_add_u32 v74, v74, 7, v75")
    a.i(f"s_lshl_b32 s5, s4, 6"); a.i(f"s_lshl_b32 s6, s{sQ}, 4"); a.i("s_add_u32 s5, s5, s6"); a.i("s_mul_i32 s5, s5, 1152")
    a.i("v_lshrrev_b32 v32, 3, v2"); a.i("v_and_b32 v33, 7, v2")
    a.i("v_mul_u32_u24 v34, 1152, v32"); a.i("v_lshl_add_u32 v34, v33, 4, v34"); a.i("v_add_u32 v34, s5, v34"); a.i(f"v_add_u32 v35, {8*1152}, v34")
    a.i("s_waitcnt lgkmcnt(0)")
    xl = {}
    for p in range(2):
        for i in range(9):
            xl[(p, i)] = a.vmem(f"global_load_dwordx4 v[{RX+36*p+4*i}:{RX+36*p+4*i+3}], v{34+p}, s[100:101] offset:{128*i}")
    a.i("s_mul_i32 s7, s3, 1152")
    a.i(f"s_lshl_b32 s{sTmp}, s{sQ}, 8")
    a.i(f"s_lshl_b32 s46, s{sBit}, 7")
    a.i(f"s_mul_i32 s47, s{sBit}, {64*1152}")
    for g in range(4):
        a.i(f"s_add_u32 s5, s{sQ}, {g}"); a.i("s_and_b32 s5, s5, 3")
        a.i(f"s_mul_i32 s{sK1[g]}, s5, {144*9216}"); a.i(f"s_add_u32 s{sK1[g]}, s{sK1[g]}, s7")
        a.i("s_mul_i32 s6, s3, 663552")
        a.i(f"s_mul_i32 s{sA2[1][g]}, s5, {128*1152}"); a.i(f"s_add_u32 s{sA2[1][g]}, s{sA2[1][g]}, s6")
        a.i(f"s_add_u32 s{sA2[0][g]}, s{sA2[1][g]}, s47")
        a.i(f"s_sub_u32 s{sA2[1][g]}, s{sA2[1][g]}, s47"); a.i(f"s_add_u32 s{sA2[1][g]}, s{sA2[1][g]}, {64*1152}")
        a.i(f"s_mul_i32 s{sB2[g]}, s5, {16*1152}"); a.i(f"s_add_u32 s{sB2[g]}, s{sB2[g]}, s6"); a.i(f"s_add_u32 s{sB2[g]}, s{sB2[g]}, {512*1152}")
        if g > 0: a.i("s_cmp_eq_u32 s5, 0"); a.i(f"s_cselect_b32 s{sDl[g-1]}, -3, 1"); a.i(f"s_mul_i32 s{sDl[g-1]}, s{sDl[g-1]}, 9216")
        a.i("s_lshl_b32 s6, s5, 10"); a.i("s_add_u32 s6, s6, 32768"); a.i(f"v_add_u32 v{vHo[g]}, s6, v3")
    for d, s_ in ((sO1, sK1[0]), (sA2o[0], sA2[0][0]), (sA2o[1], sA2[1][0]), (sB2o, sB2[0])):
        a.i(f"s_add_u32 s{d}, s{s_}, 1024"); a.i(f"s_sub_u32 s{d}, s{d}, s{sTmp}")
    a.i(f"s_sub_u32 s{sO1}, s{sO1}, s46")
    a.i(f"s_mul_i32 s{sRing}, s{sQ}, {RING}"); a.i(f"s_add_u32 s{sRing}, s{sRing}, {XH}")
    a.i("v_lshrrev_b32 v32, 3, v2")
    a.i("v_bfe_u32 v33, v2, 4, 1"); a.i("v_lshlrev_b32 v33, 2, v33")
    a.i("v_and_b32 v34, 7, v2"); a.i("v_xor_b32 v33, v33, v34")
    a.i(f"v_lshl_add_u32 v33, v33, 4, s{sTmp}")
    a.i(f"v_mul_u32_u24 v34, 9216, v32"); a.i("v_add_u32 v34, v34, v33")
    a.i(f"v_add_u32 v{vW1[0][0]}, s46, v34"); a.i(f"v_add_u32 v{vW1[0][1]}, {8*9216-1024}, v{vW1[0][0]}")
    a.i(f"v_xor_b32 v{vW1[1][0]}, 128, v{vW1[0][0]}"); a.i(f"v_add_u32 v{vW1[1][1]}, {8*9216-1024}, v{vW1[1][0]}")
    a.i(f"v_mul_u32_u24 v{vW2[0]}, 1152, v32"); a.i(f"v_add_u32 v{vW2[0]}, v{vW2[0]}, v33")
    a.i(f"v_add_u32 v{vW2[1]}, {8*1152-1024}, v{vW2[0]}")
    srd(a, sWS, 54, WS_BYTES); srd(a, sW1, 48, 5308416); srd(a, sW2, 52, 5308416); srd(a, sB1, 50, 9216)

    steps = []
    def add(ph, vo, sbase, imm, sigma, acc, cinit, tag):
        steps.append(dict(ph=ph, vo=vo, sbase=sbase, imm=imm, sigma=sigma, acc=acc, cinit=cinit, tag=tag))
    for i in range(9): add(1, vW1[0], sO1, i * 16 * 9216, i, R2, None, ('O1', i))
    for p, acc in ((0, R1), (1, R2)):
        for sg in range(36):
            add(1, vW1[p], sK1[sg // 9], (sg % 9) * 16 * 9216, sg, acc, None, ('P%d' % p, sg))
    def s1(n):
        g, i = divmod(n, 5)
        return (sA2[0][g], i * 16 * 1152) if i < 4 else (sB2[g], 0)
    def s2(n):
        g, i = divmod(n, 4); return (sA2[1][g], i * 16 * 1152)
    for p, acc in ((0, R1), (1, R3)):
        for n in range(20):
            sb, im = s1(n); add(2, vW2, sb, im + 128 * p, ('s1', n), acc, 'zero' if n == 0 else None, ('D%ds1' % p, n))
    for n in range(16):
        sb, im = s2(n); add(2, vW2, sb, im, ('s2', n), R1, None, ('D0s2', n))
    for n in range(16):
        sb, im = s2(n); add(2, vW2, sb, im + 128, ('s2', n), R3, None, ('D1s2', n))
    odd2 = [(sA2o[0], i * 16 * 1152, ('s1', i)) for i in range(4)] + [(sB2o, 0, ('s1', 4))] + [(sA2o[1], i * 16 * 1152, ('s2', i)) for i in range(4)]
    for i, (sb, im, sg) in enumerate(odd2): add(2, vW2, sb, im, sg, R1, 'zero' if i == 0 else None, ('O2', i))
    NS = len(steps); assert NS == 162
    dma_id = {}
    def dma(k):
        st = steps[k]
        srdr = sW1 if st['ph'] == 1 else sW2
        va, vb = st['vo']
        a.i(f"s_add_u32 m0, s{sRing}, {(k % NR) * 2048}")
        a.i(f"s_add_u32 s{sOff}, s{st['sbase']}, {st['imm']}")
        a.vmem(f"buffer_load_dwordx4 v{va}, s[{srdr}:{srdr+3}], s{sOff} offen lds")
        dma_id[k] = a.vmem(f"buffer_load_dwordx4 v{vb}, s[{srdr}:{srdr+3}], s{sOff} offen offset:1024 lds")
    a.i("v_lshrrev_b32 v36, 5, v2"); a.i("v_and_b32 v37, 31, v2"); a.i("v_lshlrev_b32 v37, 1, v37"); a.i("v_lshl_add_u32 v36, v36, 14, v37")
    a.i(f"s_lshl_b32 s5, s{sQ}, 14"); a.i("s_add_u32 s5, s5, 1024"); a.i("s_add_u32 s5, s5, s7"); a.i("v_add_u32 v53, s5, v36")
    a.i(f"s_add_u32 s5, s{sTmp}, s46"); a.i("v_add_u32 v54, s5, v36"); a.i("v_xor_b32 v55, 128, v54"); a.i("v_add_u32 v54, s7, v54"); a.i("v_add_u32 v55, s7, v55")
    ids = {}
    LATE = []
    for k in range(ND0): dma(k)
    a.raw('; SCOUT')
    for k in range(ND0, NR): LATE.append(lambda k=k: dma(k))
    for n in range(6):
        LATE.append(lambda n=n: ids.__setitem__('b', a.vmem(f"buffer_load_ushort v{228+n}, v{53 + n // 2}, s[{sB1}:{sB1+3}], 0 offen offset:{64 * (n % 2)}")))
    a.i("s_lshl_b32 s5, s4, 6"); a.i("v_add_u32 v52, s5, v2"); a.i("v_mul_u32_u24 v56, 1152, v52")
    a.i("s_mul_i32 s5, s3, 144"); a.i("v_add_u32 v56, s5, v56"); a.i(f"s_lshl_b32 s5, s{sQ}, 4"); a.i("v_add_u32 v57, s5, v56")
    XTL = [lambda: a.vmem("global_load_dwordx4 v[216:219], v57, s[100:101]"), lambda: a.vmem("global_load_dwordx4 v[220:223], v57, s[100:101] offset:64"),
           lambda: ids.__setitem__('xt', a.vmem("global_load_dwordx4 v[224:227], v56, s[100:101] offset:128"))]
    NPF = 2; CH = 81; assert MAP2
    a.i(f"s_and_b32 s5, s4, {15 if MAP2 else 31}"); a.i("s_lshl_b32 s5, s5, 2"); a.i(f"s_add_u32 s5, s5, s{sQ}"); a.i(f"s_mul_i32 s6, s5, {CH}")
    a.i("s_mul_i32 s45, s3, 663552")
    for j in range(NPF):
        a.i(f"v_add_u32 v43, {64*j}, v2"); a.i(f"v_min_u32 v43, {CH-1}, v43"); a.i("v_add_u32 v43, s6, v43")
        a.i("v_mul_u32_u24 v44, 7282, v43"); a.i("v_lshrrev_b32 v44, 16, v44")
        a.i(f"v_mul_u32_u24 v44, {9216 - 18*64}, v44"); a.i("v_lshlrev_b32 v43, 7, v43"); a.i(f"v_add3_u32 v{69+j}, v44, v43, s7"); a.i(f"v_add_u32 v{58+j}, s45, v43")
    PF1 = [lambda j=j: ids.__setitem__('pf', a.vmem(f"buffer_load_dword v{64+j}, v{69+j}, s[{sW1}:{sW1+3}], 0 offen")) for j in range(NPF)]
    nb = NR - ND0
    LATE = LATE[:nb] + [lambda k=k, L=LATE: (L[nb + 2*k](), L[nb + 2*k + 1]()) for k in range(3)]
    if PF1AT == 0: LATE = LATE + XTL + PF1
    elif PF1AT == 1: LATE = LATE + PF1 + XTL
    elif PF1AT == 2: LATE = PF1 + LATE + XTL
    else: LATE = LATE[:nb] + PF1 + LATE[nb:]
    if PF1AT < 3: XTL = []
    def pf2():
        for j in range(NPF): ids['pf2'] = a.vmem(f"buffer_load_dword v{61+j}, v{58+j}, s[{sW2}:{sW2+3}], 0 offen")
    PF2T = {0: 'sum', 1: 'ln1', 2: ('P0', 4), 3: None}[PF2AT]
    a.i("v_lshrrev_b32 v32, 5, v2")
    a.i("v_bfe_u32 v33, v2, 2, 2")
    a.i("v_bfe_u32 v34, v2, 4, 1"); a.i("v_lshlrev_b32 v34, 5, v34")
    a.i("v_and_b32 v36, 3, v2"); a.i("v_lshl_add_u32 v34, v36, 3, v34")
    a.i("v_lshl_add_u32 v34, v33, 7, v34"); a.i(f"v_add_u32 v34, s{sRing}, v34")
    a.i("v_bfe_u32 v36, v2, 3, 1"); a.i("v_lshlrev_b32 v36, 6, v36")
    a.i("v_xor_b32 v37, 64, v36")
    a.i("v_lshl_add_u32 v40, v32, 10, v34")
    a.i(f"v_add_u32 v{vT[1][0]}, v40, v36"); a.i(f"v_add_u32 v{vT[1][1]}, v40, v37")
    a.i("v_lshl_add_u32 v40, v32, 9, v34")
    a.i(f"v_add_u32 v{vT[2][0]}, v40, v36"); a.i(f"v_add_u32 v{vT[2][1]}, v40, v37")
    a.i(f"s_lshr_b32 s5, s{sQ}, 1"); a.i(f"s_lshl_b32 s6, s{sQ}, 4"); a.i("s_lshl_b32 s7, s5, 2"); a.i("s_add_u32 s6, s6, s7"); a.i("s_lshl_b32 s6, s6, 10")
    a.i(f"s_mov_b32 s{sSw}, s6")
    a.i(f"s_and_b32 s6, s{sQ}, 1"); a.i("s_lshl_b32 s6, s6, 1"); a.i("s_lshl_b32 s7, s5, 3"); a.i("s_add_u32 s6, s6, s7")
    a.i(f"s_lshl_b32 s{sSr}, s6, 10")
    a.i("v_bfe_u32 v33, v2, 1, 4"); a.i("v_and_b32 v36, 1, v2"); a.i("v_lshlrev_b32 v33, 4, v33"); a.i("v_lshl_add_u32 v33, v36, 8, v33"); a.i(f"v_lshl_add_u32 v{vP}, v32, 17, v33")
    a.i(f"s_lshl_b32 s7, s{sQ}, 13"); a.i(f"v_add_u32 v{vHw}, s7, v3")
    a.i(f"s_add_u32 s7, s{sTmp}, s3"); a.i("s_lshl_b32 s7, s7, 14"); a.i("s_lshl_b32 s45, s4, 9"); a.i(f"s_add_u32 s45, s45, {PART_OFF}")
    a.i(f"s_add_u32 s{sP}, s7, s45")
    a.i(f"s_lshl_b32 s7, s{sQ}, 2"); a.i("s_add_u32 s7, s7, 128"); a.i("s_lshl_b32 s7, s7, 3"); a.i("s_add_u32 s7, s7, s3"); a.i("s_lshl_b32 s7, s7, 14")
    a.i(f"s_add_u32 s{sPo}, s7, s45")
    a.i("v_and_b32 v33, 31, v2"); a.i(f"s_mul_i32 s7, s{sQ}, 9216"); a.i("v_lshl_add_u32 v34, v32, 9, s7")
    for c in range(4):
        a.i(f"s_add_u32 s5, s{sQ}, {c}"); a.i("s_and_b32 s5, s5, 3"); a.i("s_lshl_b32 s5, s5, 1")
        a.i("v_add_u32 v36, s5, v32"); a.i("v_xor_b32 v36, v36, v33"); a.i(f"v_lshl_add_u32 v{vX[c]}, v36, 4, v34")
    a.i(f"v_lshlrev_b32 v46, 2, v33"); a.i(f"v_add_u32 v46, {BIAS_OFF}, v46")
    a.i("v_lshrrev_b32 v32, 3, v2"); a.i("v_and_b32 v33, 7, v2")
    a.i(f"s_lshr_b32 s5, s{sQ}, 1"); a.i("s_mul_i32 s5, s5, 36864"); a.i(f"s_and_b32 s6, s{sQ}, 1"); a.i("s_lshl_b32 s6, s6, 8"); a.i("s_add_u32 s5, s5, s6")
    a.i("v_xor_b32 v34, v32, v33"); a.i("v_lshl_add_u32 v34, v34, 4, s5"); a.i("v_lshl_add_u32 v47, v33, 9, v34")
    a.i(f"s_lshl_b32 s5, s{sQ}, 6"); a.i(f"s_add_u32 s5, s5, {BIAS_OFF}"); a.i("v_lshl_add_u32 v48, v32, 2, s5")
    a.i("s_lshl_b32 s5, s4, 9"); a.i(f"s_lshl_b32 s6, s{sQ}, 7"); a.i("s_add_u32 s5, s5, s6"); a.i(f"s_add_u32 s5, s5, {ST_OFF}")
    a.i("v_lshl_add_u32 v49, v32, 3, s5")
    a.i("v_lshlrev_b32 v40, 3, v52"); a.i(f"s_mul_i32 s5, s3, {18*16384}"); a.i(f"s_add_u32 s5, s5, {XT_OFF}"); a.i("v_add_u32 v40, s5, v40")
    a.i(f"s_lshl_b32 s5, s{sQ}, 15"); a.i("v_add_u32 v41, s5, v40")
    for r in (27, 28, 29, 31): a.i(f"v_mov_b32 v{r}, 0")
    for r in range(240, 256):
        if r % 2 or r in (240, 254): a.i(f"v_accvgpr_write_b32 a{r}, 0")
    a.i("s_mov_b32 s5, 0x3f803f80"); a.i("s_mov_b32 s6, 0x00003f80"); a.i("s_mov_b32 s7, 0x3f800000")
    if PT & 1:
        ppf = lambda: ids.__setitem__('pf', a.vmem("global_load_dword v75, v74, s[94:95]"))
        if PPA == 0: LATE.append(ppf)
    if PT & 2:
        a.i("v_and_b32 v76, 31, v2"); a.i(f"v_lshl_add_u32 v76, v76, 17, s{sP}")
        a.i("v_and_b32 v77, 3, v2"); a.i(f"v_lshl_add_u32 v77, v77, 17, s{sPo}")
        a.i("v_cmp_gt_u32 vcc, 32, v2"); a.i("s_nop 1"); a.i("v_cndmask_b32 v76, v77, v76, vcc")
        PF1.append(0); LATE.insert(nb + NPF, lambda: ids.__setitem__('pf', a.vmem(f"buffer_load_dword v77, v76, s[{sWS}:{sWS+3}], 0 offen")))
    dg.mark("ln0")
    A = 32
    for p in range(2):
        for i in range(9):
            a.wait_vm(xl[(p, i)])
            for r in range(4):
                x = RX + 36*p + 4*i + r; h = r & 1
                c0 = "0" if (i == 0 and r < 2) else f"v{A+4*p+h}"; c1 = "0" if (i == 0 and r < 2) else f"v{A+4*p+2+h}"
                a.i(f"v_dot2_f32_bf16 v{A+4*p+h}, v{x}, s5, {c0}")
                a.i(f"v_dot2_f32_bf16 v{A+4*p+2+h}, v{x}, v{x}, {c1}")
            if LATE: LATE.pop(0)()
        if p == 1: dg.mark("sum")
        a.nop(3)
        a.i(f"v_add_f32 v{A+4*p}, v{A+4*p}, v{A+4*p+1}"); a.i(f"v_add_f32 v{A+4*p+2}, v{A+4*p+2}, v{A+4*p+3}")
        for dpp in ("quad_perm:[1,0,3,2]", "quad_perm:[2,3,0,1]", "row_half_mirror"):
            a.nop(1)
            for r in (A+4*p, A+4*p+2): a.i(f"v_add_f32_dpp v{r}, v{r}, v{r} {dpp} row_mask:0xf bank_mask:0xf")
        def both(f): a.i(f.format(m=A+4*p, s=A+4*p+1, v=A+4*p+2, t=A+4*p+3, u=50))
        both(f"v_mul_f32 v{{m}}, {fl(1.0/576)}, v{{m}}"); both(f"v_mul_f32 v{{v}}, {fl(1.0/576)}, v{{v}}")
        both("v_fma_f32 v{v}, -v{m}, v{m}, v{v}"); both("v_max_f32 v{v}, 0, v{v}")
        both("v_cvt_pk_bf16_f32 v{t}, v{m}, v{v}"); both("v_lshlrev_b32 v{m}, 16, v{t}"); both("v_and_b32 v{v}, 0xffff0000, v{t}")
        both("v_xor_b32 v{u}, 0x80000000, v{m}")
        ST = [f"v_add_f32 v{{v}}, {fl(1e-5)}, v{{v}}", "v_cvt_pk_bf16_f32 v{v}, v{v}, v{v}", "v_lshlrev_b32 v{v}, 16, v{v}", "v_sqrt_f32 v{s}, v{v}",
              "v_rcp_f32 v{t}, v{s}", "v_fma_f32 v{v}, -v{s}, v{s}, v{v}", "v_mul_f32 v{t}, 0.5, v{t}", "v_fmac_f32 v{s}, v{v}, v{t}",
              "v_cvt_pk_bf16_f32 v{s}, v{s}, v{s}", "v_lshlrev_b32 v{s}, 16, v{s}"]
        for i in range(9):
            t = 200 + 8 * (i & 1)
            for r in range(4):
                x = RX + 36*p + 4*i + r
                if DM == 0:
                    a.i(f"v_dot2_f32_bf16 v{t+2*r}, v{x}, s6, v50"); a.i(f"v_dot2_f32_bf16 v{t+2*r+1}, v{x}, s7, v50")
                else:
                    a.i(f"v_lshlrev_b32 v{t+2*r}, 16, v{x}"); a.i(f"v_and_b32 v{t+2*r+1}, 0xffff0000, v{x}")
            if DM:
                for r in range(4): a.i(f"v_pk_add_f32 v[{t+2*r}:{t+2*r+1}], v[{t+2*r}:{t+2*r+1}], v[50:51] op_sel_hi:[1,0]")
            both(ST.pop(0))
            if i == 8: both(ST.pop(0))
            if LATE: LATE.pop(0)()
            elif XTL and i % 3 == 2 and p == 1: XTL.pop(0)()
            for r in range(4):
                x = RX + 36*p + 4*i + r
                a.i(f"v_cvt_pk_bf16_f32 v{x}, v{t+2*r}, v{t+2*r+1}")
            a.dsop(f"ds_write_b128 v47, v[{RX+36*p+4*i}:{RX+36*p+4*i+3}] offset:{128*p + 4096*i}")
        a.dsop(f"ds_write_b32 v48, v{A+4*p+1} offset:{32*p}")
    assert not LATE and not XTL
    a.wait_vm(ids['b'])
    for n in range(6): a.i(f"v_lshlrev_b32 v{228+n}, 16, v{228+n}")
    for n in range(6): a.i(f"v_accvgpr_write_b32 a{242+2*n}, v{228+n}")
    if PF2T == 'ln1': pf2()
    if PPA == 1: ppf()
    a.wait_ds(a.ds); a.i("s_barrier")
    dg.mark("ln1")
    for tt in range(2): sid = a.dsop(f"ds_read_b32 v{vSt[tt]}, v46 offset:{128*tt}")

    Q = []
    bready = {}
    def push(cost, fn, deps=(), key=None, fence=False):
        it = Item(cost, fn, list(deps), key, fence); Q.append(it); return it
    def emit(it):
        for d, dist in it.deps:
            assert d.at is not None
            gap = a.n - d.at
            if gap < min(dist, 2): a.nop(min(dist, 2) - gap)
        Q.remove(it); it.fn(); it.at = a.n
    def ready(it): return all(d.at is not None and a.n - d.at >= dist for d, dist in it.deps)
    def fill(budget):
        while budget > 0 and Q:
            pick = None
            for idx, it in enumerate(Q[:64]):
                if it.fence:
                    if idx == 0 and it.cost <= budget: pick = it
                    break
                if it.cost <= budget and ready(it): pick = it; break
            if pick is None: return
            n0 = a.n; emit(pick); budget -= max(pick.cost, a.n - n0)
    def flush_until(key):
        if not any(it.key == key for it in Q): return
        while True:
            it = Q[0]
            for idx, c in enumerate(Q[:64]):
                if c.fence or c.key == key: break
                if ready(c): it = c; break
            emit(it)
            if it.key == key: break
    def push_bload(ph, sigma, tt, addr, imm, vmw=None):
        def fn():
            if vmw: a.wait_vm(vmw)
            bready[(ph, sigma, tt)] = a.dsop(f"ds_read_b128 {breg(ph, sigma, tt)}, v{addr} offset:{imm}")
        return push(1, fn, key=('B', ph, sigma, tt), fence=bool(vmw))
    def push_barrier(key=None, vmw=None):
        def fn():
            if vmw: a.wait_vm(vmw)
            a.wait_ds(a.ds); a.i("s_barrier")
        push(2, fn, key=key, fence=True)
    def push_fence(key=None): push(0, lambda: None, key=key, fence=True)
    gq = [0]; gp = [0]
    last_t = {}; last_pk = {}
    def push_gelu8(x, waddr, wimm, tt):
        ps = gp[0] % 4; pk = PK + 4 * ps; gp[0] += 1
        cv = []
        for hq in range(2):
            ts = gq[0] % 4; gq[0] += 1
            xs = x[4*hq:4*hq+4]; t = [GT + 4 * ts + e for e in range(4)]
            fin = []
            for e in range(4):
                d0 = [(z, 0) for z in last_t.get(ts, [])]
                def f1(e=e, xs=xs, t=t):
                    a.need_mfma([xs[e]]); a.i(f"v_mul_f32 v{t[e]}, v{xs[e]}, v{xs[e]}")
                i1 = push(1, f1, d0)
                i2 = push(1, lambda e=e, t=t: a.i(f"v_fma_f32 v{t[e]}, v{t[e]}, v{vC1p[tt]}, v{vC0p[tt]}"), [(i1, DP)])
                i3 = push(1, lambda e=e, t=t, xs=xs: a.i(f"v_mul_f32 v{t[e]}, v{xs[e]}, v{t[e]}"), [(i2, DP)])
                i4 = push(2, lambda e=e, t=t: a.i(f"v_exp_f32 v{t[e]}, v{t[e]}"), [(i3, DP)])
                i5 = push(1, lambda e=e, t=t: a.i(f"v_fma_f32 v{t[e]}, v{t[e]}, v{vSt[tt]}, v{vSt[tt]}"), [(i4, DT)])
                i6 = push(2, lambda e=e, t=t: a.i(f"v_rcp_f32 v{t[e]}, v{t[e]}"), [(i5, DP)])
                i7 = push(1, lambda e=e, t=t, xs=xs: a.i(f"v_mul_f32 v{t[e]}, v{xs[e]}, v{t[e]}"), [(i6, DT)])
                fin.append(i7)
            c = []
            for e in range(2):
                dd = [(fin[2*e], DP), (fin[2*e+1], DP)] + [(z, 2) for z in last_pk.get(ps, [])]
                c.append(push(1, lambda e=e, t=t, hq=hq: a.i(f"v_cvt_pk_bf16_f32 v{pk+2*hq+e}, v{t[2*e]}, v{t[2*e+1]}"), dd))
            last_t[ts] = c; cv += c
        w = push(1, lambda: a.dsop(f"ds_write_b128 v{waddr}, v[{pk}:{pk+3}] offset:{wimm}"), [(z, 0) for z in cv])
        last_pk[ps] = [w]
    def unit(acc, t, tt): return acc + 16 * (2 * t + tt)
    def push_gelu_pair(acc, p):
        for t in range(2):
            for tt in range(2):
                for kp in range(2):
                    b = unit(acc, t, tt) + 8 * kp
                    push_gelu8(list(range(b, b + 8)), vHw, tt * 36864 + (4 * p + 2 * t + kp) * 1024, tt)
    SB = (0, 16, 36, 52)
    def push_odd_reduce(acc, first):
        first = False
        push(1, lambda: a.i(f"v_add_u32 v{vS}, s{sSw}, v3"), fence=True)
        push_fence()
        for n in range(16):
            def f(n=n):
                a.need_mfma(list(range(acc + 4*n, acc + 4*n + 4)))
                a.dsop(f"ds_write_b128 v{vS}, v[{acc+4*n}:{acc+4*n+3}] offset:{n*1024}")
            push(1, f)
        push_barrier()
        push(1, lambda: a.i(f"v_add_u32 v{vS}, s{sSr}, v3"), fence=True)
        push_fence()
        rid = {}
        for src in range(4):
            for tt in range(2):
                for jj in range(2):
                    b = acc + 16 * src + 8 * tt + 4 * jj
                    def f(b=b, src=src, tt=tt, jj=jj):
                        rid[(src, tt, jj)] = a.dsop(f"ds_read_b128 v[{b}:{b+3}], v{vS} offset:{(SB[src] + 4*tt + jj)*1024}")
                    push(1, f)
        if first:
            for jj in range(2):
                def f(jj=jj): rid[('b', jj)] = a.dsop(f"ds_read_b128 v[{GT+4*jj}:{GT+3+4*jj}], v{vBo} offset:{512 + jj*32}")
                push(1, f)
        push_fence()
        for src in range(1, 4):
            for tt in range(2):
                for jj in range(2):
                    for e in range(4):
                        def f(src=src, tt=tt, jj=jj, e=e):
                            a.wait_ds(rid[(src, tt, jj)])
                            d = acc + 8*tt + 4*jj + e
                            a.i(f"v_add_f32 v{d}, v{d}, v{d + 16*src}")
                        push(1, f)
        if first:
            for tt in range(2):
                for jj in range(2):
                    for e in range(4):
                        def f(tt=tt, jj=jj, e=e):
                            a.wait_ds(rid[('b', jj)])
                            d = acc + 8*tt + 4*jj + e
                            a.i(f"v_add_f32 v{d}, v{d}, v{GT+4*jj+e}")
                        push(1, f)
        push_fence()
    def push_store(x0, x1, sreg, imm):
        ps = gp[0] % 4; pk = PK + 4 * ps; gp[0] += 1
        c = []
        for k, xb in enumerate((x0, x0 + 2, x1, x1 + 2)):
            def f(k=k, xb=xb):
                a.need_mfma([xb, xb + 1]); a.i(f"v_cvt_pk_f16_f32 v{pk+k}, v{xb}, v{xb+1}")
            c.append(push(1, f, [(z, 2) for z in last_pk.get(ps, [])]))
        def f():
            a.i(f"s_add_u32 s{sTmp}, s{sreg}, {imm}")
            a.vmem(f"buffer_store_dwordx4 v[{pk}:{pk+3}], v{vP}, s[{sWS}:{sWS+3}], s{sTmp} offen sc1")
        last_pk[ps] = [push(2, f, [(z, 0) for z in c])]
    def push_epi(acc, p):
        for t in range(2):
            for j in range(4):
                push_store(unit(acc, t, 0) + 4*j, unit(acc, t, 1) + 4*j, sP, (16*p + 8*t + 2*j) * 131072)

    def push_x(sg):
        g, i = divmod(sg, 9)
        if i == 0 and g > 0:
            for c in range(4): push(1, lambda c=c, g=g: a.i(f"v_add_u32 v{vX[c]}, s{sDl[g-1]}, v{vX[c]}"))
        for tt in range(2): push_bload(1, sg, tt, vX[(g + i) & 3], tt * 36864 + i * 1024)
    for sg in range(3): push_x(sg)
    def fst():
        a.wait_ds(sid)
        for tt in range(2): a.i(f"v_rcp_f32 v{vC0p[tt]}, v{vSt[tt]}")
        a.i(f"s_lshl_b32 s5, s{sQ}, 1"); a.i("s_sub_u32 s5, s5, s3")
        for tt in range(2): a.i(f"v_mul_f32 v{vC1p[tt]}, v{vC0p[tt]}, v{vC0p[tt]}")
        for tt in range(2): a.i(f"v_mul_f32 v{vC1p[tt]}, v{vC1p[tt]}, v{vC0p[tt]}")
        for tt in range(2): a.i(f"v_mul_f32 v{vC1p[tt]}, {fl(C1)}, v{vC1p[tt]}")
        for tt in range(2): a.i(f"v_mul_f32 v{vC0p[tt]}, {fl(C0)}, v{vC0p[tt]}")
    push(10, fst, fence=True, key=('st',))
    def exports():
        for p in range(2):
            def f(p=p):
                a.i(f"s_add_u32 s6, s5, {p}"); a.i("s_cmp_eq_u32 s6, 0"); a.i(f"s_cselect_b32 s6, {64*p}, {WS_BYTES}")
                a.i(f"v_add_u32 v{50+p}, s6, v49")
                a.vmem(f"buffer_store_dwordx2 v[{A+4*p}:{A+4*p+1}], v{50+p}, s[{sWS}:{sWS+3}], 0 offen")
            push(5, f)
        for k, (va, cgo) in enumerate(((41, 0), (41, 8), (40, 16))):
            for h in range(2):
                def f(k=k, h=h, va=va, cgo=cgo):
                    a.wait_vm(ids['xt']); a.i(f"s_mov_b32 s6, {(cgo + h) * 16384}")
                    a.vmem(f"buffer_store_dwordx2 v[{216+4*k+2*h}:{217+4*k+2*h}], v{va}, s[{sWS}:{sWS+3}], s6 offen")
                push(2, f)
    def bias_mfma(acc, n0):
        for t in range(2):
            for tt in range(2):
                d = unit(acc, t, tt); ab = 242 + 2 * (n0 + t) - 2 * tt; bb = 26 + 2 * tt
                a.i(f"v_mfma_f32_32x32x16_bf16 v[{d}:{d+15}], a[{ab}:{ab+3}], v[{bb}:{bb+3}], 0")
                a.mfma_wrote(d, 16); fill(SLOTS - 1)
    def areg(k, t): return 224 + 8 * (k % 2) + 4 * t
    tr_id = {}
    def tr(k, t):
        st = steps[k]; b = areg(k, t); jo = 512 if st['ph'] == 1 else 1024
        a.wait_vm(dma_id[k])
        a.dsop(f"ds_read_b64_tr_b16 a[{b}:{b+1}], v{vT[st['ph']][t]} offset:{(k % NR)*2048}")
        tr_id[(k, t)] = a.dsop(f"ds_read_b64_tr_b16 a[{b+2}:{b+3}], v{vT[st['ph']][t]} offset:{(k % NR)*2048 + jo}")
    tr(0, 0); tr(0, 1)
    flush_until(('st',))
    for sg in range(3, 9): push_x(sg)
    def event(tag):
        if tag == ('O1', 0): bias_mfma(R2, 0)
        if tag == ('P0', 0): a.raw('; SCOUTEND')
        if tag == ('P0', 0): a.wait_vm(ids['pf']); bias_mfma(R1, 2)
        if tag == PF2T: pf2()
        if PF2AT == 3 and tag[0] == 'P0':
            for j in range(16):
                if j * PF2S // 2 == tag[1]:
                    a.i(f"s_cmp_lg_u32 s96, {j}"); a.i(f"s_cbranch_scc1 ka_pf{j}")
                    for jj in range(2): a.i(f"buffer_load_dword v{61+jj}, v{58+jj}, s[{sW2}:{sW2+3}], 0 offen")
                    a.raw(f"ka_pf{j}:"); a.n -= 2
        if tag == ('P0', XE - 9 + 1):
            push_barrier()
            push_odd_reduce(R2, True)
            for tt in range(2):
                push_gelu8(list(range(R2 + 8*tt, R2 + 8*tt + 8)), vHo[0], tt * 36864, tt)
            push_barrier(('B4',))
        if tag == ('P1', 0):
            flush_until(('B4',)); a.wait_vm(ids.get('pf2', 0))
            push_gelu_pair(R1, 0)
            bias_mfma(R2, 4)
            for g in range(4):
                i1 = push(1, lambda g=g: a.i(f"v_sub_u32 v{vX[g]}, v{vHo[g]}, v3"))
                i2 = push(1, lambda g=g: a.i(f"v_add_u32 v{vX[g]}, {(-32768) & 0xffffffff}, v{vX[g]}"), [(i1, 0)])
                push(1, lambda g=g: a.i(f"v_lshl_add_u32 v{vX[g]}, v{vX[g]}, 3, v3"), [(i2, 0)])
            push_barrier(('B5',))
        if tag == ('D0s1', 0):
            flush_until(('B5',))
            for n in range(20):
                g, i = divmod(n, 5)
                for tt in range(2):
                    if i < 4: push_bload(2, ('s1', n), tt, vX[g], tt * 36864 + i * 1024)
                    else: push_bload(2, ('s1', n), tt, vHo[g], tt * 36864)
            flush_until(('B', 2, ('s1', 1), 1))
            push_gelu_pair(R2, 1)
            push_barrier(('B6',))
            for n in range(16):
                g, i = divmod(n, 4)
                for tt in range(2): push_bload(2, ('s2', n), tt, vX[g], tt * 36864 + (4 + i) * 1024)
            push_barrier(('B7',))
        def epi1(acc, p, n):
            t, j = divmod(n, 4)
            push_store(unit(acc, t, 0) + 4*j, unit(acc, t, 1) + 4*j, sP, (16*p + 8*t + 2*j) * 131072)
        if tag[0] == 'D1s2' and tag[1] % 2 == 0: epi1(R1, 0, tag[1] // 2)
        if tag == ('O2', 0):
            push_fence(('epi0',)); flush_until(('epi0',))
        if tag[0] == 'O2' and tag[1] < 8: epi1(R3, 1, tag[1])
    for k, st in enumerate(steps):
        if st['tag'] in (('P0',0),('P1',0),('D0s1',0),('D1s1',0),('D0s2',0),('D1s2',0),('O2',0)): dg.mark(str(st['tag']))
        for sg in range(9, 36):
            if (sg - 9) * (XE - XB) // 26 + XB == k: push_x(sg)
        if k == 2: exports()
        event(st['tag'])
        ph, sg, acc = st['ph'], st['sigma'], st['acc']
        for m in range(4):
            t, tt = divmod(m, 2)
            if (ph, sg, tt) not in bready: flush_until(('B', ph, sg, tt))
            a.wait_ds(max(bready[(ph, sg, tt)], tr_id[(k, t)]))
            d = unit(acc, t, tt)
            if st['cinit'] == 'zero': c = "0"
            elif st['cinit'] == 'bias':
                flush_until(('bias', acc, t, 3)); a.wait_ds(bready[('bias', acc, t)])
                cb = unit(acc, t, 1); c = f"v[{cb}:{cb+15}]"
            else: c = f"v[{d}:{d+15}]"
            ab = areg(k, t)
            n0 = a.n
            a.i(f"v_mfma_f32_32x32x16_bf16 v[{d}:{d+15}], a[{ab}:{ab+3}], {breg(ph, sg, tt)}, {c}")
            a.mfma_wrote(d, 16)
            if m == 0 and k + 1 < NS: tr(k + 1, 0)
            if m == 1 and k + 1 < NS: tr(k + 1, 1)
            if m == 2 and k + NR < NS: dma(k + NR)
            used = a.n - n0 - 1
            fill(SLOTS - used - (1 if m in (1, 3) else 0))
    dg.mark("last")
    push_odd_reduce(R1, False)
    for jj in range(2):
        push_store(R1 + 4*jj, R1 + 8 + 4*jj, sPo, jj * 2 * 131072)
    push_fence(('fin',)); flush_until(('fin',))
    dg.dump(54, sQ, 4, 28)
    a.raw("ka_end:")
    a.i("s_endpgm")
    return a.text(), kd(name, 512, 256)
```

```python
from common import *
import math
CS = 4416; KCH = 4 * CS; RS = 144; U1 = 48 * RS + 128; UCH = 13968
U_OFF = 4 * KCH
SC_OFF = U_OFF + 4 * UCH
K3_LDS = SC_OFF + 32768
YS = 4096 + 64
CHB = 27984; BT = 11088; TS = 1808
T_OFF = SC_OFF + 16384
SCL_OFF = T_OFF + 4 * TS
ST_OFF = XU_OFF
L2E = math.log2(math.e)
L2E_hi = struct.unpack("<f", struct.pack("<f", L2E))[0]
L2E_lo = L2E - L2E_hi
sWS, sOUT = 8, 12
PB = 192
XN0, XN1 = [int(x) for x in os.environ.get('XNS', '16,16').split(',')]
P_EARLY, P_A, P_B, P_C, P_D, F_S, F_N = [int(x) for x in os.environ.get('PSCH', '0,2,4,4,1,12,4').split(',')]
def gen():
    a = Asm(); name = "kb_kernel"
    header(a, name)
    a.i("s_cmp_ge_u32 s2, 144"); a.i("s_cbranch_scc1 kb_end")
    dg = Diag(a, 2); dg.start(); dg.mark("start")
    a.i("s_load_dwordx16 s[32:47], s[0:1], 0")
    a.i("s_load_dwordx2 s[48:49], s[0:1], 128")
    a.i("s_load_dwordx4 s[52:55], s[0:1], 104")
    a.i("s_load_dwordx2 s[50:51], s[0:1], 64")
    a.i("v_lshrrev_b32 v1, 6, v0"); a.i("v_and_b32 v2, 63, v0")
    a.i("v_readfirstlane_b32 s20, v1")
    a.i("s_and_b32 s3, s2, 7"); a.i("s_lshr_b32 s4, s2, 3")
    a.i("s_lshl_b32 s5, s3, 4"); a.i("s_add_u32 s5, s5, s4")
    a.i("s_lshl_b32 s6, s3, 1"); a.i("s_add_u32 s6, s6, s4"); a.i("s_add_u32 s6, s6, 112")
    a.i("s_cmp_lt_u32 s4, 16"); a.i("s_cselect_b32 s21, s5, s6")
    a.i("s_and_b32 s22, s20, 3"); a.i("s_lshr_b32 s23, s20, 2")
    a.i("s_lshl_b32 s24, s21, 2"); a.i("s_add_u32 s24, s24, s22")
    a.i("s_lshl_b32 s5, s24, 8"); a.i("v_lshl_add_u32 v3, v2, 2, s5")
    a.i("s_lshl_b32 s5, s24, 1"); a.i("v_mov_b32 v4, s5")
    a.i("v_lshrrev_b32 v156, 4, v0"); a.i("v_and_b32 v157, 15, v0")
    a.i("v_lshlrev_b32 v158, 6, v156"); a.i("v_lshl_add_u32 v158, v157, 1, v158")
    a.i("s_lshl_b32 s6, s21, 14"); a.i("v_lshl_add_u32 v190, v158, 3, s6")
    a.i(f"v_lshlrev_b32 v189, 3, v158"); a.i(f"v_add_u32 v189, {ST_OFF}, v189")
    a.i("v_lshlrev_b32 v188, 9, v156"); a.i("v_lshl_add_u32 v188, v157, 4, v188")
    a.i(f"s_mul_i32 s25, s22, {CHB}")
    a.i(f"s_mul_i32 s26, s22, {TS}"); a.i(f"s_add_u32 s26, s26, {T_OFF}")
    a.i("s_waitcnt lgkmcnt(0)")
    for k, sb in enumerate((34, 36, 38, 40, 42, 44)):
        a.vmem(f"global_load_dword v{10+k}, v3, s[{sb}:{sb+1}]")
    pm = a.vmem("global_load_ushort v16, v4, s[46:47]")
    a.vmem("global_load_dwordx4 v[172:175], v190, s[48:49]"); a.vmem("global_load_dwordx4 v[176:179], v190, s[48:49] offset:256")
    a.vmem("global_load_dwordx4 v[180:183], v189, s[48:49]"); xs = a.vmem("global_load_dwordx4 v[184:187], v189, s[48:49] offset:256")
    srd(a, sWS, 48, WS_BYTES); srd(a, sOUT, 54, 2359296)
    a.i("s_lshl_b32 s5, s21, 3")
    a.i("s_add_u32 s56, s50, s5"); a.i("s_addc_u32 s57, s51, 0")
    a.i("s_load_dwordx2 s[16:17], s[56:57], 0")
    a.i("s_add_u32 s56, s52, s5"); a.i("s_addc_u32 s57, s53, 0")
    a.i("s_load_dwordx2 s[18:19], s[56:57], 0")
    a.i("s_lshl_b32 s27, s21, 17"); a.i(f"s_add_u32 s27, s27, {PART_OFF}")
    pn = [0]; pid = {}
    def part(cnt):
        for _ in range(cnt):
            n = pn[0]
            if n >= 16: return
            pn[0] += 1
            s_, u = divmod(n, 2)
            if u == 0 and s_ > 0: a.i(f"s_add_u32 s27, s27, 16384")
            pid[n] = a.vmem(f"buffer_load_dwordx4 v[{PB+8*s_+4*u}:{PB+3+8*s_+4*u}], v188, s[{sWS}:{sWS+3}], s27 offen offset:{256*u}")
    part(P_EARLY)
    a.raw('; SCOUT')
    a.i("s_add_u32 s5, s26, 1276"); a.i("v_lshlrev_b32 v5, 2, v2"); a.i("v_sub_u32 v64, s5, v5")
    a.i("v_add_u32 v5, 1, v2"); a.i("v_lshrrev_b32 v5, 6, v5"); a.i("v_lshlrev_b32 v5, 1, v5"); a.i("v_sub_u32 v65, v64, v5")
    a.i("s_cmp_eq_u32 s23, 0"); a.i("s_cbranch_scc1 kb_ga")
    a.i("s_lshl_b32 s5, s23, 10"); a.i("s_sub_u32 s5, 2047, s5")
    a.i("v_lshlrev_b32 v5, 4, v2"); a.i("v_sub_u32 v5, s5, v5")
    for e in range(0, 20, 2):
        a.i(f"v_subrev_u32 v6, {e}, v5"); a.i(f"v_subrev_u32 v7, {e+1}, v5")
        a.i("v_cvt_f32_u32 v8, v6"); a.i("v_cvt_f32_u32 v9, v7")
        a.i("v_cvt_pk_bf16_f32 v8, v8, v9")
        a.i("v_min_u32 v6, 256, v6"); a.i("v_min_u32 v7, 256, v7")
        a.i("v_lshrrev_b32 v9, 16, v8"); a.i("v_and_b32 v8, 0xffff, v8")
        a.i(f"v_add_u32 v8, {(-0x4280) & 0xffffffff}, v8"); a.i(f"v_add_u32 v9, {(-0x4280) & 0xffffffff}, v9")
        a.i("v_max_i32 v6, v6, v8"); a.i("v_max_i32 v7, v7, v9")
        if e >= 16: a.i("v_min_u32 v6, 896, v6"); a.i("v_min_u32 v7, 896, v7")
        a.i(f"v_lshl_add_u32 v{64+e}, v6, 1, s26"); a.i(f"v_lshl_add_u32 v{65+e}, v7, 1, s26")
    a.raw("kb_ga:")
    a.i("v_mov_b32 v8, 0"); a.i("v_mov_b32 v9, s26")
    a.i("s_mov_b64 exec, 1"); a.dsop("ds_write_b32 v9, v8 offset:1792"); a.i("s_mov_b64 exec, -1")
    a.i("v_and_b32 v6, 15, v2")
    a.i("s_lshl_b32 s5, s23, 4")
    a.i("v_add_u32 v6, s5, v6")
    a.i("v_lshrrev_b32 v7, 4, v2")
    a.i("v_max_u32 v8, 1, v7")
    a.i("v_sub_u32 v8, 4, v8")
    a.i("v_lshlrev_b32 v8, v8, v6")
    a.i("v_lshlrev_b32 v9, 2, v7")
    a.i("v_lshlrev_b32 v17, 7, v7")
    a.i("v_cmp_gt_u32 vcc, 2, v7")
    a.i("s_nop 1")
    a.i("v_cndmask_b32 v9, v17, v9, vcc")
    a.i("v_add_u32 v8, v8, v9")
    a.i("v_lshl_add_u32 v150, v8, 1, s26")
    a.i("v_cmp_eq_u32 vcc, 3, v7")
    a.i("v_mov_b32 v9, 4")
    a.i("v_mov_b32 v17, 128")
    a.i("v_cndmask_b32 v9, v9, v17, vcc")
    a.i("v_add_u32 v151, v150, v9")
    a.i("v_min_u32 v9, 2, v7")
    a.i("v_lshlrev_b32 v9, 7, v9")
    a.i("v_add3_u32 v9, v9, v6, 0")
    a.i("v_add_u32 v9, 512, v9")
    a.i("v_lshl_add_u32 v152, v9, 1, s26")
    a.i("v_and_b32 v8, 15, v2")
    a.i("v_mul_u32_u24 v8, 528, v8")
    a.i("v_lshl_add_u32 v8, v7, 4, v8")
    a.i("v_add_u32 v153, s25, v8")
    a.i(f"s_mul_i32 s5, s23, {16*528}")
    a.i(f"s_add_u32 s5, s5, {BT}")
    a.i("v_add_u32 v154, s5, v153")
    a.i("v_lshl_add_u32 v155, v2, 3, s25")
    a.i("v_lshlrev_b32 v170, 4, v2"); a.i("v_lshrrev_b32 v169, 5, v2")
    a.i(f"s_mul_i32 s6, s22, {KCH}"); a.i("s_lshl_b32 s7, s23, 11"); a.i("s_add_u32 s6, s6, s7"); a.i("v_lshl_add_u32 v160, v2, 5, s6")
    for r in range(144, 148): a.i(f"v_mov_b32 v{r}, 0")
    a.i(f"s_mul_i32 s6, s22, {UCH}"); a.i(f"s_mul_i32 s7, s23, {U1}"); a.i("s_add_u32 s6, s6, s7"); a.i(f"s_add_u32 s6, s6, {U_OFF}")
    a.i("v_add_u32 v161, s6, v170"); a.i("v_min_u32 v162, 15, v2"); a.i("v_lshl_add_u32 v162, v162, 4, s6")
    a.i(f"s_mul_i32 s7, s23, {16*RS}"); a.i("s_add_u32 s6, s6, s7"); a.i("v_mov_b32 v163, s6")
    a.i(f"s_mul_i32 s6, s22, {KCH}"); a.i(f"s_mul_i32 s7, s23, {2*CS}"); a.i("s_add_u32 s6, s6, s7")
    a.i("v_min_u32 v164, 6, v2"); a.i("v_lshl_add_u32 v164, v164, 4, s6")
    a.i(f"v_mul_u32_u24 v165, {RS}, v156"); a.i("v_lshl_add_u32 v165, v157, 2, v165"); a.i(f"v_add_u32 v165, {U_OFF + 16*RS}, v165")
    a.i("v_cmp_lt_u32 vcc, 13, v157"); a.i("v_mov_b32 v166, 0"); a.i("v_mov_b32 v6, 16")
    a.i("v_cndmask_b32 v166, v166, v6, vcc"); a.i("v_add_u32 v166, v165, v166")
    a.i("v_and_b32 v167, 3, v2"); a.i(f"v_mul_u32_u24 v167, {CS}, v167")
    a.i("v_bfe_u32 v6, v2, 2, 3"); a.i("v_add_u32 v6, v6, v169"); a.i("v_lshlrev_b32 v6, 4, v6"); a.i("v_sub_u32 v167, v167, v6")
    a.i(f"s_mul_i32 s6, s22, {KCH}"); a.i("s_lshl_b32 s7, s23, 10"); a.i("s_sub_u32 s6, s6, s7"); a.i(f"s_add_u32 s6, s6, {576*2}")
    a.i("v_add_u32 v167, s6, v167")
    a.i("v_bfe_u32 v168, v2, 1, 4"); a.i(f"v_mul_u32_u24 v168, {RS}, v168")
    a.i("v_and_b32 v6, 1, v2"); a.i("v_xor_b32 v6, 1, v6"); a.i(f"v_mul_u32_u24 v6, {U1}, v6"); a.i("v_add_u32 v168, v168, v6")
    a.i("v_lshlrev_b32 v6, 4, v169"); a.i("v_sub_u32 v168, v168, v6")
    a.i(f"s_mul_i32 s6, s22, {UCH}"); a.i(f"s_mul_i32 s7, s23, {8*RS}"); a.i("s_sub_u32 s6, s6, s7"); a.i(f"s_add_u32 s6, s6, {U_OFF}")
    a.i("v_add_u32 v168, s6, v168"); a.i("v_mov_b32 v171, v158")
    dg.mark("pre")
    a.wait_vm(pm)
    dg.mark("loaded")
    part(P_A)
    if int(os.environ.get('PT', '1')) & 4:
        a.i("v_mul_u32_u24 v148, 36864, v2"); a.vmem(f"buffer_load_dword v191, v148, s[{sOUT}:{sOUT+3}], 0 offen")
    a.i("v_lshlrev_b32 v16, 16, v16")
    a.i(f"v_mul_f32 v17, {fl(L2E_hi)}, v16")
    a.i(f"v_mov_b32 v18, {fl(L2E_hi)}")
    a.i("v_fma_f32 v18, v16, v18, -v17")
    a.i(f"v_fmac_f32 v18, {fl(L2E_lo)}, v16")
    a.i("v_exp_f32 v17, v17")
    a.i(f"v_mul_f32 v18, {fl(math.log(2.0))}, v18")
    a.i("v_fmac_f32 v17, v17, v18")
    a.i("v_cvt_pk_bf16_f32 v17, v17, v17")
    a.i("v_lshlrev_b32 v16, 16, v17")
    a.i("v_lshlrev_b32 v20, 16, v10"); a.i("v_and_b32 v21, 0xffff0000, v10")
    a.i("v_lshlrev_b32 v22, 16, v11"); a.i("v_and_b32 v23, 0xffff0000, v11")
    for r in (20, 21, 22, 23): a.i(f"v_mul_f32 v{r}, v16, v{r}")
    for r in (20, 21): a.i(f"v_mul_f32 v{r}, {fl(L2E)}, v{r}")
    for r in (22, 23): a.i(f"v_mul_f32 v{r}, 0.15915494, v{r}")
    def direct(dst, vv):
        for m in range(2):
            a.i(f"v_mul_f32 v{24+m}, {fl(float(vv))}, v{20+m}")
            a.i(f"v_mul_f32 v{26+m}, {fl(float(vv))}, v{22+m}")
        for m in range(2):
            a.i(f"v_exp_f32 v{24+m}, v{24+m}")
            a.i(f"v_fract_f32 v{26+m}, v{26+m}")
        for m in range(2):
            a.i(f"v_cos_f32 v{28+m}, v{26+m}")
            a.i(f"v_sin_f32 v{30+m}, v{26+m}")
        a.i("s_nop 0")
        for m in range(2):
            a.i(f"v_mul_f32 v{dst+2*m}, v{24+m}, v{28+m}")
            a.i(f"v_mul_f32 v{dst+2*m+1}, v{24+m}, v{30+m}")
    def put(z, off, t):
        a.i(f"v_cvt_pk_f16_f32 v{t}, v{z}, v{z+1}")
        a.i(f"v_cvt_pk_f16_f32 v{t+1}, v{z+2}, v{z+3}")
        a.dsop(f"ds_write_b64 v155, v[{t}:{t+1}] offset:{off}")
    def cm2(d, z, w, t):
        for m in range(2): a.i(f"v_pk_mul_f32 v[{t+2*m}:{t+2*m+1}], v[{z+2*m}:{z+2*m+1}], v[{w+2*m}:{w+2*m+1}] op_sel:[0,0] op_sel_hi:[0,1]")
        for m in range(2): a.i(f"v_pk_fma_f32 v[{d+2*m}:{d+2*m+1}], v[{z+2*m}:{z+2*m+1}], v[{w+2*m}:{w+2*m+1}], v[{t+2*m}:{t+2*m+1}] op_sel:[1,1,0] op_sel_hi:[1,0,1] neg_lo:[1,0,0]")
    a.i("s_cmp_eq_u32 s23, 1")
    a.i("s_cbranch_scc1 kb_hi")
    direct(32, 8)
    direct(40, 128)
    a.i("v_mov_b32 v36, 1.0"); a.i("v_mov_b32 v37, 0"); a.i("v_mov_b32 v38, 1.0"); a.i("v_mov_b32 v39, 0")
    for r in range(16):
        put(36, BT + r * 528, 52 + 4 * (r & 1))
        put(40, BT + (16 + r) * 528, 54 + 4 * (r & 1))
        if r < 15:
            cm2(36, 36, 32, 44)
            cm2(40, 40, 32, 48)
    a.i("s_branch kb_join")
    a.raw("kb_hi:")
    a.i("v_xor_b32 v22, 0x80000000, v22"); a.i("v_xor_b32 v23, 0x80000000, v23")
    for k, src in enumerate((12, 13, 14, 15)):
        a.i(f"v_lshlrev_b32 v{40+2*k}, 16, v{src}"); a.i(f"v_and_b32 v{41+2*k}, 0xffff0000, v{src}")
    for r in (40, 41, 42, 43): a.i(f"v_mul_f32 v{r}, v16, v{r}")
    for m in range(2):
        a.i(f"v_mul_f32 v{36+2*m}, v{44+m}, v{40+m}")
        a.i(f"v_fma_f32 v{36+2*m}, -v{46+m}, v{42+m}, v{36+2*m}")
        a.i(f"v_mul_f32 v{37+2*m}, v{44+m}, v{42+m}")
        a.i(f"v_fma_f32 v{37+2*m}, -v{46+m}, v{40+m}, -v{37+2*m}")
    a.i("v_max3_f32 v48, abs(v36), abs(v37), abs(v38)")
    a.i("v_max_f32 v49, abs(v39), abs(v39)")
    a.i("v_max_f32 v48, v48, v49")
    for rr in (8, 4, 2, 1):
        a.i("s_nop 1")
        a.i(f"v_max_f32_dpp v48, v48, v48 row_ror:{rr} row_mask:0xf bank_mask:0xf")
    a.i("s_nop 1")
    for k, ln in enumerate((0, 16, 32, 48)): a.i(f"v_readlane_b32 s{56+k}, v48, {ln}")
    a.i("s_nop 3")
    a.i("s_max_u32 s56, s56, s57"); a.i("s_max_u32 s58, s58, s59"); a.i("s_max_u32 s56, s56, s58")
    a.i("s_lshr_b32 s56, s56, 23")
    a.i("s_max_u32 s56, s56, 1"); a.i("s_min_u32 s56, s56, 253")
    a.i("s_sub_u32 s57, 254, s56"); a.i("s_lshl_b32 s57, s57, 23")
    a.i("s_lshl_b32 s56, s56, 23")
    for r in (36, 37, 38, 39): a.i(f"v_mul_f32 v{r}, s57, v{r}")
    direct(32, 1)
    direct(40, 256)
    cm2(56, 36, 40, 44)
    cm2(60, 32, 32, 48)
    put(36, 0, 52)
    cm2(86, 60, 60, 48)
    put(56, 8 * 528, 54)
    cm2(94, 56, 60, 44)
    cm2(36, 36, 32, 48); put(94, 9 * 528, 90); put(36, 1 * 528, 52)
    cm2(94, 94, 60, 44); cm2(36, 36, 32, 48); put(94, 10 * 528, 90); put(36, 2 * 528, 52)
    cm2(94, 94, 60, 44); cm2(36, 36, 32, 48); put(94, 11 * 528, 90); put(36, 3 * 528, 52)
    cm2(56, 56, 40, 44); cm2(36, 36, 32, 48); put(56, 12 * 528, 90); put(36, 4 * 528, 52)
    cm2(94, 56, 86, 44); cm2(36, 36, 32, 48); put(94, 13 * 528, 90); put(36, 5 * 528, 52)
    cm2(56, 56, 40, 44); cm2(36, 36, 32, 48); put(56, 14 * 528, 90); put(36, 6 * 528, 52)
    cm2(94, 56, 86, 44); cm2(36, 36, 32, 48); put(94, 15 * 528, 90); put(36, 7 * 528, 52)
    for row in range(16, 21):
        cm2(56, 56, 40, 44); put(56, row * 528, 52 + 2 * (row & 1))
    a.i("v_mov_b32 v48, s56"); a.i(f"s_lshl_b32 s5, s22, 2"); a.i("v_mov_b32 v49, s5")
    a.i(f"ds_write_b32 v49, v48 offset:{0}") if False else None
    a.i(f"v_add_u32 v49, {SCL_OFF}, v49"); a.i("s_mov_b64 exec, 1"); a.i("ds_write_b32 v49, v48"); a.i("s_mov_b64 exec, -1")
    a.raw("kb_join:")
    a.i("s_waitcnt lgkmcnt(0)"); a.ds_done = a.ds
    a.i("s_barrier")
    dg.mark("tables")
    part(P_B)
    def fr(k):
        b = 96 + 12 * (k % 4)
        a.dsop(f"ds_read_b128 v[{b}:{b+3}], v153 offset:{k*64}")
        a.dsop(f"ds_read_b128 v[{b+4}:{b+7}], v153 offset:{k*64 + 16*528}")
        return a.dsop(f"ds_read_b128 v[{b+8}:{b+11}], v154 offset:{k*64}")
    ids = {k: fr(k) for k in range(4)}
    a.i("s_lshl_b32 s5, s22, 2"); a.i(f"s_add_u32 s5, s5, {SCL_OFF}"); a.i("v_mov_b32 v15, s5")
    a.dsop("ds_read_b32 v15, v15")
    XN = []
    pool = list(range(84, 96)) + list(range(60, 64))
    def unp(d, s_): XN.extend([f"v_lshlrev_b32 v{d}, 16, v{s_}", f"v_and_b32 v{d+1}, 0xffff0000, v{s_}"])
    for k in range(4): XN.append(f"v_rcp_f32 v{52+2*k}, v{181+2*k}")
    for k in range(4): XN.extend([f"v_mov_b32 v{16+4*k}, v{172+2*k}", f"v_mov_b32 v{17+4*k}, v{173+2*k}"])
    for pr in range(2):
        KH = [(k, h) for k in (2*pr, 2*pr+1) for h in range(2)]
        def e(k, h): return pool[8*(k % 2) + 2*h]
        def q(k, h): return pool[8*(k % 2) + 4 + 2*h]
        def P(r): return f"v[{r}:{r+1}]"
        for k, h in KH: unp(e(k, h), 172 + 2*k + h)
        for k, h in KH: XN.append(f"v_pk_add_f32 {P(e(k,h))}, {P(e(k,h))}, {P(180+2*k)} op_sel:[0,0] op_sel_hi:[1,0] neg_lo:[0,1] neg_hi:[0,1]")
        for k, h in KH: XN.append(f"v_cvt_pk_bf16_f32 v{18+4*k+h}, v{e(k,h)}, v{e(k,h)+1}")
        for k, h in KH: unp(e(k, h), 18 + 4*k + h)
        for k, h in KH: XN.append(f"v_pk_mul_f32 {P(q(k,h))}, {P(e(k,h))}, {P(52+2*k)} op_sel:[0,0] op_sel_hi:[1,0]")
        for k, h in KH: XN.append(f"v_pk_fma_f32 {P(e(k,h))}, {P(q(k,h))}, {P(180+2*k)}, {P(e(k,h))} op_sel:[0,1,0] op_sel_hi:[1,1,1] neg_lo:[1,0,0] neg_hi:[1,0,0]")
        for k, h in KH: XN.append(f"v_pk_fma_f32 {P(q(k,h))}, {P(e(k,h))}, {P(52+2*k)}, {P(q(k,h))} op_sel:[0,0,0] op_sel_hi:[1,0,1]")
        for k, h in KH: XN.append(f"v_cvt_pk_bf16_f32 v{18+4*k+h}, v{q(k,h)}, v{q(k,h)+1}")
        for k, h in KH: unp(e(k, h), 18 + 4*k + h)
        for c in range(4): XN.append(f"v_cvt_pk_f16_f32 v{32+4*pr+c}, v{e(2*pr, c//2) + c%2}, v{e(2*pr+1, c//2) + c%2}")
    def xn(n):
        for _ in range(n):
            if XN: a.i(XN.pop(0))
    a.wait_vm(xs)
    xn(XN0)
    for k in range(8):
        b = 96 + 12 * (k % 4)
        a.wait_ds(ids[k])
        c0 = "0" if k == 0 else "v[40:43]"; c1 = "0" if k == 0 else "v[44:47]"
        a.i(f"v_mfma_f32_16x16x32_f16 v[40:43], v[{b}:{b+3}], v[{b+8}:{b+11}], {c0}")
        a.i(f"v_mfma_f32_16x16x32_f16 v[44:47], v[{b+4}:{b+7}], v[{b+8}:{b+11}], {c1}")
        xn(4)
        if k + 4 < 8: ids[k + 4] = fr(k + 4)
        if k == 3: xn(XN1)
    xn(10)
    a.i("v_cvt_pk_f16_f32 v48, v40, v41"); a.i("v_cvt_pk_f16_f32 v49, v42, v43")
    a.i("v_cvt_pk_f16_f32 v50, v44, v45"); a.i("v_cvt_pk_f16_f32 v51, v46, v47")
    a.dsop("ds_write_b32 v150, v48"); a.dsop("ds_write_b32 v151, v49")
    a.dsop("ds_write_b16 v152, v50"); a.dsop("ds_write_b16_d16_hi v152, v50 offset:64")
    a.dsop("ds_write_b16 v152, v51 offset:128"); a.dsop("ds_write_b16_d16_hi v152, v51 offset:192")
    xn(8)
    a.i("s_waitcnt lgkmcnt(0)"); a.ds_done = a.ds
    a.i("s_barrier")
    dg.mark("T")
    a.i("s_cmp_eq_u32 s23, 0"); a.i("s_cbranch_scc1 kb_g0")
    for e_ in range(19): a.i(f"ds_read_u16 v{96 + e_}, v{64+e_}")
    a.i("s_branch kb_g1")
    a.raw("kb_g0:")
    for e_ in range(3): a.i(f"ds_read_u16 v{96 + e_}, v64 offset:{2*e_}")
    a.i("ds_read_u16 v99, v65")
    a.raw("kb_g1:")
    a.ds += 1; gid = a.ds
    a.dsop("ds_write_b128 v161, v[144:147]"); a.dsop("ds_write_b128 v161, v[144:147] offset:1024")
    a.i("s_mov_b64 exec, 0xffff"); a.dsop("ds_write_b128 v162, v[144:147] offset:2048")
    a.i("s_mov_b64 exec, 1"); a.dsop("ds_write_b64 v163, v[144:145]")
    a.i("s_mov_b64 exec, 0x7f")
    a.dsop("ds_write_b128 v164, v[144:147] offset:4096"); a.dsop(f"ds_write_b128 v164, v[144:147] offset:{4096+CS}")
    a.i("s_mov_b64 exec, -1")
    part(P_C)
    xn(1000)
    for c in range(4):
        a.dsop(f"ds_write_b32 v165, v{32+c} offset:{c*UCH}"); a.dsop(f"ds_write_b32 v165, v{32+c} offset:{c*UCH + U1 + 8}")
    a.wait_ds(gid)
    a.i("s_cmp_eq_u32 s23, 0"); a.i("s_cbranch_scc1 kb_p0")
    for role in (1, 0):
        G = (lambda e: 96 + e) if role else (lambda e: 98 if e < 4 else 97 if e < 11 else 96 if e < 18 else 99)
        for c in range(4):
            for e_ in range(8): a.i(f"v_lshl_or_b32 v{64+8*c+e_}, v{G(2*e_+1+3-c)}, 16, v{G(2*e_+3-c)}")
            a.i(f"ds_write_b128 v160, v[{64+8*c}:{67+8*c}] offset:{c*CS}"); a.i(f"ds_write_b128 v160, v[{68+8*c}:{71+8*c}] offset:{c*CS+16}")
            a.i(f"ds_write_b32 v165, v{36+c} offset:{c*UCH + 64}"); a.i(f"ds_write_b32 v166, v{36+c} offset:{c*UCH + U1 + 8 + 64}")
        if role: a.i("s_branch kb_p1"); a.raw("kb_p0:")
    a.raw("kb_p1:")
    a.i("v_mov_b32 v12, v167"); a.i("v_mov_b32 v14, v168"); a.i("v_mov_b32 v13, v169"); a.i("v_mov_b32 v8, v170"); a.i("v_mov_b32 v5, v171")
    a.i("s_waitcnt lgkmcnt(0)"); a.ds_done = a.ds
    a.i("s_barrier")
    dg.mark("conv")
    def zoff(z): return (z // 64) * RS + (z % 64) * 2
    def loads(st):
        b = 64 + 16 * (st % 3)
        ya = (31 - st) * 32
        zb = 1024 + 56 - 16 * st
        a.dsop(f"ds_read_b128 v[{b}:{b+3}], v12 offset:{ya + 2048}")
        a.dsop(f"ds_read_b128 v[{b+4}:{b+7}], v14 offset:{zoff(zb)}")
        i1 = a.dsop(f"ds_read_b128 v[{b+8}:{b+11}], v14 offset:{zoff(zb + 1024)}")
        i2 = a.dsop(f"ds_read_b128 v[{b+12}:{b+15}], v12 offset:{ya}")
        return i1, i2
    F = []
    SU, TT_, XX = 112, 32, 48
    def rnd2(d0, d1, t, L=None):
        o = [f"v_cvt_pk_bf16_f32 v{t}, v{d0}, v{d1}", f"v_lshlrev_b32 v{d0}, 16, v{t}", f"v_and_b32 v{d1}, 0xffff0000, v{t}"]
        return o
    for k in range(2):
        F += [f"s_lshl_b32 s{56+2*k}, s{16+k}, 16", f"s_and_b32 s{57+2*k}, s{16+k}, 0xffff0000", f"s_lshl_b32 s{60+2*k}, s{18+k}, 16", f"s_and_b32 s{61+2*k}, s{18+k}, 0xffff0000"]
    for k in range(4):
        for c in range(4):
            sh = "v_lshlrev_b32 v{d}, 16, v{s}" if c % 2 == 0 else "v_and_b32 v{d}, 0xffff0000, v{s}"
            F.append(sh.format(d=TT_ + 4*k + c, s=18 + 4*k + c // 2))
            F.append(sh.format(d=XX + 4*k + c, s=16 + 4*k + c // 2))
    for k in range(16): F.append(f"v_mul_f32 v{TT_+k}, s{56 + k % 4}, v{TT_+k}")
    def rnd_all(base):
        o = []
        for g in range(2):
            tr_ = [rnd2(base + 8*g + 2*k, base + 8*g + 2*k + 1, 16 + k) for k in range(4)]
            for j in range(3): o += [t[j] for t in tr_]
        return o
    F += rnd_all(TT_)
    for s_ in range(1, 8):
        F.append(('vm', 2 * s_ + 1))
        for r in range(8):
            for hh in range(2):
                d = SU + 2*r + hh
                if s_ == 1: F.append(f"v_fma_mix_f32 v{d}, v{PB+r}, 1.0, v{PB+8+r} op_sel:[{hh},0,{hh}] op_sel_hi:[1,0,1]")
                else: F.append(f"v_fma_mix_f32 v{d}, v{PB+8*s_+r}, 1.0, v{d} op_sel:[{hh},0,0] op_sel_hi:[1,0,0]")
    F += rnd_all(SU)
    for k in range(16): F.append(f"v_add_f32 v{SU+k}, s{60 + k % 4}, v{SU+k}")
    F += rnd_all(SU)
    def fill(n):
        while n > 0 and F:
            f = F.pop(0)
            if isinstance(f, tuple): a.wait_vm(pid[f[1]])
            else: a.i(f); n -= 1
    ld = {0: loads(0), 1: loads(1)}
    for st in range(32):
        b = 64 + 16 * (st % 3)
        if st + 2 < 32: ld[st + 2] = loads(st + 2)
        a.wait_ds(ld[st][0])
        c0 = "0" if st == 0 else "v[128:143]"; c1 = "0" if st == 0 else "v[144:159]"
        nf = F_N if st >= F_S else (3 if any(isinstance(f, tuple) for f in F[12:]) and not any(isinstance(f, tuple) for f in F[:12]) else 0)
        a.i(f"v_mfma_f32_32x32x16_f16 v[128:143], v[{b}:{b+3}], v[{b+4}:{b+7}], {c0}")
        fill(nf)
        a.i(f"v_mfma_f32_32x32x16_f16 v[144:159], v[{b}:{b+3}], v[{b+8}:{b+11}], {c1}")
        part(P_D)
        fill(nf)
        a.wait_ds(ld[st][1])
        a.i(f"v_mfma_f32_32x32x16_f16 v[144:159], v[{b+12}:{b+15}], v[{b+4}:{b+7}], v[144:159]")
        fill(nf)
    dg.mark("convend")
    a.i(f"s_lshl_b32 s6, s20, 12"); a.i(f"s_add_u32 s6, s6, {SC_OFF}"); a.i("v_add_u32 v9, s6, v8")
    a.i("s_xor_b32 s7, s20, 4"); a.i("s_lshl_b32 s7, s7, 12"); a.i(f"s_add_u32 s7, s7, {SC_OFF}"); a.i("v_add_u32 v10, s7, v8")
    a.i("v_bfe_u32 v11, v2, 1, 4"); a.i("v_lshlrev_b32 v11, 7, v11")
    a.i("v_and_b32 v12, 1, v2"); a.i("v_lshl_add_u32 v11, v12, 3, v11")
    a.i("v_lshl_add_u32 v11, v13, 4, v11")
    a.i(f"s_mul_i32 s6, s22, {YS}"); a.i("s_lshl_b32 s7, s23, 11"); a.i("s_add_u32 s6, s6, s7"); a.i("v_add_u32 v11, s6, v11")
    a.i("v_lshlrev_b32 v12, 1, v5")
    a.i("v_mul_u32_u24 v13, 1152, v5"); a.i("s_lshl_b32 s6, s21, 3")
    a.i("v_mov_b32 v14, v15")
    a.nop(4)
    a.i("s_cmp_eq_u32 s23, 0"); a.i("s_cbranch_scc1 kb_mu0")
    def xch(send, keep):
        for k in range(4): a.i(f"ds_write_b128 v9, v[{send+4*k}:{send+3+4*k}] offset:{k*1024}")
        a.i("s_waitcnt lgkmcnt(0)")
        a.i("s_barrier")
        for k in range(4): a.i(f"ds_read_b128 v[{176+4*k}:{179+4*k}], v10 offset:{k*1024}")
        for k in range(4):
            a.i(f"s_waitcnt lgkmcnt({3-k})")
            for h in range(2): a.i(f"v_pk_add_f32 v[{160+4*k+2*h}:{161+4*k+2*h}], v[{keep+4*k+2*h}:{keep+1+4*k+2*h}], v[{176+4*k+2*h}:{177+4*k+2*h}]")
    xch(128, 144)
    a.i("s_branch kb_j")
    a.raw("kb_mu0:")
    xch(144, 128)
    a.raw("kb_j:")
    for k in range(8): a.i(f"v_pk_mul_f32 v[{160+2*k}:{161+2*k}], v[{160+2*k}:{161+2*k}], v[14:15]")
    for k in range(8): a.i(f"v_cvt_pk_bf16_f32 v{176+k}, v{160+2*k}, v{161+2*k}")
    for k in range(4): a.i(f"ds_write_b64 v11, v[{176+2*k}:{177+2*k}] offset:{32*k}")
    dg.mark("ywr")
    fill(1000)
    a.i("s_waitcnt lgkmcnt(0)")
    a.i("s_barrier")
    dg.mark("yb")
    for c in range(4):
        a.i(f"ds_read_b32 v{152+2*c}, v12 offset:{c*YS}")
        a.i(f"ds_read_b32 v{153+2*c}, v12 offset:{c*YS + 64}")
    a.i("s_waitcnt lgkmcnt(0)")
    Y = 128
    for pr in range(2):
        for u in range(2):
            for c in range(4):
                shy = "v_lshlrev_b32 v{d}, 16, v{s}" if u == 0 else "v_and_b32 v{d}, 0xffff0000, v{s}"
                a.i(shy.format(d=Y + 8*pr + 4*u + c, s=152 + 2*c + pr))
        def padd(src):
            for k in range(4*pr, 4*pr + 4): a.i(f"v_pk_add_f32 v[{Y+2*k}:{Y+2*k+1}], v[{Y+2*k}:{Y+2*k+1}], v[{src(k)}:{src(k)+1}]")
        padd(lambda k: TT_ + 2*k)
        for f in rnd_all(Y)[12*pr:12*pr+12]: a.i(f)
        padd(lambda k: XX + 2*k)
        for f in rnd_all(Y)[12*pr:12*pr+12]: a.i(f)
        padd(lambda k: SU + 8 * ((k // 2) % 2) + 4 * (k // 4) + 2 * (k % 2))
        for u in range(2):
            k = 2*pr + u
            a.i(f"v_cvt_pk_bf16_f32 v{172+2*k}, v{Y+4*k}, v{Y+4*k+1}"); a.i(f"v_cvt_pk_bf16_f32 v{173+2*k}, v{Y+4*k+2}, v{Y+4*k+3}")
            a.i(f"s_add_u32 s7, s6, {(32*pr + u) * 1152}")
            a.i(f"buffer_store_dwordx2 v[{172+2*k}:{173+2*k}], v13, s[{sOUT}:{sOUT+3}], s7 offen")
    a.raw("; SCOUTEND")
    dg.mark("st")
    dg.dump(48, 20, 8, 28)
    a.raw("kb_end:")
    a.i("s_endpgm")
    return a.text(), kd(name, 256, 256)
```

```python
from common import *
import math, os
NR = int(os.environ.get('NR', '10'))
RING = NR * 2048
XH = 73728
BIAS_OFF = XH + 4 * RING
K2_LDS = BIAS_OFF + 2304
R1, R2, R3 = 64, 128, 192
C0 = -2.0 * math.sqrt(2.0 / math.pi) * math.log2(math.e)
C1 = C0 * 0.044715
DP = int(os.environ.get('DP', '2')); DT = int(os.environ.get('DT', '4'))
ND0 = int(os.environ.get('ND0', '3'))
MAP2 = int(os.environ.get('MAP2', '1')); PF1AT = int(os.environ.get('PF1AT', '3')); PF2AT = int(os.environ.get('PF2AT', '3')); PF2S = int(os.environ.get('PF2S', '3'))
DM = int(os.environ.get('DM', '1')); XB = int(os.environ.get('XB', '3')); XE = int(os.environ.get('XE', '20'))
PT = int(os.environ.get('PT', '1'))
PPA = int(os.environ.get('PPA', '1'))
NB = int(os.environ.get('NB', '0'))
SW = int(os.environ.get('SW', '0'))
NA = int(os.environ.get('NA', '14'))
SLOTS = int(os.environ.get('SLOTS', '7'))
vW1 = {0: (4, 5), 1: (6, 7)}; vW2 = (8, 9)
vT = {1: (10, 11), 2: (12, 13)}
vX = (14, 15, 16, 17); vHo = (18, 19, 20, 21)
vS, vHw, vP = 22, 23, 25
vSt = (26, 30); vC0p = (0, 1); vC1p = (2, 24)
sSw, sSr = 62, 63
XT_OFF = XF_OFF; ST_OFF = XU_OFF
sX = 96 + 0; sDl = (97, 98, 99)
GT = 32
PK = 48
sW1, sW2, sWS, sB1 = 8, 12, 16, 20
sK1 = (24, 25, 26, 27); sA2 = {0: (28, 29, 30, 31), 1: (56, 57, 58, 59)}; sB2 = (32, 33, 34, 35)
sO1, sB2o, sP, sPo, sRing, sOff, sQ, sTmp = 36, 38, 39, 40, 41, 42, 43, 44
sA2o = {0: 37, 1: 60}; sBit = 61

def breg(phase, sigma, tt):
    if phase == 1:
        n = sigma * 2 + tt
        if n < 56: return f"a[{4*n}:{4*n+3}]"
        b = R3 + 4 * (n - 56); return f"v[{b}:{b+3}]"
    kind, k = sigma
    n = 2 * k + tt
    if kind == 's1': return f"a[{4*n}:{4*n+3}]"
    if n < 16: return f"a[{160+4*n}:{160+4*n+3}]"
    b = R2 + 4 * (n - 16); return f"v[{b}:{b+3}]"

class Item:
    __slots__ = ("cost", "fn", "deps", "key", "fence", "at")
    def __init__(s, cost, fn, deps, key, fence): s.cost, s.fn, s.deps, s.key, s.fence, s.at = cost, fn, deps, key, fence, None

def gen(code_pf_bytes):
    a = Asm(); name = "ka_kernel"
    header(a, name)
    a.i("s_cmp_ge_u32 s2, 256"); a.i("s_cbranch_scc1 ka_end")
    dg = Diag(a, 1); dg.start(); dg.mark("start")
    a.i("s_load_dwordx2 s[100:101], s[0:1], 0")
    a.i("s_load_dwordx4 s[48:51], s[0:1], 80")
    a.i("s_load_dwordx2 s[52:53], s[0:1], 96")
    a.i("s_load_dwordx2 s[54:55], s[0:1], 128")
    a.i("v_lshrrev_b32 v1, 6, v0"); a.i("v_and_b32 v2, 63, v0")
    a.i(f"v_readfirstlane_b32 s{sQ}, v1")
    a.i("s_getpc_b64 s[46:47]")
    a.raw("ka_pc:")
    a.i("s_lshr_b32 s5, s2, 3"); a.i("s_lshl_b32 s5, s5, 2"); a.i(f"s_add_u32 s5, s5, s{sQ}"); a.i("s_lshl_b32 s5, s5, 12")
    a.i("v_lshl_add_u32 v44, v2, 6, s5"); a.i("v_min_u32 v44, k_code_end-ka_pc, v44")
    a.i("v_mov_b32 v73, s47"); a.i("v_add_co_u32 v72, vcc, s46, v44"); a.i("s_nop 1"); a.i("v_addc_co_u32 v73, vcc, 0, v73, vcc")
    a.vmem("global_load_dword v68, v[72:73], off")
    if MAP2:
        a.i("s_and_b32 s3, s2, 3"); a.i("s_lshl_b32 s3, s3, 1"); a.i("s_bfe_u32 s4, s2, 0x10003"); a.i("s_add_u32 s3, s3, s4")
        a.i("s_bfe_u32 s4, s2, 0x10002"); a.i("s_lshl_b32 s4, s4, 4"); a.i("s_lshr_b32 s5, s2, 4"); a.i("s_add_u32 s4, s4, s5")
    else:
        a.i("s_and_b32 s3, s2, 7"); a.i("s_lshr_b32 s4, s2, 3")
    a.i(f"s_and_b32 s{sBit}, s4, {0 if NB else 1}"); a.i("s_and_b32 s96, s4, 15")
    if SW: a.i("s_and_b32 s96, s4, 3"); a.i(f"s_lshl_b32 s5, s{sQ}, 2"); a.i("s_add_u32 s96, s96, s5")
    a.i("v_lshlrev_b32 v3, 4, v2")
    RX = 128
    if PT & 1:
        a.i("s_lshr_b32 s5, s2, 3"); a.i("s_lshl_b32 s5, s5, 2"); a.i(f"s_add_u32 s5, s5, s{sQ}")
        a.i("s_mul_i32 s6, s5, 43"); a.i("s_lshr_b32 s6, s6, 8"); a.i("s_mul_i32 s7, s6, 6"); a.i("s_sub_u32 s5, s5, s7")
        a.i("s_lshl_b32 s5, s5, 3"); a.i("s_add_u32 s5, s5, 8"); a.i("s_load_dwordx2 s[94:95], s[0:1], s5")
        a.i("s_mul_i32 s7, s6, 86"); a.i("s_lshr_b32 s7, s7, 8"); a.i("s_mul_i32 s7, s7, 3"); a.i("s_sub_u32 s6, s6, s7"); a.i("s_mul_i32 s6, s6, 48")
        a.i("v_min_u32 v74, 47, v2"); a.i("v_add_u32 v74, s6, v74")
        a.i("s_and_b32 s5, s2, 7"); a.i("s_lshl_b32 s6, s5, 14"); a.i("s_lshl_b32 s5, s5, 11"); a.i(f"s_add_u32 s5, s5, {512*256 - 128*128}")
        a.i("v_cmp_gt_u32 vcc, 128, v74"); a.i("v_mov_b32 v75, s5"); a.i("v_mov_b32 v76, s6")
        a.i("v_cndmask_b32 v75, v75, v76, vcc"); a.i("v_lshl_add_u32 v74, v74, 7, v75")
    a.i(f"s_lshl_b32 s5, s4, 6"); a.i(f"s_lshl_b32 s6, s{sQ}, 4"); a.i("s_add_u32 s5, s5, s6"); a.i("s_mul_i32 s5, s5, 1152")
    a.i("v_lshrrev_b32 v32, 3, v2"); a.i("v_and_b32 v33, 7, v2")
    a.i("v_mul_u32_u24 v34, 1152, v32"); a.i("v_lshl_add_u32 v34, v33, 4, v34"); a.i("v_add_u32 v34, s5, v34"); a.i(f"v_add_u32 v35, {8*1152}, v34")
    a.i("s_waitcnt lgkmcnt(0)")
    xl = {}
    for p in range(2):
        for i in range(9):
            xl[(p, i)] = a.vmem(f"global_load_dwordx4 v[{RX+36*p+4*i}:{RX+36*p+4*i+3}], v{34+p}, s[100:101] offset:{128*i}")
    a.i("s_mul_i32 s7, s3, 1152")
    a.i(f"s_lshl_b32 s{sTmp}, s{sQ}, 8")
    a.i(f"s_lshl_b32 s46, s{sBit}, 7")
    a.i(f"s_mul_i32 s47, s{sBit}, {64*1152}")
    for g in range(4):
        a.i(f"s_add_u32 s5, s{sQ}, {g}"); a.i("s_and_b32 s5, s5, 3")
        a.i(f"s_mul_i32 s{sK1[g]}, s5, {144*9216}"); a.i(f"s_add_u32 s{sK1[g]}, s{sK1[g]}, s7")
        a.i("s_mul_i32 s6, s3, 663552")
        a.i(f"s_mul_i32 s{sA2[1][g]}, s5, {128*1152}"); a.i(f"s_add_u32 s{sA2[1][g]}, s{sA2[1][g]}, s6")
        a.i(f"s_add_u32 s{sA2[0][g]}, s{sA2[1][g]}, s47")
        a.i(f"s_sub_u32 s{sA2[1][g]}, s{sA2[1][g]}, s47"); a.i(f"s_add_u32 s{sA2[1][g]}, s{sA2[1][g]}, {64*1152}")
        a.i(f"s_mul_i32 s{sB2[g]}, s5, {16*1152}"); a.i(f"s_add_u32 s{sB2[g]}, s{sB2[g]}, s6"); a.i(f"s_add_u32 s{sB2[g]}, s{sB2[g]}, {512*1152}")
        if g > 0: a.i("s_cmp_eq_u32 s5, 0"); a.i(f"s_cselect_b32 s{sDl[g-1]}, -3, 1"); a.i(f"s_mul_i32 s{sDl[g-1]}, s{sDl[g-1]}, 9216")
        a.i("s_lshl_b32 s6, s5, 10"); a.i("s_add_u32 s6, s6, 32768"); a.i(f"v_add_u32 v{vHo[g]}, s6, v3")
    for d, s_ in ((sO1, sK1[0]), (sA2o[0], sA2[0][0]), (sA2o[1], sA2[1][0]), (sB2o, sB2[0])):
        a.i(f"s_add_u32 s{d}, s{s_}, 1024"); a.i(f"s_sub_u32 s{d}, s{d}, s{sTmp}")
    a.i(f"s_sub_u32 s{sO1}, s{sO1}, s46")
    a.i(f"s_mul_i32 s{sRing}, s{sQ}, {RING}"); a.i(f"s_add_u32 s{sRing}, s{sRing}, {XH}")
    a.i("v_lshrrev_b32 v32, 3, v2")
    a.i("v_bfe_u32 v33, v2, 4, 1"); a.i("v_lshlrev_b32 v33, 2, v33")
    a.i("v_and_b32 v34, 7, v2"); a.i("v_xor_b32 v33, v33, v34")
    a.i(f"v_lshl_add_u32 v33, v33, 4, s{sTmp}")
    a.i(f"v_mul_u32_u24 v34, 9216, v32"); a.i("v_add_u32 v34, v34, v33")
    a.i(f"v_add_u32 v{vW1[0][0]}, s46, v34"); a.i(f"v_add_u32 v{vW1[0][1]}, {8*9216-1024}, v{vW1[0][0]}")
    a.i(f"v_xor_b32 v{vW1[1][0]}, 128, v{vW1[0][0]}"); a.i(f"v_add_u32 v{vW1[1][1]}, {8*9216-1024}, v{vW1[1][0]}")
    a.i(f"v_mul_u32_u24 v{vW2[0]}, 1152, v32"); a.i(f"v_add_u32 v{vW2[0]}, v{vW2[0]}, v33")
    a.i(f"v_add_u32 v{vW2[1]}, {8*1152-1024}, v{vW2[0]}")
    srd(a, sWS, 54, WS_BYTES); srd(a, sW1, 48, 5308416); srd(a, sW2, 52, 5308416); srd(a, sB1, 50, 9216)

    steps = []
    def add(ph, vo, sbase, imm, sigma, acc, cinit, tag):
        steps.append(dict(ph=ph, vo=vo, sbase=sbase, imm=imm, sigma=sigma, acc=acc, cinit=cinit, tag=tag))
    for i in range(9): add(1, vW1[0], sO1, i * 16 * 9216, i, R2, None, ('O1', i))
    for p, acc in ((0, R1), (1, R2)):
        for sg in range(36):
            add(1, vW1[p], sK1[sg // 9], (sg % 9) * 16 * 9216, sg, acc, None, ('P%d' % p, sg))
    def gi2(n): return ((n % 8) // 2, 2 * (n // 8) + n % 2)
    def s1(n):
        g, i = divmod(n, 5)
        return (sA2[0][g], i * 16 * 1152) if i < 4 else (sB2[g], 0)
    def s2(n):
        g, i = gi2(n); return (sA2[1][g], i * 16 * 1152)
    def adds1(p, acc, rng):
        for n in rng:
            sb, im = s1(n); add(2, vW2, sb, im + 128 * p, ('s1', n), acc, 'zero' if n == 0 else None, ('D%ds1' % p, n))
    adds1(0, R1, range(20)); adds1(1, R3, range(NA))
    for n in range(16):
        sb, im = s2(n); add(2, vW2, sb, im, ('s2', n), R1, None, ('D0s2', n))
    adds1(1, R3, range(NA, 20))
    for n in range(16):
        sb, im = s2(n); add(2, vW2, sb, im + 128, ('s2', n), R3, None, ('D1s2', n))
    odd2 = [(sA2o[0], i * 16 * 1152, ('s1', i)) for i in range(4)] + [(sB2o, 0, ('s1', 4))] + [(sA2o[1], i * 16 * 1152, ('s2', (i // 2) * 8 + i % 2)) for i in range(4)]
    for i, (sb, im, sg) in enumerate(odd2): add(2, vW2, sb, im, sg, R1, 'zero' if i == 0 else None, ('O2', i))
    NS = len(steps); assert NS == 162
    dma_id = {}
    def dma(k):
        st = steps[k]
        srdr = sW1 if st['ph'] == 1 else sW2
        va, vb = st['vo']
        a.i(f"s_add_u32 m0, s{sRing}, {(k % NR) * 2048}")
        a.i(f"s_add_u32 s{sOff}, s{st['sbase']}, {st['imm']}")
        a.vmem(f"buffer_load_dwordx4 v{va}, s[{srdr}:{srdr+3}], s{sOff} offen lds")
        dma_id[k] = a.vmem(f"buffer_load_dwordx4 v{vb}, s[{srdr}:{srdr+3}], s{sOff} offen offset:1024 lds")
    a.i("v_lshrrev_b32 v36, 5, v2"); a.i("v_and_b32 v37, 31, v2"); a.i("v_lshlrev_b32 v37, 1, v37"); a.i("v_lshl_add_u32 v36, v36, 14, v37")
    a.i(f"s_lshl_b32 s5, s{sQ}, 14"); a.i("s_add_u32 s5, s5, 1024"); a.i("s_add_u32 s5, s5, s7"); a.i("v_add_u32 v53, s5, v36")
    a.i(f"s_add_u32 s5, s{sTmp}, s46"); a.i("v_add_u32 v54, s5, v36"); a.i("v_xor_b32 v55, 128, v54"); a.i("v_add_u32 v54, s7, v54"); a.i("v_add_u32 v55, s7, v55")
    ids = {}
    LATE = []
    for k in range(ND0): dma(k)
    a.raw('; SCOUT')
    for k in range(ND0, NR): LATE.append(lambda k=k: dma(k))
    for n in range(6):
        LATE.append(lambda n=n: ids.__setitem__('b', a.vmem(f"buffer_load_ushort v{228+n}, v{53 + n // 2}, s[{sB1}:{sB1+3}], 0 offen offset:{64 * (n % 2)}")))
    a.i("s_lshl_b32 s5, s4, 6"); a.i("v_add_u32 v52, s5, v2"); a.i("v_mul_u32_u24 v56, 1152, v52")
    a.i("s_mul_i32 s5, s3, 144"); a.i("v_add_u32 v56, s5, v56"); a.i(f"s_lshl_b32 s5, s{sQ}, 4"); a.i("v_add_u32 v57, s5, v56")
    XTL = [lambda: a.vmem("global_load_dwordx4 v[216:219], v57, s[100:101]"), lambda: a.vmem("global_load_dwordx4 v[220:223], v57, s[100:101] offset:64"),
           lambda: ids.__setitem__('xt', a.vmem("global_load_dwordx4 v[224:227], v56, s[100:101] offset:128"))]
    NPF = 2; CH = 81; assert MAP2
    a.i(f"s_and_b32 s5, s4, {15 if MAP2 else 31}"); a.i("s_lshl_b32 s5, s5, 2"); a.i(f"s_add_u32 s5, s5, s{sQ}"); a.i(f"s_mul_i32 s6, s5, {CH}")
    a.i("s_mul_i32 s45, s3, 663552")
    for j in range(NPF):
        a.i(f"v_add_u32 v43, {64*j}, v2"); a.i(f"v_min_u32 v43, {CH-1}, v43"); a.i("v_add_u32 v43, s6, v43")
        a.i("v_mul_u32_u24 v44, 7282, v43"); a.i("v_lshrrev_b32 v44, 16, v44")
        a.i(f"v_mul_u32_u24 v44, {9216 - 18*64}, v44"); a.i("v_lshlrev_b32 v43, 7, v43"); a.i(f"v_add3_u32 v{69+j}, v44, v43, s7"); a.i(f"v_add_u32 v{58+j}, s45, v43")
    if NB:
        a.i("s_mul_i32 s6, s5, 36"); a.i("v_min_u32 v43, 35, v2"); a.i("v_add_u32 v43, s6, v43")
        a.i("v_lshrrev_b32 v44, 2, v43"); a.i("v_mul_u32_u24 v44, 9216, v44"); a.i("v_and_b32 v43, 3, v43"); a.i("v_lshlrev_b32 v43, 8, v43")
        a.i("v_add3_u32 v60, v44, v43, s7"); a.i("v_mov_b32 v69, v60")
    PF1 = [lambda j=j: ids.__setitem__('pf', a.vmem(f"buffer_load_dword v{64+j}, v{69+j}, s[{sW1}:{sW1+3}], 0 offen")) for j in range(1 if NB else NPF)]
    nb = NR - ND0
    LATE = LATE[:nb] + [lambda k=k, L=LATE: (L[nb + 2*k](), L[nb + 2*k + 1]()) for k in range(3)]
    if PF1AT == 0: LATE = LATE + XTL + PF1
    elif PF1AT == 1: LATE = LATE + PF1 + XTL
    elif PF1AT == 2: LATE = PF1 + LATE + XTL
    else: LATE = LATE[:nb] + PF1 + LATE[nb:]
    if PF1AT < 3: XTL = []
    def pf2():
        for j in range(NPF): ids['pf2'] = a.vmem(f"buffer_load_dword v{61+j}, v{58+j}, s[{sW2}:{sW2+3}], 0 offen")
    PF2T = {0: 'sum', 1: 'ln1', 2: ('P0', 4), 3: None}[PF2AT]
    a.i("v_lshrrev_b32 v32, 5, v2")
    a.i("v_bfe_u32 v33, v2, 2, 2")
    a.i("v_bfe_u32 v34, v2, 4, 1"); a.i("v_lshlrev_b32 v34, 5, v34")
    a.i("v_and_b32 v36, 3, v2"); a.i("v_lshl_add_u32 v34, v36, 3, v34")
    a.i("v_lshl_add_u32 v34, v33, 7, v34"); a.i(f"v_add_u32 v34, s{sRing}, v34")
    a.i("v_bfe_u32 v36, v2, 3, 1"); a.i("v_lshlrev_b32 v36, 6, v36")
    a.i("v_xor_b32 v37, 64, v36")
    a.i("v_lshl_add_u32 v40, v32, 10, v34")
    a.i(f"v_add_u32 v{vT[1][0]}, v40, v36"); a.i(f"v_add_u32 v{vT[1][1]}, v40, v37")
    a.i("v_lshl_add_u32 v40, v32, 9, v34")
    a.i(f"v_add_u32 v{vT[2][0]}, v40, v36"); a.i(f"v_add_u32 v{vT[2][1]}, v40, v37")
    a.i(f"s_lshr_b32 s5, s{sQ}, 1"); a.i(f"s_lshl_b32 s6, s{sQ}, 4"); a.i("s_lshl_b32 s7, s5, 2"); a.i("s_add_u32 s6, s6, s7"); a.i("s_lshl_b32 s6, s6, 10")
    a.i(f"s_mov_b32 s{sSw}, s6")
    a.i(f"s_and_b32 s6, s{sQ}, 1"); a.i("s_lshl_b32 s6, s6, 1"); a.i("s_lshl_b32 s7, s5, 3"); a.i("s_add_u32 s6, s6, s7")
    a.i(f"s_lshl_b32 s{sSr}, s6, 10")
    a.i("v_bfe_u32 v33, v2, 1, 4"); a.i("v_and_b32 v36, 1, v2"); a.i("v_lshlrev_b32 v33, 4, v33"); a.i("v_lshl_add_u32 v33, v36, 8, v33"); a.i(f"v_lshl_add_u32 v{vP}, v32, 17, v33")
    a.i(f"s_lshl_b32 s7, s{sQ}, 13"); a.i(f"v_add_u32 v{vHw}, s7, v3")
    a.i(f"s_add_u32 s7, s{sTmp}, s3"); a.i("s_lshl_b32 s7, s7, 14"); a.i("s_lshl_b32 s45, s4, 9"); a.i(f"s_add_u32 s45, s45, {PART_OFF}")
    a.i(f"s_add_u32 s{sP}, s7, s45")
    a.i(f"s_lshl_b32 s7, s{sQ}, 2"); a.i("s_add_u32 s7, s7, 128"); a.i("s_lshl_b32 s7, s7, 3"); a.i("s_add_u32 s7, s7, s3"); a.i("s_lshl_b32 s7, s7, 14")
    a.i(f"s_add_u32 s{sPo}, s7, s45")
    a.i("v_and_b32 v33, 31, v2"); a.i(f"s_mul_i32 s7, s{sQ}, 9216"); a.i("v_lshl_add_u32 v34, v32, 9, s7")
    for c in range(4):
        a.i(f"s_add_u32 s5, s{sQ}, {c}"); a.i("s_and_b32 s5, s5, 3"); a.i("s_lshl_b32 s5, s5, 1")
        a.i("v_add_u32 v36, s5, v32"); a.i("v_xor_b32 v36, v36, v33"); a.i(f"v_lshl_add_u32 v{vX[c]}, v36, 4, v34")
    a.i(f"v_lshlrev_b32 v46, 2, v33"); a.i(f"v_add_u32 v46, {BIAS_OFF}, v46")
    a.i("v_lshrrev_b32 v32, 3, v2"); a.i("v_and_b32 v33, 7, v2")
    a.i(f"s_lshr_b32 s5, s{sQ}, 1"); a.i("s_mul_i32 s5, s5, 36864"); a.i(f"s_and_b32 s6, s{sQ}, 1"); a.i("s_lshl_b32 s6, s6, 8"); a.i("s_add_u32 s5, s5, s6")
    a.i("v_xor_b32 v34, v32, v33"); a.i("v_lshl_add_u32 v34, v34, 4, s5"); a.i("v_lshl_add_u32 v47, v33, 9, v34")
    a.i(f"s_lshl_b32 s5, s{sQ}, 6"); a.i(f"s_add_u32 s5, s5, {BIAS_OFF}"); a.i("v_lshl_add_u32 v48, v32, 2, s5")
    a.i("s_lshl_b32 s5, s4, 9"); a.i(f"s_lshl_b32 s6, s{sQ}, 7"); a.i("s_add_u32 s5, s5, s6"); a.i(f"s_add_u32 s5, s5, {ST_OFF}")
    a.i("v_lshl_add_u32 v49, v32, 3, s5")
    a.i("v_lshlrev_b32 v40, 3, v52"); a.i(f"s_mul_i32 s5, s3, {18*16384}"); a.i(f"s_add_u32 s5, s5, {XT_OFF}"); a.i("v_add_u32 v40, s5, v40")
    a.i(f"s_lshl_b32 s5, s{sQ}, 15"); a.i("v_add_u32 v41, s5, v40")
    for r in (27, 28, 29, 31): a.i(f"v_mov_b32 v{r}, 0")
    for r in range(240, 256):
        if r % 2 or r in (240, 254): a.i(f"v_accvgpr_write_b32 a{r}, 0")
    a.i("s_mov_b32 s5, 0x3f803f80"); a.i("s_mov_b32 s6, 0x00003f80"); a.i("s_mov_b32 s7, 0x3f800000")
    if PT & 1:
        ppf = lambda: ids.__setitem__('pf', a.vmem("global_load_dword v75, v74, s[94:95]"))
        if PPA == 0: LATE.append(ppf)
    if PT & 2:
        a.i("v_and_b32 v76, 31, v2"); a.i(f"v_lshl_add_u32 v76, v76, 17, s{sP}")
        a.i("v_and_b32 v77, 3, v2"); a.i(f"v_lshl_add_u32 v77, v77, 17, s{sPo}")
        a.i("v_cmp_gt_u32 vcc, 32, v2"); a.i("s_nop 1"); a.i("v_cndmask_b32 v76, v77, v76, vcc")
        PF1.append(0); LATE.insert(nb + NPF, lambda: ids.__setitem__('pf', a.vmem(f"buffer_load_dword v77, v76, s[{sWS}:{sWS+3}], 0 offen")))
    dg.mark("ln0")
    A = 32
    for p in range(2):
        for i in range(9):
            a.wait_vm(xl[(p, i)])
            for r in range(4):
                x = RX + 36*p + 4*i + r; h = r & 1
                c0 = "0" if (i == 0 and r < 2) else f"v{A+4*p+h}"; c1 = "0" if (i == 0 and r < 2) else f"v{A+4*p+2+h}"
                a.i(f"v_dot2_f32_bf16 v{A+4*p+h}, v{x}, s5, {c0}")
                a.i(f"v_dot2_f32_bf16 v{A+4*p+2+h}, v{x}, v{x}, {c1}")
            if LATE: LATE.pop(0)()
        if p == 1: dg.mark("sum")
        a.nop(3)
        a.i(f"v_add_f32 v{A+4*p}, v{A+4*p}, v{A+4*p+1}"); a.i(f"v_add_f32 v{A+4*p+2}, v{A+4*p+2}, v{A+4*p+3}")
        for dpp in ("quad_perm:[1,0,3,2]", "quad_perm:[2,3,0,1]", "row_half_mirror"):
            a.nop(1)
            for r in (A+4*p, A+4*p+2): a.i(f"v_add_f32_dpp v{r}, v{r}, v{r} {dpp} row_mask:0xf bank_mask:0xf")
        def both(f): a.i(f.format(m=A+4*p, s=A+4*p+1, v=A+4*p+2, t=A+4*p+3, u=50))
        both(f"v_mul_f32 v{{m}}, {fl(1.0/576)}, v{{m}}"); both(f"v_mul_f32 v{{v}}, {fl(1.0/576)}, v{{v}}")
        both("v_fma_f32 v{v}, -v{m}, v{m}, v{v}"); both("v_max_f32 v{v}, 0, v{v}")
        both("v_cvt_pk_bf16_f32 v{t}, v{m}, v{v}"); both("v_lshlrev_b32 v{m}, 16, v{t}"); both("v_and_b32 v{v}, 0xffff0000, v{t}")
        both("v_xor_b32 v{u}, 0x80000000, v{m}")
        ST = [f"v_add_f32 v{{v}}, {fl(1e-5)}, v{{v}}", "v_cvt_pk_bf16_f32 v{v}, v{v}, v{v}", "v_lshlrev_b32 v{v}, 16, v{v}", "v_sqrt_f32 v{s}, v{v}",
              "v_rcp_f32 v{t}, v{s}", "v_fma_f32 v{v}, -v{s}, v{s}, v{v}", "v_mul_f32 v{t}, 0.5, v{t}", "v_fmac_f32 v{s}, v{v}, v{t}",
              "v_cvt_pk_bf16_f32 v{s}, v{s}, v{s}", "v_lshlrev_b32 v{s}, 16, v{s}"]
        for i in range(9):
            t = 200 + 8 * (i & 1)
            for r in range(4):
                x = RX + 36*p + 4*i + r
                if DM == 0:
                    a.i(f"v_dot2_f32_bf16 v{t+2*r}, v{x}, s6, v50"); a.i(f"v_dot2_f32_bf16 v{t+2*r+1}, v{x}, s7, v50")
                else:
                    a.i(f"v_lshlrev_b32 v{t+2*r}, 16, v{x}"); a.i(f"v_and_b32 v{t+2*r+1}, 0xffff0000, v{x}")
            if DM:
                for r in range(4): a.i(f"v_pk_add_f32 v[{t+2*r}:{t+2*r+1}], v[{t+2*r}:{t+2*r+1}], v[50:51] op_sel_hi:[1,0]")
            both(ST.pop(0))
            if i == 8: both(ST.pop(0))
            if LATE: LATE.pop(0)()
            elif XTL and i % 3 == 2 and p == 1: XTL.pop(0)()
            for r in range(4):
                x = RX + 36*p + 4*i + r
                a.i(f"v_cvt_pk_bf16_f32 v{x}, v{t+2*r}, v{t+2*r+1}")
            a.dsop(f"ds_write_b128 v47, v[{RX+36*p+4*i}:{RX+36*p+4*i+3}] offset:{128*p + 4096*i}")
        a.dsop(f"ds_write_b32 v48, v{A+4*p+1} offset:{32*p}")
    assert not LATE and not XTL
    a.wait_vm(ids['b'])
    for n in range(6): a.i(f"v_lshlrev_b32 v{228+n}, 16, v{228+n}")
    for n in range(6): a.i(f"v_accvgpr_write_b32 a{242+2*n}, v{228+n}")
    if PF2T == 'ln1': pf2()
    if PPA == 1: ppf()
    a.wait_ds(a.ds); a.i("s_barrier")
    dg.mark("ln1")
    for tt in range(2): sid = a.dsop(f"ds_read_b32 v{vSt[tt]}, v46 offset:{128*tt}")

    Q = []
    bready = {}
    def push(cost, fn, deps=(), key=None, fence=False):
        it = Item(cost, fn, list(deps), key, fence); Q.append(it); return it
    def emit(it):
        for d, dist in it.deps:
            assert d.at is not None
            gap = a.n - d.at
            if gap < min(dist, 2): a.nop(min(dist, 2) - gap)
        Q.remove(it); it.fn(); it.at = a.n
    def ready(it): return all(d.at is not None and a.n - d.at >= dist for d, dist in it.deps)
    def fill(budget):
        while budget > 0 and Q:
            pick = None
            for idx, it in enumerate(Q[:64]):
                if it.fence:
                    if idx == 0 and it.cost <= budget: pick = it
                    break
                if it.cost <= budget and ready(it): pick = it; break
            if pick is None: return
            n0 = a.n; emit(pick); budget -= max(pick.cost, a.n - n0)
    def flush_until(key):
        if not any(it.key == key for it in Q): return
        while True:
            it = Q[0]
            for idx, c in enumerate(Q[:64]):
                if c.fence or c.key == key: break
                if ready(c): it = c; break
            emit(it)
            if it.key == key: break
    def push_bload(ph, sigma, tt, addr, imm, vmw=None):
        def fn():
            if vmw: a.wait_vm(vmw)
            bready[(ph, sigma, tt)] = a.dsop(f"ds_read_b128 {breg(ph, sigma, tt)}, v{addr} offset:{imm}")
        return push(1, fn, key=('B', ph, sigma, tt), fence=bool(vmw))
    def push_barrier(key=None, vmw=None):
        def fn():
            if vmw: a.wait_vm(vmw)
            a.wait_ds(a.ds); a.i("s_barrier")
        push(2, fn, key=key, fence=True)
    def push_fence(key=None): push(0, lambda: None, key=key, fence=True)
    gq = [0]; gp = [0]
    last_t = {}; last_pk = {}
    def push_gelu8(x, waddr, wimm, tt):
        ps = gp[0] % 4; pk = PK + 4 * ps; gp[0] += 1
        cv = []
        for hq in range(2):
            ts = gq[0] % 4; gq[0] += 1
            xs = x[4*hq:4*hq+4]; t = [GT + 4 * ts + e for e in range(4)]
            fin = []
            for e in range(4):
                d0 = [(z, 0) for z in last_t.get(ts, [])]
                def f1(e=e, xs=xs, t=t):
                    a.need_mfma([xs[e]]); a.i(f"v_mul_f32 v{t[e]}, v{xs[e]}, v{xs[e]}")
                i1 = push(1, f1, d0)
                i2 = push(1, lambda e=e, t=t: a.i(f"v_fma_f32 v{t[e]}, v{t[e]}, v{vC1p[tt]}, v{vC0p[tt]}"), [(i1, DP)])
                i3 = push(1, lambda e=e, t=t, xs=xs: a.i(f"v_mul_f32 v{t[e]}, v{xs[e]}, v{t[e]}"), [(i2, DP)])
                i4 = push(2, lambda e=e, t=t: a.i(f"v_exp_f32 v{t[e]}, v{t[e]}"), [(i3, DP)])
                i5 = push(1, lambda e=e, t=t: a.i(f"v_fma_f32 v{t[e]}, v{t[e]}, v{vSt[tt]}, v{vSt[tt]}"), [(i4, DT)])
                i6 = push(2, lambda e=e, t=t: a.i(f"v_rcp_f32 v{t[e]}, v{t[e]}"), [(i5, DP)])
                i7 = push(1, lambda e=e, t=t, xs=xs: a.i(f"v_mul_f32 v{t[e]}, v{xs[e]}, v{t[e]}"), [(i6, DT)])
                fin.append(i7)
            c = []
            for e in range(2):
                dd = [(fin[2*e], DP), (fin[2*e+1], DP)] + [(z, 2) for z in last_pk.get(ps, [])]
                c.append(push(1, lambda e=e, t=t, hq=hq: a.i(f"v_cvt_pk_bf16_f32 v{pk+2*hq+e}, v{t[2*e]}, v{t[2*e+1]}"), dd))
            last_t[ts] = c; cv += c
        w = push(1, lambda: a.dsop(f"ds_write_b128 v{waddr}, v[{pk}:{pk+3}] offset:{wimm}"), [(z, 0) for z in cv])
        last_pk[ps] = [w]
    def unit(acc, t, tt): return acc + 16 * (2 * t + tt)
    def push_gelu_pair(acc, p, ts=(0, 1)):
        for t in ts:
            for tt in range(2):
                for kp in range(2):
                    b = unit(acc, t, tt) + 8 * kp
                    push_gelu8(list(range(b, b + 8)), vHw, tt * 36864 + (4 * p + 2 * t + kp) * 1024, tt)
    SB = (0, 16, 36, 52)
    def push_odd_reduce(acc, first):
        first = False
        push(1, lambda: a.i(f"v_add_u32 v{vS}, s{sSw}, v3"), fence=True)
        push_fence()
        for n in range(16):
            def f(n=n):
                a.need_mfma(list(range(acc + 4*n, acc + 4*n + 4)))
                a.dsop(f"ds_write_b128 v{vS}, v[{acc+4*n}:{acc+4*n+3}] offset:{n*1024}")
            push(1, f)
        push_barrier()
        push(1, lambda: a.i(f"v_add_u32 v{vS}, s{sSr}, v3"), fence=True)
        push_fence()
        rid = {}
        for src in range(4):
            for tt in range(2):
                for jj in range(2):
                    b = acc + 16 * src + 8 * tt + 4 * jj
                    def f(b=b, src=src, tt=tt, jj=jj):
                        rid[(src, tt, jj)] = a.dsop(f"ds_read_b128 v[{b}:{b+3}], v{vS} offset:{(SB[src] + 4*tt + jj)*1024}")
                    push(1, f)
        if first:
            for jj in range(2):
                def f(jj=jj): rid[('b', jj)] = a.dsop(f"ds_read_b128 v[{GT+4*jj}:{GT+3+4*jj}], v{vBo} offset:{512 + jj*32}")
                push(1, f)
        push_fence()
        for src in range(1, 4):
            for tt in range(2):
                for jj in range(2):
                    for e in range(4):
                        def f(src=src, tt=tt, jj=jj, e=e):
                            a.wait_ds(rid[(src, tt, jj)])
                            d = acc + 8*tt + 4*jj + e
                            a.i(f"v_add_f32 v{d}, v{d}, v{d + 16*src}")
                        push(1, f)
        if first:
            for tt in range(2):
                for jj in range(2):
                    for e in range(4):
                        def f(tt=tt, jj=jj, e=e):
                            a.wait_ds(rid[('b', jj)])
                            d = acc + 8*tt + 4*jj + e
                            a.i(f"v_add_f32 v{d}, v{d}, v{GT+4*jj+e}")
                        push(1, f)
        push_fence()
    def push_store(x0, x1, sreg, imm, mod=os.environ.get('EPI2', 'sc1')):
        ps = gp[0] % 4; pk = PK + 4 * ps; gp[0] += 1
        c = []
        for k, xb in enumerate((x0, x0 + 2, x1, x1 + 2)):
            def f(k=k, xb=xb):
                a.need_mfma([xb, xb + 1]); a.i(f"v_cvt_pk_f16_f32 v{pk+k}, v{xb}, v{xb+1}")
            c.append(push(1, f, [(z, 2) for z in last_pk.get(ps, [])]))
        def f():
            a.i(f"s_add_u32 s{sTmp}, s{sreg}, {imm}")
            a.vmem(f"buffer_store_dwordx4 v[{pk}:{pk+3}], v{vP}, s[{sWS}:{sWS+3}], s{sTmp} offen {mod}")
        last_pk[ps] = [push(2, f, [(z, 0) for z in c])]
    def push_epi(acc, p):
        for t in range(2):
            for j in range(4):
                push_store(unit(acc, t, 0) + 4*j, unit(acc, t, 1) + 4*j, sP, (16*p + 8*t + 2*j) * 131072)

    def push_x(sg):
        g, i = divmod(sg, 9)
        if i == 0 and g > 0:
            for c in range(4): push(1, lambda c=c, g=g: a.i(f"v_add_u32 v{vX[c]}, s{sDl[g-1]}, v{vX[c]}"))
        for tt in range(2): push_bload(1, sg, tt, vX[(g + i) & 3], tt * 36864 + i * 1024)
    for sg in range(3): push_x(sg)
    def fst():
        a.wait_ds(sid)
        for tt in range(2): a.i(f"v_rcp_f32 v{vC0p[tt]}, v{vSt[tt]}")
        a.i(f"s_lshl_b32 s5, s{sQ}, 1"); a.i("s_sub_u32 s5, s5, s3")
        for tt in range(2): a.i(f"v_mul_f32 v{vC1p[tt]}, v{vC0p[tt]}, v{vC0p[tt]}")
        for tt in range(2): a.i(f"v_mul_f32 v{vC1p[tt]}, v{vC1p[tt]}, v{vC0p[tt]}")
        for tt in range(2): a.i(f"v_mul_f32 v{vC1p[tt]}, {fl(C1)}, v{vC1p[tt]}")
        for tt in range(2): a.i(f"v_mul_f32 v{vC0p[tt]}, {fl(C0)}, v{vC0p[tt]}")
    push(10, fst, fence=True, key=('st',))
    def exports():
        for p in range(2):
            def f(p=p):
                a.i(f"s_add_u32 s6, s5, {p}"); a.i("s_cmp_eq_u32 s6, 0"); a.i(f"s_cselect_b32 s6, {64*p}, {WS_BYTES}")
                a.i(f"v_add_u32 v{50+p}, s6, v49")
                a.vmem(f"buffer_store_dwordx2 v[{A+4*p}:{A+4*p+1}], v{50+p}, s[{sWS}:{sWS+3}], 0 offen")
            push(5, f)
        for k, (va, cgo) in enumerate(((41, 0), (41, 8), (40, 16))):
            for h in range(2):
                def f(k=k, h=h, va=va, cgo=cgo):
                    a.wait_vm(ids['xt']); a.i(f"s_mov_b32 s6, {(cgo + h) * 16384}")
                    a.vmem(f"buffer_store_dwordx2 v[{216+4*k+2*h}:{217+4*k+2*h}], v{va}, s[{sWS}:{sWS+3}], s6 offen")
                push(2, f)
    def bias_mfma(acc, n0):
        for t in range(2):
            for tt in range(2):
                d = unit(acc, t, tt); ab = 242 + 2 * (n0 + t) - 2 * tt; bb = 26 + 2 * tt
                a.i(f"v_mfma_f32_32x32x16_bf16 v[{d}:{d+15}], a[{ab}:{ab+3}], v[{bb}:{bb+3}], 0")
                a.mfma_wrote(d, 16); fill(SLOTS - 1)
    def areg(k, t): return 224 + 8 * (k % 2) + 4 * t
    tr_id = {}
    def tr(k, t):
        st = steps[k]; b = areg(k, t); jo = 512 if st['ph'] == 1 else 1024
        a.wait_vm(dma_id[k])
        a.dsop(f"ds_read_b64_tr_b16 a[{b}:{b+1}], v{vT[st['ph']][t]} offset:{(k % NR)*2048}")
        tr_id[(k, t)] = a.dsop(f"ds_read_b64_tr_b16 a[{b+2}:{b+3}], v{vT[st['ph']][t]} offset:{(k % NR)*2048 + jo}")
    tr(0, 0); tr(0, 1)
    flush_until(('st',))
    for sg in range(3, 9): push_x(sg)
    def event(tag):
        if tag == ('O1', 0): bias_mfma(R2, 0)
        if tag == ('P0', 0): a.raw('; SCOUTEND')
        if tag == ('P0', 0): a.wait_vm(ids['pf']); bias_mfma(R1, 2)
        if tag == PF2T: pf2()
        if PF2AT == 3 and tag[0] == 'P0':
            for j in range(16):
                if j * PF2S // 2 == tag[1]:
                    a.i(f"s_cmp_lg_u32 s96, {j}"); a.i(f"s_cbranch_scc1 ka_pf{j}")
                    if NB: a.i(f"buffer_load_dword v63, v60, s[{sW1}:{sW1+3}], 0 offen offset:128"); a.n -= 1
                    for jj in range(2): a.i(f"buffer_load_dword v{61+jj}, v{58+jj}, s[{sW2}:{sW2+3}], 0 offen")
                    a.raw(f"ka_pf{j}:"); a.n -= 2
        if tag == ('P0', XE - 9 + 1):
            push_barrier()
            push_odd_reduce(R2, True)
            for tt in range(2):
                push_gelu8(list(range(R2 + 8*tt, R2 + 8*tt + 8)), vHo[0], tt * 36864, tt)
            push_barrier(('B4',))
        if tag == ('P1', 0):
            flush_until(('B4',)); a.wait_vm(ids.get('pf2', 0))
            push_gelu_pair(R1, 0)
            bias_mfma(R2, 4)
            for g in range(4):
                i1 = push(1, lambda g=g: a.i(f"v_sub_u32 v{vX[g]}, v{vHo[g]}, v3"))
                i2 = push(1, lambda g=g: a.i(f"v_add_u32 v{vX[g]}, {(-32768) & 0xffffffff}, v{vX[g]}"), [(i1, 0)])
                push(1, lambda g=g: a.i(f"v_lshl_add_u32 v{vX[g]}, v{vX[g]}, 3, v3"), [(i2, 0)])
            push_barrier(('B5',))
        if tag == ('D0s1', 0):
            flush_until(('B5',))
            for n in range(20):
                g, i = divmod(n, 5)
                for tt in range(2):
                    if i < 4: push_bload(2, ('s1', n), tt, vX[g], tt * 36864 + i * 1024)
                    else: push_bload(2, ('s1', n), tt, vHo[g], tt * 36864)
            flush_until(('B', 2, ('s1', 1), 1))
            for th in range(2):
                push_gelu_pair(R2, 1, (th,))
                push_barrier(('B6', th))
                for n in range(8 * th, 8 * th + 8):
                    g, i = gi2(n)
                    for tt in range(2): push_bload(2, ('s2', n), tt, vX[g], tt * 36864 + (4 + i) * 1024)
            push_barrier(('B7',))
        def epi1(acc, p, n):
            t, j = divmod(n, 4)
            push_store(unit(acc, t, 0) + 4*j, unit(acc, t, 1) + 4*j, sP, (16*p + 8*t + 2*j) * 131072, os.environ.get('EPI%d' % p, 'nt'))
        pos = tag[1] - NA if (tag[0] == 'D1s1' and tag[1] >= NA) else (20 - NA + tag[1] if tag[0] == 'D1s2' else -1)
        for j in range(8):
            if pos == j * (36 - NA - 2) // 8: epi1(R1, 0, j)
        if tag == ('O2', 0):
            push_fence(('epi0',)); flush_until(('epi0',))
        if tag[0] == 'O2' and tag[1] < 8: epi1(R3, 1, tag[1])
    for k, st in enumerate(steps):
        if st['tag'] in (('P0',0),('P1',0),('D0s1',0),('D1s1',0),('D0s2',0),('D1s2',0),('O2',0)): dg.mark(str(st['tag']))
        for sg in range(9, 36):
            if (sg - 9) * (XE - XB) // 26 + XB == k: push_x(sg)
        if k == 2: exports()
        event(st['tag'])
        ph, sg, acc = st['ph'], st['sigma'], st['acc']
        for m in range(4):
            t, tt = divmod(m, 2)
            if (ph, sg, tt) not in bready: flush_until(('B', ph, sg, tt))
            a.wait_ds(max(bready[(ph, sg, tt)], tr_id[(k, t)]))
            d = unit(acc, t, tt)
            if st['cinit'] == 'zero': c = "0"
            elif st['cinit'] == 'bias':
                flush_until(('bias', acc, t, 3)); a.wait_ds(bready[('bias', acc, t)])
                cb = unit(acc, t, 1); c = f"v[{cb}:{cb+15}]"
            else: c = f"v[{d}:{d+15}]"
            ab = areg(k, t)
            n0 = a.n
            a.i(f"v_mfma_f32_32x32x16_bf16 v[{d}:{d+15}], a[{ab}:{ab+3}], {breg(ph, sg, tt)}, {c}")
            a.mfma_wrote(d, 16)
            if m == 0 and k + 1 < NS: tr(k + 1, 0)
            if m == 1 and k + 1 < NS: tr(k + 1, 1)
            if m == 2 and k + NR < NS: dma(k + NR)
            used = a.n - n0 - 1
            fill(SLOTS - used - (1 if m in (1, 3) else 0))
    dg.mark("last")
    push_odd_reduce(R1, False)
    for jj in range(2):
        push_store(R1 + 4*jj, R1 + 8 + 4*jj, sPo, jj * 2 * 131072)
    push_fence(('fin',)); flush_until(('fin',))
    dg.dump(54, sQ, 4, 28)
    a.raw("ka_end:")
    a.i("s_endpgm")
    return a.text(), kd(name, 512, 256)
```

```python
from common import *
import math
CS = 4416; KCH = 4 * CS; RS = 144; U1 = 48 * RS + 128; UCH = 13968
U_OFF = 4 * KCH
SC_OFF = U_OFF + 4 * UCH
K3_LDS = SC_OFF + 32768
YS = 4096 + 64
CHB = 27984; BT = 11088; TS = 1808
T_OFF = SC_OFF + 16384
SCL_OFF = T_OFF + 4 * TS
ST_OFF = XU_OFF
L2E = math.log2(math.e)
L2E_hi = struct.unpack("<f", struct.pack("<f", L2E))[0]
L2E_lo = L2E - L2E_hi
sWS, sOUT = 8, 12
PB = 192
GP = int(os.environ.get('GP', '0'))
XN0, XN1 = [int(x) for x in os.environ.get('XNS', '16,16').split(',')]
P_EARLY, P_A, P_B, P_C, P_D, F_S, F_N = [int(x) for x in os.environ.get('PSCH', '0,2,4,4,1,12,4').split(',')]
def gen():
    a = Asm(); name = "kb_kernel"
    header(a, name)
    a.i("s_cmp_ge_u32 s2, 144"); a.i("s_cbranch_scc1 kb_end")
    dg = Diag(a, 2); dg.start(); dg.mark("start")
    a.i("s_load_dwordx16 s[32:47], s[0:1], 0")
    a.i("s_load_dwordx2 s[48:49], s[0:1], 128")
    a.i("s_load_dwordx4 s[52:55], s[0:1], 104")
    a.i("s_load_dwordx2 s[50:51], s[0:1], 64")
    a.i("v_lshrrev_b32 v1, 6, v0"); a.i("v_and_b32 v2, 63, v0")
    a.i("v_readfirstlane_b32 s20, v1")
    a.i("s_and_b32 s3, s2, 7"); a.i("s_lshr_b32 s4, s2, 3")
    a.i("s_lshl_b32 s5, s3, 4"); a.i("s_add_u32 s5, s5, s4")
    a.i("s_lshl_b32 s6, s3, 1"); a.i("s_add_u32 s6, s6, s4"); a.i("s_add_u32 s6, s6, 112")
    a.i("s_cmp_lt_u32 s4, 16"); a.i("s_cselect_b32 s21, s5, s6")
    a.i("s_and_b32 s22, s20, 3"); a.i("s_lshr_b32 s23, s20, 2")
    a.i("s_lshl_b32 s24, s21, 2"); a.i("s_add_u32 s24, s24, s22")
    a.i("s_lshl_b32 s5, s24, 8"); a.i("v_lshl_add_u32 v3, v2, 2, s5")
    a.i("s_lshl_b32 s5, s24, 1"); a.i("v_mov_b32 v4, s5")
    a.i("v_lshrrev_b32 v156, 4, v0"); a.i("v_and_b32 v157, 15, v0")
    a.i("v_lshlrev_b32 v158, 6, v156"); a.i("v_lshl_add_u32 v158, v157, 1, v158")
    a.i("s_lshl_b32 s6, s21, 14"); a.i("v_lshl_add_u32 v190, v158, 3, s6")
    a.i(f"v_lshlrev_b32 v189, 3, v158"); a.i(f"v_add_u32 v189, {ST_OFF}, v189")
    a.i("v_lshlrev_b32 v188, 9, v156"); a.i("v_lshl_add_u32 v188, v157, 4, v188")
    a.i(f"s_mul_i32 s25, s22, {CHB}")
    a.i(f"s_mul_i32 s26, s22, {TS}"); a.i(f"s_add_u32 s26, s26, {T_OFF}")
    a.i("s_waitcnt lgkmcnt(0)")
    for k, sb in enumerate((34, 36, 38, 40, 42, 44)):
        a.vmem(f"global_load_dword v{10+k}, v3, s[{sb}:{sb+1}]")
    pm = a.vmem("global_load_ushort v16, v4, s[46:47]")
    a.vmem("global_load_dwordx4 v[172:175], v190, s[48:49]"); a.vmem("global_load_dwordx4 v[176:179], v190, s[48:49] offset:256")
    a.vmem("global_load_dwordx4 v[180:183], v189, s[48:49]"); xs = a.vmem("global_load_dwordx4 v[184:187], v189, s[48:49] offset:256")
    srd(a, sWS, 48, WS_BYTES); srd(a, sOUT, 54, 2359296)
    a.i("s_lshl_b32 s5, s21, 3")
    a.i("s_add_u32 s56, s50, s5"); a.i("s_addc_u32 s57, s51, 0")
    a.i("s_load_dwordx2 s[16:17], s[56:57], 0")
    a.i("s_add_u32 s56, s52, s5"); a.i("s_addc_u32 s57, s53, 0")
    a.i("s_load_dwordx2 s[18:19], s[56:57], 0")
    a.i("s_lshl_b32 s27, s21, 17"); a.i(f"s_add_u32 s27, s27, {PART_OFF}")
    pn = [0]; pid = {}
    def part(cnt):
        for _ in range(cnt):
            n = pn[0]
            if n >= 16: return
            pn[0] += 1
            s_, u = divmod(n, 2)
            if u == 0 and s_ > 0: a.i(f"s_add_u32 s27, s27, 16384")
            pid[n] = a.vmem(f"buffer_load_dwordx4 v[{PB+8*s_+4*u}:{PB+3+8*s_+4*u}], v188, s[{sWS}:{sWS+3}], s27 offen offset:{256*u}")
    part(P_EARLY)
    a.raw('; SCOUT')
    a.i("s_add_u32 s5, s26, 1276"); a.i("v_lshlrev_b32 v5, 2, v2"); a.i("v_sub_u32 v64, s5, v5")
    a.i("v_add_u32 v5, 1, v2"); a.i("v_lshrrev_b32 v5, 6, v5"); a.i("v_lshlrev_b32 v5, 1, v5"); a.i("v_sub_u32 v65, v64, v5")
    def gaddr(ch):
        a.i("s_cmp_eq_u32 s23, 0"); a.i(f"s_cbranch_scc1 kb_ga{ch}")
        if ch == 0: a.i("v_sub_u32 v5, 1023, v170")
        for e in range(4 * ch, 4 * ch + 4, 2):
            a.i(f"v_subrev_u32 v6, {e}, v5"); a.i(f"v_subrev_u32 v7, {e+1}, v5")
            a.i("v_cvt_f32_u32 v8, v6"); a.i("v_cvt_f32_u32 v9, v7")
            a.i("v_cvt_pk_bf16_f32 v8, v8, v9")
            a.i("v_min_u32 v6, 256, v6"); a.i("v_min_u32 v7, 256, v7")
            a.i("v_lshrrev_b32 v9, 16, v8"); a.i("v_and_b32 v8, 0xffff, v8")
            a.i(f"v_add_u32 v8, {(-0x4280) & 0xffffffff}, v8"); a.i(f"v_add_u32 v9, {(-0x4280) & 0xffffffff}, v9")
            a.i("v_max_i32 v6, v6, v8"); a.i("v_max_i32 v7, v7, v9")
            if e >= 16: a.i("v_min_u32 v6, 896, v6"); a.i("v_min_u32 v7, 896, v7")
            a.i(f"v_lshl_add_u32 v{64+e}, v6, 1, s26"); a.i(f"v_lshl_add_u32 v{65+e}, v7, 1, s26")
        a.raw(f"kb_ga{ch}:")
    a.i("v_mov_b32 v8, 0"); a.i("v_mov_b32 v9, s26")
    a.i("s_mov_b64 exec, 1"); a.dsop("ds_write_b32 v9, v8 offset:1792"); a.i("s_mov_b64 exec, -1")
    a.i("v_and_b32 v6, 15, v2")
    a.i("s_lshl_b32 s5, s23, 4")
    a.i("v_add_u32 v6, s5, v6")
    a.i("v_lshrrev_b32 v7, 4, v2")
    a.i("v_max_u32 v8, 1, v7")
    a.i("v_sub_u32 v8, 4, v8")
    a.i("v_lshlrev_b32 v8, v8, v6")
    a.i("v_lshlrev_b32 v9, 2, v7")
    a.i("v_lshlrev_b32 v17, 7, v7")
    a.i("v_cmp_gt_u32 vcc, 2, v7")
    a.i("s_nop 1")
    a.i("v_cndmask_b32 v9, v17, v9, vcc")
    a.i("v_add_u32 v8, v8, v9")
    a.i("v_lshl_add_u32 v150, v8, 1, s26")
    a.i("v_cmp_eq_u32 vcc, 3, v7")
    a.i("v_mov_b32 v9, 4")
    a.i("v_mov_b32 v17, 128")
    a.i("v_cndmask_b32 v9, v9, v17, vcc")
    a.i("v_add_u32 v151, v150, v9")
    a.i("v_min_u32 v9, 2, v7")
    a.i("v_lshlrev_b32 v9, 7, v9")
    a.i("v_add3_u32 v9, v9, v6, 0")
    a.i("v_add_u32 v9, 512, v9")
    a.i("v_lshl_add_u32 v152, v9, 1, s26")
    a.i("v_and_b32 v8, 15, v2")
    a.i("v_mul_u32_u24 v8, 528, v8")
    a.i("v_lshl_add_u32 v8, v7, 4, v8")
    a.i("v_add_u32 v153, s25, v8")
    a.i(f"s_mul_i32 s5, s23, {16*528}")
    a.i(f"s_add_u32 s5, s5, {BT}")
    a.i("v_add_u32 v154, s5, v153")
    a.i("v_lshl_add_u32 v155, v2, 3, s25")
    a.i("v_lshlrev_b32 v170, 4, v2"); a.i("v_lshrrev_b32 v169, 5, v2")
    a.i(f"s_mul_i32 s6, s22, {KCH}"); a.i("s_lshl_b32 s7, s23, 11"); a.i("s_add_u32 s6, s6, s7"); a.i("v_lshl_add_u32 v160, v2, 5, s6")
    for r in range(144, 148): a.i(f"v_mov_b32 v{r}, 0")
    a.i(f"s_mul_i32 s6, s22, {UCH}"); a.i(f"s_mul_i32 s7, s23, {U1}"); a.i("s_add_u32 s6, s6, s7"); a.i(f"s_add_u32 s6, s6, {U_OFF}")
    a.i("v_add_u32 v161, s6, v170"); a.i("v_min_u32 v162, 15, v2"); a.i("v_lshl_add_u32 v162, v162, 4, s6")
    a.i(f"s_mul_i32 s7, s23, {16*RS}"); a.i("s_add_u32 s6, s6, s7"); a.i("v_mov_b32 v163, s6")
    a.i(f"s_mul_i32 s6, s22, {KCH}"); a.i(f"s_mul_i32 s7, s23, {2*CS}"); a.i("s_add_u32 s6, s6, s7")
    a.i("v_min_u32 v164, 6, v2"); a.i("v_lshl_add_u32 v164, v164, 4, s6")
    a.i(f"v_mul_u32_u24 v165, {RS}, v156"); a.i("v_lshl_add_u32 v165, v157, 2, v165"); a.i(f"v_add_u32 v165, {U_OFF + 16*RS}, v165")
    a.i("v_cmp_lt_u32 vcc, 13, v157"); a.i("v_mov_b32 v166, 0"); a.i("v_mov_b32 v6, 16")
    a.i("v_cndmask_b32 v166, v166, v6, vcc"); a.i("v_add_u32 v166, v165, v166")
    a.i("v_and_b32 v167, 3, v2"); a.i(f"v_mul_u32_u24 v167, {CS}, v167")
    a.i("v_bfe_u32 v6, v2, 2, 3"); a.i("v_add_u32 v6, v6, v169"); a.i("v_lshlrev_b32 v6, 4, v6"); a.i("v_sub_u32 v167, v167, v6")
    a.i(f"s_mul_i32 s6, s22, {KCH}"); a.i("s_lshl_b32 s7, s23, 10"); a.i("s_sub_u32 s6, s6, s7"); a.i(f"s_add_u32 s6, s6, {576*2}")
    a.i("v_add_u32 v167, s6, v167")
    a.i("v_bfe_u32 v168, v2, 1, 4"); a.i(f"v_mul_u32_u24 v168, {RS}, v168")
    a.i("v_and_b32 v6, 1, v2"); a.i("v_xor_b32 v6, 1, v6"); a.i(f"v_mul_u32_u24 v6, {U1}, v6"); a.i("v_add_u32 v168, v168, v6")
    a.i("v_lshlrev_b32 v6, 4, v169"); a.i("v_sub_u32 v168, v168, v6")
    a.i(f"s_mul_i32 s6, s22, {UCH}"); a.i(f"s_mul_i32 s7, s23, {8*RS}"); a.i("s_sub_u32 s6, s6, s7"); a.i(f"s_add_u32 s6, s6, {U_OFF}")
    a.i("v_add_u32 v168, s6, v168"); a.i("v_mov_b32 v171, v158")
    for ch in range(GP): gaddr(ch)
    dg.mark("pre")
    a.wait_vm(pm)
    dg.mark("loaded")
    part(P_A)
    if int(os.environ.get('PT', '1')) & 4:
        a.i("v_mul_u32_u24 v148, 36864, v2"); a.vmem(f"buffer_load_dword v191, v148, s[{sOUT}:{sOUT+3}], 0 offen")
    a.i("v_lshlrev_b32 v16, 16, v16")
    a.i(f"v_mul_f32 v17, {fl(L2E_hi)}, v16")
    a.i(f"v_mov_b32 v18, {fl(L2E_hi)}")
    a.i("v_fma_f32 v18, v16, v18, -v17")
    a.i(f"v_fmac_f32 v18, {fl(L2E_lo)}, v16")
    a.i("v_exp_f32 v17, v17")
    a.i(f"v_mul_f32 v18, {fl(math.log(2.0))}, v18")
    a.i("v_fmac_f32 v17, v17, v18")
    a.i("v_cvt_pk_bf16_f32 v17, v17, v17")
    a.i("v_lshlrev_b32 v16, 16, v17")
    a.i("v_lshlrev_b32 v20, 16, v10"); a.i("v_and_b32 v21, 0xffff0000, v10")
    a.i("v_lshlrev_b32 v22, 16, v11"); a.i("v_and_b32 v23, 0xffff0000, v11")
    for r in (20, 21, 22, 23): a.i(f"v_mul_f32 v{r}, v16, v{r}")
    for r in (20, 21): a.i(f"v_mul_f32 v{r}, {fl(L2E)}, v{r}")
    for r in (22, 23): a.i(f"v_mul_f32 v{r}, 0.15915494, v{r}")
    def direct(dst, vv):
        for m in range(2):
            a.i(f"v_mul_f32 v{24+m}, {fl(float(vv))}, v{20+m}")
            a.i(f"v_mul_f32 v{26+m}, {fl(float(vv))}, v{22+m}")
        for m in range(2):
            a.i(f"v_exp_f32 v{24+m}, v{24+m}")
            a.i(f"v_fract_f32 v{26+m}, v{26+m}")
        for m in range(2):
            a.i(f"v_cos_f32 v{28+m}, v{26+m}")
            a.i(f"v_sin_f32 v{30+m}, v{26+m}")
        a.i("s_nop 0")
        for m in range(2):
            a.i(f"v_mul_f32 v{dst+2*m}, v{24+m}, v{28+m}")
            a.i(f"v_mul_f32 v{dst+2*m+1}, v{24+m}, v{30+m}")
    def put(z, off, t):
        a.i(f"v_cvt_pk_f16_f32 v{t}, v{z}, v{z+1}")
        a.i(f"v_cvt_pk_f16_f32 v{t+1}, v{z+2}, v{z+3}")
        a.dsop(f"ds_write_b64 v155, v[{t}:{t+1}] offset:{off}")
    def cm2(d, z, w, t):
        for m in range(2): a.i(f"v_pk_mul_f32 v[{t+2*m}:{t+2*m+1}], v[{z+2*m}:{z+2*m+1}], v[{w+2*m}:{w+2*m+1}] op_sel:[0,0] op_sel_hi:[0,1]")
        for m in range(2): a.i(f"v_pk_fma_f32 v[{d+2*m}:{d+2*m+1}], v[{z+2*m}:{z+2*m+1}], v[{w+2*m}:{w+2*m+1}], v[{t+2*m}:{t+2*m+1}] op_sel:[1,1,0] op_sel_hi:[1,0,1] neg_lo:[1,0,0]")
    a.i(f"s_cmp_eq_u32 s23, {os.environ.get('HR', '0')}")
    a.i("s_cbranch_scc1 kb_hi")
    direct(32, 8)
    direct(40, 128)
    a.i("v_mov_b32 v36, 1.0"); a.i("v_mov_b32 v37, 0"); a.i("v_mov_b32 v38, 1.0"); a.i("v_mov_b32 v39, 0")
    for r in range(16):
        put(36, BT + r * 528, 52 + 4 * (r & 1))
        put(40, BT + (16 + r) * 528, 54 + 4 * (r & 1))
        if r < 15:
            cm2(36, 36, 32, 44)
            cm2(40, 40, 32, 48)
    a.i("s_branch kb_join")
    a.raw("kb_hi:")
    a.i("v_xor_b32 v22, 0x80000000, v22"); a.i("v_xor_b32 v23, 0x80000000, v23")
    for k, src in enumerate((12, 13, 14, 15)):
        a.i(f"v_lshlrev_b32 v{40+2*k}, 16, v{src}"); a.i(f"v_and_b32 v{41+2*k}, 0xffff0000, v{src}")
    for r in (40, 41, 42, 43): a.i(f"v_mul_f32 v{r}, v16, v{r}")
    for m in range(2):
        a.i(f"v_mul_f32 v{36+2*m}, v{44+m}, v{40+m}")
        a.i(f"v_fma_f32 v{36+2*m}, -v{46+m}, v{42+m}, v{36+2*m}")
        a.i(f"v_mul_f32 v{37+2*m}, v{44+m}, v{42+m}")
        a.i(f"v_fma_f32 v{37+2*m}, -v{46+m}, v{40+m}, -v{37+2*m}")
    a.i("v_max3_f32 v48, abs(v36), abs(v37), abs(v38)")
    a.i("v_max_f32 v49, abs(v39), abs(v39)")
    a.i("v_max_f32 v48, v48, v49")
    for rr in (8, 4, 2, 1):
        a.i("s_nop 1")
        a.i(f"v_max_f32_dpp v48, v48, v48 row_ror:{rr} row_mask:0xf bank_mask:0xf")
    a.i("s_nop 1")
    for k, ln in enumerate((0, 16, 32, 48)): a.i(f"v_readlane_b32 s{56+k}, v48, {ln}")
    a.i("s_nop 3")
    a.i("s_max_u32 s56, s56, s57"); a.i("s_max_u32 s58, s58, s59"); a.i("s_max_u32 s56, s56, s58")
    a.i("s_lshr_b32 s56, s56, 23")
    a.i("s_max_u32 s56, s56, 1"); a.i("s_min_u32 s56, s56, 253")
    a.i("s_sub_u32 s57, 254, s56"); a.i("s_lshl_b32 s57, s57, 23")
    a.i("s_lshl_b32 s56, s56, 23")
    for r in (36, 37, 38, 39): a.i(f"v_mul_f32 v{r}, s57, v{r}")
    direct(32, 1)
    direct(40, 256)
    cm2(56, 36, 40, 44)
    cm2(60, 32, 32, 48)
    put(36, 0, 52)
    cm2(86, 60, 60, 48)
    put(56, 8 * 528, 54)
    cm2(94, 56, 60, 44)
    cm2(36, 36, 32, 48); put(94, 9 * 528, 90); put(36, 1 * 528, 52)
    cm2(94, 94, 60, 44); cm2(36, 36, 32, 48); put(94, 10 * 528, 90); put(36, 2 * 528, 52)
    cm2(94, 94, 60, 44); cm2(36, 36, 32, 48); put(94, 11 * 528, 90); put(36, 3 * 528, 52)
    cm2(56, 56, 40, 44); cm2(36, 36, 32, 48); put(56, 12 * 528, 90); put(36, 4 * 528, 52)
    cm2(94, 56, 86, 44); cm2(36, 36, 32, 48); put(94, 13 * 528, 90); put(36, 5 * 528, 52)
    cm2(56, 56, 40, 44); cm2(36, 36, 32, 48); put(56, 14 * 528, 90); put(36, 6 * 528, 52)
    cm2(94, 56, 86, 44); cm2(36, 36, 32, 48); put(94, 15 * 528, 90); put(36, 7 * 528, 52)
    for row in range(16, 21):
        cm2(56, 56, 40, 44); put(56, row * 528, 52 + 2 * (row & 1))
    a.i("v_mov_b32 v48, s56"); a.i(f"s_lshl_b32 s5, s22, 2"); a.i("v_mov_b32 v49, s5")
    a.i(f"ds_write_b32 v49, v48 offset:{0}") if False else None
    a.i(f"v_add_u32 v49, {SCL_OFF}, v49"); a.i("s_mov_b64 exec, 1"); a.i("ds_write_b32 v49, v48"); a.i("s_mov_b64 exec, -1")
    a.raw("kb_join:")
    a.i("s_waitcnt lgkmcnt(0)"); a.ds_done = a.ds
    a.i("s_barrier")
    dg.mark("tables")
    part(P_B)
    def fr(k):
        b = 96 + 12 * (k % 4)
        a.dsop(f"ds_read_b128 v[{b}:{b+3}], v153 offset:{k*64}")
        a.dsop(f"ds_read_b128 v[{b+4}:{b+7}], v153 offset:{k*64 + 16*528}")
        return a.dsop(f"ds_read_b128 v[{b+8}:{b+11}], v154 offset:{k*64}")
    ids = {k: fr(k) for k in range(4)}
    a.i("s_lshl_b32 s5, s22, 2"); a.i(f"s_add_u32 s5, s5, {SCL_OFF}"); a.i("v_mov_b32 v15, s5")
    a.dsop("ds_read_b32 v15, v15")
    XN = []
    pool = list(range(84, 96)) + list(range(60, 64))
    def unp(d, s_): XN.extend([f"v_lshlrev_b32 v{d}, 16, v{s_}", f"v_and_b32 v{d+1}, 0xffff0000, v{s_}"])
    for k in range(4): XN.append(f"v_rcp_f32 v{52+2*k}, v{181+2*k}")
    for k in range(4): XN.extend([f"v_mov_b32 v{16+4*k}, v{172+2*k}", f"v_mov_b32 v{17+4*k}, v{173+2*k}"])
    for pr in range(2):
        KH = [(k, h) for k in (2*pr, 2*pr+1) for h in range(2)]
        def e(k, h): return pool[8*(k % 2) + 2*h]
        def q(k, h): return pool[8*(k % 2) + 4 + 2*h]
        def P(r): return f"v[{r}:{r+1}]"
        for k, h in KH: unp(e(k, h), 172 + 2*k + h)
        for k, h in KH: XN.append(f"v_pk_add_f32 {P(e(k,h))}, {P(e(k,h))}, {P(180+2*k)} op_sel:[0,0] op_sel_hi:[1,0] neg_lo:[0,1] neg_hi:[0,1]")
        for k, h in KH: XN.append(f"v_cvt_pk_bf16_f32 v{18+4*k+h}, v{e(k,h)}, v{e(k,h)+1}")
        for k, h in KH: unp(e(k, h), 18 + 4*k + h)
        for k, h in KH: XN.append(f"v_pk_mul_f32 {P(q(k,h))}, {P(e(k,h))}, {P(52+2*k)} op_sel:[0,0] op_sel_hi:[1,0]")
        for k, h in KH: XN.append(f"v_pk_fma_f32 {P(e(k,h))}, {P(q(k,h))}, {P(180+2*k)}, {P(e(k,h))} op_sel:[0,1,0] op_sel_hi:[1,1,1] neg_lo:[1,0,0] neg_hi:[1,0,0]")
        for k, h in KH: XN.append(f"v_pk_fma_f32 {P(q(k,h))}, {P(e(k,h))}, {P(52+2*k)}, {P(q(k,h))} op_sel:[0,0,0] op_sel_hi:[1,0,1]")
        for k, h in KH: XN.append(f"v_cvt_pk_bf16_f32 v{18+4*k+h}, v{q(k,h)}, v{q(k,h)+1}")
        for k, h in KH: unp(e(k, h), 18 + 4*k + h)
        for c in range(4): XN.append(f"v_cvt_pk_f16_f32 v{32+4*pr+c}, v{e(2*pr, c//2) + c%2}, v{e(2*pr+1, c//2) + c%2}")
    def xn(n):
        for _ in range(n):
            if XN: a.i(XN.pop(0))
    a.wait_vm(xs)
    xn(XN0)
    for k in range(8):
        b = 96 + 12 * (k % 4)
        a.wait_ds(ids[k])
        c0 = "0" if k == 0 else "v[40:43]"; c1 = "0" if k == 0 else "v[44:47]"
        a.i(f"v_mfma_f32_16x16x32_f16 v[40:43], v[{b}:{b+3}], v[{b+8}:{b+11}], {c0}")
        a.i(f"v_mfma_f32_16x16x32_f16 v[44:47], v[{b+4}:{b+7}], v[{b+8}:{b+11}], {c1}")
        xn(4)
        if k + 4 < 8: ids[k + 4] = fr(k + 4)
        if k == 3: xn(XN1)
        if GP + k < 5: gaddr(GP + k)
    xn(10)
    a.i("v_cvt_pk_f16_f32 v48, v40, v41"); a.i("v_cvt_pk_f16_f32 v49, v42, v43")
    a.i("v_cvt_pk_f16_f32 v50, v44, v45"); a.i("v_cvt_pk_f16_f32 v51, v46, v47")
    a.dsop("ds_write_b32 v150, v48"); a.dsop("ds_write_b32 v151, v49")
    a.dsop("ds_write_b16 v152, v50"); a.dsop("ds_write_b16_d16_hi v152, v50 offset:64")
    a.dsop("ds_write_b16 v152, v51 offset:128"); a.dsop("ds_write_b16_d16_hi v152, v51 offset:192")
    xn(8)
    a.i("s_waitcnt lgkmcnt(0)"); a.ds_done = a.ds
    a.i("s_barrier")
    dg.mark("T")
    a.i("s_cmp_eq_u32 s23, 0"); a.i("s_cbranch_scc1 kb_g0")
    for e_ in range(19): a.i(f"ds_read_u16 v{96 + e_}, v{64+e_}")
    a.i("s_branch kb_g1")
    a.raw("kb_g0:")
    for e_ in range(3): a.i(f"ds_read_u16 v{96 + e_}, v64 offset:{2*e_}")
    a.i("ds_read_u16 v99, v65")
    a.raw("kb_g1:")
    a.ds += 1; gid = a.ds
    a.dsop("ds_write_b128 v161, v[144:147]"); a.dsop("ds_write_b128 v161, v[144:147] offset:1024")
    a.i("s_mov_b64 exec, 0xffff"); a.dsop("ds_write_b128 v162, v[144:147] offset:2048")
    a.i("s_mov_b64 exec, 1"); a.dsop("ds_write_b64 v163, v[144:145]")
    a.i("s_mov_b64 exec, 0x7f")
    a.dsop("ds_write_b128 v164, v[144:147] offset:4096"); a.dsop(f"ds_write_b128 v164, v[144:147] offset:{4096+CS}")
    a.i("s_mov_b64 exec, -1")
    part(P_C)
    xn(1000)
    for c in range(4):
        a.dsop(f"ds_write_b32 v165, v{32+c} offset:{c*UCH}"); a.dsop(f"ds_write_b32 v165, v{32+c} offset:{c*UCH + U1 + 8}")
    a.wait_ds(gid)
    a.i("s_cmp_eq_u32 s23, 0"); a.i("s_cbranch_scc1 kb_p0")
    for role in (1, 0):
        G = (lambda e: 96 + e) if role else (lambda e: 98 if e < 4 else 97 if e < 11 else 96 if e < 18 else 99)
        for c in range(4):
            for e_ in range(8): a.i(f"v_lshl_or_b32 v{64+8*c+e_}, v{G(2*e_+1+3-c)}, 16, v{G(2*e_+3-c)}")
            a.i(f"ds_write_b128 v160, v[{64+8*c}:{67+8*c}] offset:{c*CS}"); a.i(f"ds_write_b128 v160, v[{68+8*c}:{71+8*c}] offset:{c*CS+16}")
            a.i(f"ds_write_b32 v165, v{36+c} offset:{c*UCH + 64}"); a.i(f"ds_write_b32 v166, v{36+c} offset:{c*UCH + U1 + 8 + 64}")
        if role: a.i("s_branch kb_p1"); a.raw("kb_p0:")
    a.raw("kb_p1:")
    a.i("v_mov_b32 v12, v167"); a.i("v_mov_b32 v14, v168"); a.i("v_mov_b32 v13, v169"); a.i("v_mov_b32 v8, v170"); a.i("v_mov_b32 v5, v171")
    a.i("s_waitcnt lgkmcnt(0)"); a.ds_done = a.ds
    a.i("s_barrier")
    dg.mark("conv")
    def zoff(z): return (z // 64) * RS + (z % 64) * 2
    def loads(st):
        b = 64 + 16 * (st % 3)
        ya = (31 - st) * 32
        zb = 1024 + 56 - 16 * st
        a.dsop(f"ds_read_b128 v[{b}:{b+3}], v12 offset:{ya + 2048}")
        a.dsop(f"ds_read_b128 v[{b+4}:{b+7}], v14 offset:{zoff(zb)}")
        i1 = a.dsop(f"ds_read_b128 v[{b+8}:{b+11}], v14 offset:{zoff(zb + 1024)}")
        i2 = a.dsop(f"ds_read_b128 v[{b+12}:{b+15}], v12 offset:{ya}")
        return i1, i2
    F = []
    SU, TT_, XX = 112, 32, 48
    def rnd2(d0, d1, t, L=None):
        o = [f"v_cvt_pk_bf16_f32 v{t}, v{d0}, v{d1}", f"v_lshlrev_b32 v{d0}, 16, v{t}", f"v_and_b32 v{d1}, 0xffff0000, v{t}"]
        return o
    for k in range(2):
        F += [f"s_lshl_b32 s{56+2*k}, s{16+k}, 16", f"s_and_b32 s{57+2*k}, s{16+k}, 0xffff0000", f"s_lshl_b32 s{60+2*k}, s{18+k}, 16", f"s_and_b32 s{61+2*k}, s{18+k}, 0xffff0000"]
    for k in range(4):
        for c in range(4):
            sh = "v_lshlrev_b32 v{d}, 16, v{s}" if c % 2 == 0 else "v_and_b32 v{d}, 0xffff0000, v{s}"
            F.append(sh.format(d=TT_ + 4*k + c, s=18 + 4*k + c // 2))
            F.append(sh.format(d=XX + 4*k + c, s=16 + 4*k + c // 2))
    for k in range(16): F.append(f"v_mul_f32 v{TT_+k}, s{56 + k % 4}, v{TT_+k}")
    def rnd_all(base):
        o = []
        for g in range(2):
            tr_ = [rnd2(base + 8*g + 2*k, base + 8*g + 2*k + 1, 16 + k) for k in range(4)]
            for j in range(3): o += [t[j] for t in tr_]
        return o
    F += rnd_all(TT_)
    for s_ in range(1, 8):
        F.append(('vm', 2 * s_ + 1))
        for r in range(8):
            for hh in range(2):
                d = SU + 2*r + hh
                if s_ == 1: F.append(f"v_fma_mix_f32 v{d}, v{PB+r}, 1.0, v{PB+8+r} op_sel:[{hh},0,{hh}] op_sel_hi:[1,0,1]")
                else: F.append(f"v_fma_mix_f32 v{d}, v{PB+8*s_+r}, 1.0, v{d} op_sel:[{hh},0,0] op_sel_hi:[1,0,0]")
    F += rnd_all(SU)
    for k in range(16): F.append(f"v_add_f32 v{SU+k}, s{60 + k % 4}, v{SU+k}")
    F += rnd_all(SU)
    def fill(n):
        while n > 0 and F:
            f = F.pop(0)
            if isinstance(f, tuple): a.wait_vm(pid[f[1]])
            else: a.i(f); n -= 1
    ld = {0: loads(0), 1: loads(1)}
    for st in range(32):
        b = 64 + 16 * (st % 3)
        if st + 2 < 32: ld[st + 2] = loads(st + 2)
        a.wait_ds(ld[st][0])
        c0 = "0" if st == 0 else "v[128:143]"; c1 = "0" if st == 0 else "v[144:159]"
        nf = F_N if st >= F_S else (3 if any(isinstance(f, tuple) for f in F[12:]) and not any(isinstance(f, tuple) for f in F[:12]) else 0)
        a.i(f"v_mfma_f32_32x32x16_f16 v[128:143], v[{b}:{b+3}], v[{b+4}:{b+7}], {c0}")
        fill(nf)
        a.i(f"v_mfma_f32_32x32x16_f16 v[144:159], v[{b}:{b+3}], v[{b+8}:{b+11}], {c1}")
        part(P_D)
        fill(nf)
        a.wait_ds(ld[st][1])
        a.i(f"v_mfma_f32_32x32x16_f16 v[144:159], v[{b+12}:{b+15}], v[{b+4}:{b+7}], v[144:159]")
        fill(nf)
    dg.mark("convend")
    a.i(f"s_lshl_b32 s6, s20, 12"); a.i(f"s_add_u32 s6, s6, {SC_OFF}"); a.i("v_add_u32 v9, s6, v8")
    a.i("s_xor_b32 s7, s20, 4"); a.i("s_lshl_b32 s7, s7, 12"); a.i(f"s_add_u32 s7, s7, {SC_OFF}"); a.i("v_add_u32 v10, s7, v8")
    a.i("v_bfe_u32 v11, v2, 1, 4"); a.i("v_lshlrev_b32 v11, 7, v11")
    a.i("v_and_b32 v12, 1, v2"); a.i("v_lshl_add_u32 v11, v12, 3, v11")
    a.i("v_lshl_add_u32 v11, v13, 4, v11")
    a.i(f"s_mul_i32 s6, s22, {YS}"); a.i("s_lshl_b32 s7, s23, 11"); a.i("s_add_u32 s6, s6, s7"); a.i("v_add_u32 v11, s6, v11")
    a.i("v_lshlrev_b32 v12, 1, v5")
    a.i("v_mul_u32_u24 v13, 1152, v5"); a.i("s_lshl_b32 s6, s21, 3")
    a.i("v_mov_b32 v14, v15")
    a.nop(4)
    a.i("s_cmp_eq_u32 s23, 0"); a.i("s_cbranch_scc1 kb_mu0")
    def xch(send, keep):
        for k in range(4): a.i(f"ds_write_b128 v9, v[{send+4*k}:{send+3+4*k}] offset:{k*1024}")
        a.i("s_waitcnt lgkmcnt(0)")
        a.i("s_barrier")
        for k in range(4): a.i(f"ds_read_b128 v[{176+4*k}:{179+4*k}], v10 offset:{k*1024}")
        for k in range(4):
            a.i(f"s_waitcnt lgkmcnt({3-k})")
            for h in range(2): a.i(f"v_pk_add_f32 v[{160+4*k+2*h}:{161+4*k+2*h}], v[{keep+4*k+2*h}:{keep+1+4*k+2*h}], v[{176+4*k+2*h}:{177+4*k+2*h}]")
    xch(128, 144)
    a.i("s_branch kb_j")
    a.raw("kb_mu0:")
    xch(144, 128)
    a.raw("kb_j:")
    for k in range(8): a.i(f"v_pk_mul_f32 v[{160+2*k}:{161+2*k}], v[{160+2*k}:{161+2*k}], v[14:15]")
    for k in range(8): a.i(f"v_cvt_pk_bf16_f32 v{176+k}, v{160+2*k}, v{161+2*k}")
    for k in range(4): a.i(f"ds_write_b64 v11, v[{176+2*k}:{177+2*k}] offset:{32*k}")
    dg.mark("ywr")
    fill(1000)
    a.i("s_waitcnt lgkmcnt(0)")
    a.i("s_barrier")
    dg.mark("yb")
    for c in range(4):
        a.i(f"ds_read_b32 v{152+2*c}, v12 offset:{c*YS}")
        a.i(f"ds_read_b32 v{153+2*c}, v12 offset:{c*YS + 64}")
    a.i("s_waitcnt lgkmcnt(0)")
    Y = 128
    for pr in range(2):
        for u in range(2):
            for c in range(4):
                shy = "v_lshlrev_b32 v{d}, 16, v{s}" if u == 0 else "v_and_b32 v{d}, 0xffff0000, v{s}"
                a.i(shy.format(d=Y + 8*pr + 4*u + c, s=152 + 2*c + pr))
        def padd(src):
            for k in range(4*pr, 4*pr + 4): a.i(f"v_pk_add_f32 v[{Y+2*k}:{Y+2*k+1}], v[{Y+2*k}:{Y+2*k+1}], v[{src(k)}:{src(k)+1}]")
        padd(lambda k: TT_ + 2*k)
        for f in rnd_all(Y)[12*pr:12*pr+12]: a.i(f)
        padd(lambda k: XX + 2*k)
        for f in rnd_all(Y)[12*pr:12*pr+12]: a.i(f)
        padd(lambda k: SU + 8 * ((k // 2) % 2) + 4 * (k // 4) + 2 * (k % 2))
        for u in range(2):
            k = 2*pr + u
            a.i(f"v_cvt_pk_bf16_f32 v{172+2*k}, v{Y+4*k}, v{Y+4*k+1}"); a.i(f"v_cvt_pk_bf16_f32 v{173+2*k}, v{Y+4*k+2}, v{Y+4*k+3}")
            a.i(f"s_add_u32 s7, s6, {(32*pr + u) * 1152}")
            a.i(f"buffer_store_dwordx2 v[{172+2*k}:{173+2*k}], v13, s[{sOUT}:{sOUT+3}], s7 offen")
    a.raw("; SCOUTEND")
    dg.mark("st")
    dg.dump(48, 20, 8, 28)
    a.raw("kb_end:")
    a.i("s_endpgm")
    return a.text(), kd(name, 256, 256)
```

```python
from common import *
import math
CS = 4416; KCH = 4 * CS; RS = 144; U1 = 48 * RS + 128; UCH = 13968
U_OFF = 4 * KCH
SC_OFF = U_OFF + 4 * UCH
K3_LDS = SC_OFF + 32768
YS = 4096 + 64
CHB = 27984; BT = 11088; TS = 1808
T_OFF = SC_OFF + 16384
SCL_OFF = T_OFF + 4 * TS
ST_OFF = XU_OFF
L2E = math.log2(math.e)
L2E_hi = struct.unpack("<f", struct.pack("<f", L2E))[0]
L2E_lo = L2E - L2E_hi
sWS, sOUT = 8, 12
PB = 192
GP = int(os.environ.get('GP', '5'))
XN0, XN1 = [int(x) for x in os.environ.get('XNS', '24,24').split(',')]
P_EARLY, P_A, P_B, P_C, P_D, F_S, F_N = [int(x) for x in os.environ.get('PSCH', '0,2,4,4,1,12,4').split(',')]
def gen():
    a = Asm(); name = "kb_kernel"
    header(a, name)
    a.i("s_cmp_ge_u32 s2, 144"); a.i("s_cbranch_scc1 kb_end")
    dg = Diag(a, 2); dg.start(); dg.mark("start")
    a.i("s_load_dwordx16 s[32:47], s[0:1], 0")
    a.i("s_load_dwordx2 s[48:49], s[0:1], 128")
    a.i("s_load_dwordx4 s[52:55], s[0:1], 104")
    a.i("s_load_dwordx2 s[50:51], s[0:1], 64")
    a.i("v_lshrrev_b32 v1, 6, v0"); a.i("v_and_b32 v2, 63, v0")
    a.i("v_readfirstlane_b32 s20, v1")
    a.i("s_and_b32 s3, s2, 7"); a.i("s_lshr_b32 s4, s2, 3")
    a.i("s_lshl_b32 s5, s3, 4"); a.i("s_add_u32 s5, s5, s4")
    a.i("s_lshl_b32 s6, s3, 1"); a.i("s_add_u32 s6, s6, s4"); a.i("s_add_u32 s6, s6, 112")
    a.i("s_cmp_lt_u32 s4, 16"); a.i("s_cselect_b32 s21, s5, s6")
    a.i("s_and_b32 s22, s20, 3"); a.i("s_lshr_b32 s23, s20, 2")
    a.i("s_lshl_b32 s24, s21, 2"); a.i("s_add_u32 s24, s24, s22")
    a.i("s_lshl_b32 s5, s24, 8"); a.i("v_lshl_add_u32 v3, v2, 2, s5")
    a.i("s_lshl_b32 s5, s24, 1"); a.i("v_mov_b32 v4, s5")
    a.i("v_lshrrev_b32 v156, 4, v0"); a.i("v_and_b32 v157, 15, v0")
    a.i("v_lshlrev_b32 v158, 6, v156"); a.i("v_lshl_add_u32 v158, v157, 1, v158")
    a.i("s_lshl_b32 s6, s21, 14"); a.i("v_lshl_add_u32 v190, v158, 3, s6")
    a.i(f"v_lshlrev_b32 v189, 3, v158"); a.i(f"v_add_u32 v189, {ST_OFF}, v189")
    a.i("v_lshlrev_b32 v188, 9, v156"); a.i("v_lshl_add_u32 v188, v157, 4, v188")
    a.i(f"s_mul_i32 s25, s22, {CHB}")
    a.i(f"s_mul_i32 s26, s22, {TS}"); a.i(f"s_add_u32 s26, s26, {T_OFF}")
    a.i("s_waitcnt lgkmcnt(0)")
    for k, sb in enumerate((34, 36, 38, 40, 42, 44)):
        a.vmem(f"global_load_dword v{10+k}, v3, s[{sb}:{sb+1}]")
    pm = a.vmem("global_load_ushort v16, v4, s[46:47]")
    a.vmem("global_load_dwordx4 v[172:175], v190, s[48:49]"); a.vmem("global_load_dwordx4 v[176:179], v190, s[48:49] offset:256")
    a.vmem("global_load_dwordx4 v[180:183], v189, s[48:49]"); xs = a.vmem("global_load_dwordx4 v[184:187], v189, s[48:49] offset:256")
    srd(a, sWS, 48, WS_BYTES); srd(a, sOUT, 54, 2359296)
    a.i("s_lshl_b32 s5, s21, 3")
    a.i("s_add_u32 s56, s50, s5"); a.i("s_addc_u32 s57, s51, 0")
    a.i("s_load_dwordx2 s[16:17], s[56:57], 0")
    a.i("s_add_u32 s56, s52, s5"); a.i("s_addc_u32 s57, s53, 0")
    a.i("s_load_dwordx2 s[18:19], s[56:57], 0")
    a.i("s_lshl_b32 s27, s21, 17"); a.i(f"s_add_u32 s27, s27, {PART_OFF}")
    pn = [0]; pid = {}
    def part(cnt):
        for _ in range(cnt):
            n = pn[0]
            if n >= 16: return
            pn[0] += 1
            s_, u = divmod(n, 2)
            if u == 0 and s_ > 0: a.i(f"s_add_u32 s27, s27, 16384")
            pid[n] = a.vmem(f"buffer_load_dwordx4 v[{PB+8*s_+4*u}:{PB+3+8*s_+4*u}], v188, s[{sWS}:{sWS+3}], s27 offen offset:{256*u}")
    part(P_EARLY)
    a.raw('; SCOUT')
    a.i("s_add_u32 s5, s26, 1276"); a.i("v_lshlrev_b32 v5, 2, v2"); a.i("v_sub_u32 v64, s5, v5")
    a.i("v_add_u32 v5, 1, v2"); a.i("v_lshrrev_b32 v5, 6, v5"); a.i("v_lshlrev_b32 v5, 1, v5"); a.i("v_sub_u32 v65, v64, v5")
    def gaddr(ch):
        a.i("s_cmp_eq_u32 s23, 0"); a.i(f"s_cbranch_scc1 kb_ga{ch}")
        if ch == 0:
            a.i("v_sub_u32 v5, 1023, v170"); a.i("v_sub_u32 v8, 1022, v170")
            a.i("v_cvt_f32_u32 v6, v5"); a.i("v_cvt_f32_u32 v7, v8"); a.i("v_lshl_or_b32 v5, v8, 16, v5")
            a.i("s_mov_b32 s28, 0xbd80bd80"); a.i("s_mov_b32 s29, 0x01000100"); a.i("s_mov_b32 s30, 0xfffefffe"); a.i("s_mov_b32 s31, 0x03800380")
        for e in range(4 * ch, 4 * ch + 4, 2):
            a.i("v_cvt_pk_bf16_f32 v8, v6, v7"); a.i("v_pk_min_u16 v9, v5, s29")
            a.i("v_pk_add_u16 v8, v8, s28"); a.i("v_pk_add_f32 v[6:7], v[6:7], -2.0 op_sel_hi:[1,0]")
            a.i("v_pk_max_i16 v8, v8, v9"); a.i("v_pk_add_u16 v5, v5, s30")
            if e >= 16: a.i("v_pk_min_u16 v8, v8, s31")
            a.i(f"v_mad_u32_u16 v{64+e}, v8, 2, s26"); a.i(f"v_mad_u32_u16 v{65+e}, v8, 2, s26 op_sel:[1,0,0,0]")
        a.raw(f"kb_ga{ch}:")
    a.i("v_mov_b32 v8, 0"); a.i("v_mov_b32 v9, s26")
    a.i("s_mov_b64 exec, 1"); a.dsop("ds_write_b32 v9, v8 offset:1792"); a.i("s_mov_b64 exec, -1")
    a.i("v_and_b32 v6, 15, v2")
    a.i("s_lshl_b32 s5, s23, 4")
    a.i("v_add_u32 v6, s5, v6")
    a.i("v_lshrrev_b32 v7, 4, v2")
    a.i("v_max_u32 v8, 1, v7")
    a.i("v_sub_u32 v8, 4, v8")
    a.i("v_lshlrev_b32 v8, v8, v6")
    a.i("v_lshlrev_b32 v9, 2, v7")
    a.i("v_lshlrev_b32 v17, 7, v7")
    a.i("v_cmp_gt_u32 vcc, 2, v7")
    a.i("s_nop 1")
    a.i("v_cndmask_b32 v9, v17, v9, vcc")
    a.i("v_add_u32 v8, v8, v9")
    a.i("v_lshl_add_u32 v150, v8, 1, s26")
    a.i("v_cmp_eq_u32 vcc, 3, v7")
    a.i("v_mov_b32 v9, 4")
    a.i("v_mov_b32 v17, 128")
    a.i("v_cndmask_b32 v9, v9, v17, vcc")
    a.i("v_add_u32 v151, v150, v9")
    a.i("v_min_u32 v9, 2, v7")
    a.i("v_lshlrev_b32 v9, 7, v9")
    a.i("v_add3_u32 v9, v9, v6, 0")
    a.i("v_add_u32 v9, 512, v9")
    a.i("v_lshl_add_u32 v152, v9, 1, s26")
    a.i("v_and_b32 v8, 15, v2")
    a.i("v_mul_u32_u24 v8, 528, v8")
    a.i("v_lshl_add_u32 v8, v7, 4, v8")
    a.i("v_add_u32 v153, s25, v8")
    a.i(f"s_mul_i32 s5, s23, {16*528}")
    a.i(f"s_add_u32 s5, s5, {BT}")
    a.i("v_add_u32 v154, s5, v153")
    a.i("v_lshl_add_u32 v155, v2, 3, s25")
    a.i("v_lshlrev_b32 v170, 4, v2"); a.i("v_lshrrev_b32 v169, 5, v2")
    a.i(f"s_mul_i32 s6, s22, {KCH}"); a.i("s_lshl_b32 s7, s23, 11"); a.i("s_add_u32 s6, s6, s7"); a.i("v_lshl_add_u32 v160, v2, 5, s6")
    for r in range(144, 148): a.i(f"v_mov_b32 v{r}, 0")
    a.i(f"s_mul_i32 s6, s22, {UCH}"); a.i(f"s_mul_i32 s7, s23, {U1}"); a.i("s_add_u32 s6, s6, s7"); a.i(f"s_add_u32 s6, s6, {U_OFF}")
    a.i("v_add_u32 v161, s6, v170"); a.i("v_min_u32 v162, 15, v2"); a.i("v_lshl_add_u32 v162, v162, 4, s6")
    a.i(f"s_mul_i32 s7, s23, {16*RS}"); a.i("s_add_u32 s6, s6, s7"); a.i("v_mov_b32 v163, s6")
    a.i(f"s_mul_i32 s6, s22, {KCH}"); a.i(f"s_mul_i32 s7, s23, {2*CS}"); a.i("s_add_u32 s6, s6, s7")
    a.i("v_min_u32 v164, 6, v2"); a.i("v_lshl_add_u32 v164, v164, 4, s6")
    a.i(f"v_mul_u32_u24 v165, {RS}, v156"); a.i("v_lshl_add_u32 v165, v157, 2, v165"); a.i(f"v_add_u32 v165, {U_OFF + 16*RS}, v165")
    a.i("v_cmp_lt_u32 vcc, 13, v157"); a.i("v_mov_b32 v166, 0"); a.i("v_mov_b32 v6, 16")
    a.i("v_cndmask_b32 v166, v166, v6, vcc"); a.i("v_add_u32 v166, v165, v166")
    a.i("v_and_b32 v167, 3, v2"); a.i(f"v_mul_u32_u24 v167, {CS}, v167")
    a.i("v_bfe_u32 v6, v2, 2, 3"); a.i("v_add_u32 v6, v6, v169"); a.i("v_lshlrev_b32 v6, 4, v6"); a.i("v_sub_u32 v167, v167, v6")
    a.i(f"s_mul_i32 s6, s22, {KCH}"); a.i("s_lshl_b32 s7, s23, 10"); a.i("s_sub_u32 s6, s6, s7"); a.i(f"s_add_u32 s6, s6, {576*2}")
    a.i("v_add_u32 v167, s6, v167")
    a.i("v_bfe_u32 v168, v2, 1, 4"); a.i(f"v_mul_u32_u24 v168, {RS}, v168")
    a.i("v_and_b32 v6, 1, v2"); a.i("v_xor_b32 v6, 1, v6"); a.i(f"v_mul_u32_u24 v6, {U1}, v6"); a.i("v_add_u32 v168, v168, v6")
    a.i("v_lshlrev_b32 v6, 4, v169"); a.i("v_sub_u32 v168, v168, v6")
    a.i(f"s_mul_i32 s6, s22, {UCH}"); a.i(f"s_mul_i32 s7, s23, {8*RS}"); a.i("s_sub_u32 s6, s6, s7"); a.i(f"s_add_u32 s6, s6, {U_OFF}")
    a.i("v_add_u32 v168, s6, v168"); a.i("v_mov_b32 v171, v158")
    for ch in range(GP): gaddr(ch)
    dg.mark("pre")
    a.wait_vm(pm)
    dg.mark("loaded")
    part(P_A)
    if int(os.environ.get('PT', '1')) & 4:
        a.i("v_mul_u32_u24 v148, 36864, v2"); a.vmem(f"buffer_load_dword v191, v148, s[{sOUT}:{sOUT+3}], 0 offen")
    a.i("v_lshlrev_b32 v16, 16, v16")
    a.i(f"v_mul_f32 v17, {fl(L2E_hi)}, v16")
    a.i(f"v_mov_b32 v18, {fl(L2E_hi)}")
    a.i("v_fma_f32 v18, v16, v18, -v17")
    a.i(f"v_fmac_f32 v18, {fl(L2E_lo)}, v16")
    a.i("v_exp_f32 v17, v17")
    a.i(f"v_mul_f32 v18, {fl(math.log(2.0))}, v18")
    a.i("v_fmac_f32 v17, v17, v18")
    a.i("v_cvt_pk_bf16_f32 v17, v17, v17")
    a.i("v_lshlrev_b32 v16, 16, v17")
    a.i("v_lshlrev_b32 v20, 16, v10"); a.i("v_and_b32 v21, 0xffff0000, v10")
    a.i("v_lshlrev_b32 v22, 16, v11"); a.i("v_and_b32 v23, 0xffff0000, v11")
    for r in (20, 21, 22, 23): a.i(f"v_mul_f32 v{r}, v16, v{r}")
    for r in (20, 21): a.i(f"v_mul_f32 v{r}, {fl(L2E)}, v{r}")
    for r in (22, 23): a.i(f"v_mul_f32 v{r}, 0.15915494, v{r}")
    def direct(dst, vv):
        for m in range(2):
            a.i(f"v_mul_f32 v{24+m}, {fl(float(vv))}, v{20+m}")
            a.i(f"v_mul_f32 v{26+m}, {fl(float(vv))}, v{22+m}")
        for m in range(2):
            a.i(f"v_exp_f32 v{24+m}, v{24+m}")
            a.i(f"v_fract_f32 v{26+m}, v{26+m}")
        for m in range(2):
            a.i(f"v_cos_f32 v{28+m}, v{26+m}")
            a.i(f"v_sin_f32 v{30+m}, v{26+m}")
        a.i("s_nop 0")
        for m in range(2):
            a.i(f"v_mul_f32 v{dst+2*m}, v{24+m}, v{28+m}")
            a.i(f"v_mul_f32 v{dst+2*m+1}, v{24+m}, v{30+m}")
    def put(z, off, t):
        a.i(f"v_cvt_pk_f16_f32 v{t}, v{z}, v{z+1}")
        a.i(f"v_cvt_pk_f16_f32 v{t+1}, v{z+2}, v{z+3}")
        a.dsop(f"ds_write_b64 v155, v[{t}:{t+1}] offset:{off}")
    def cm2(d, z, w, t):
        for m in range(2): a.i(f"v_pk_mul_f32 v[{t+2*m}:{t+2*m+1}], v[{z+2*m}:{z+2*m+1}], v[{w+2*m}:{w+2*m+1}] op_sel:[0,0] op_sel_hi:[0,1]")
        for m in range(2): a.i(f"v_pk_fma_f32 v[{d+2*m}:{d+2*m+1}], v[{z+2*m}:{z+2*m+1}], v[{w+2*m}:{w+2*m+1}], v[{t+2*m}:{t+2*m+1}] op_sel:[1,1,0] op_sel_hi:[1,0,1] neg_lo:[1,0,0]")
    a.i(f"s_cmp_eq_u32 s23, {os.environ.get('HR', '0')}")
    a.i("s_cbranch_scc1 kb_hi")
    direct(32, 8)
    direct(40, 128)
    a.i("v_mov_b32 v36, 1.0"); a.i("v_mov_b32 v37, 0"); a.i("v_mov_b32 v38, 1.0"); a.i("v_mov_b32 v39, 0")
    for r in range(16):
        put(36, BT + r * 528, 52 + 4 * (r & 1))
        put(40, BT + (16 + r) * 528, 54 + 4 * (r & 1))
        if r < 15:
            cm2(36, 36, 32, 44)
            cm2(40, 40, 32, 48)
    a.i("s_branch kb_join")
    a.raw("kb_hi:")
    a.i("v_xor_b32 v22, 0x80000000, v22"); a.i("v_xor_b32 v23, 0x80000000, v23")
    for k, src in enumerate((12, 13, 14, 15)):
        a.i(f"v_lshlrev_b32 v{40+2*k}, 16, v{src}"); a.i(f"v_and_b32 v{41+2*k}, 0xffff0000, v{src}")
    for r in (40, 41, 42, 43): a.i(f"v_mul_f32 v{r}, v16, v{r}")
    for m in range(2):
        a.i(f"v_mul_f32 v{36+2*m}, v{44+m}, v{40+m}")
        a.i(f"v_fma_f32 v{36+2*m}, -v{46+m}, v{42+m}, v{36+2*m}")
        a.i(f"v_mul_f32 v{37+2*m}, v{44+m}, v{42+m}")
        a.i(f"v_fma_f32 v{37+2*m}, -v{46+m}, v{40+m}, -v{37+2*m}")
    a.i("v_max3_f32 v48, abs(v36), abs(v37), abs(v38)")
    a.i("v_max_f32 v49, abs(v39), abs(v39)")
    a.i("v_max_f32 v48, v48, v49")
    for rr in (8, 4, 2, 1):
        a.i("s_nop 1")
        a.i(f"v_max_f32_dpp v48, v48, v48 row_ror:{rr} row_mask:0xf bank_mask:0xf")
    a.i("s_nop 1")
    for k, ln in enumerate((0, 16, 32, 48)): a.i(f"v_readlane_b32 s{56+k}, v48, {ln}")
    a.i("s_nop 3")
    a.i("s_max_u32 s56, s56, s57"); a.i("s_max_u32 s58, s58, s59"); a.i("s_max_u32 s56, s56, s58")
    a.i("s_lshr_b32 s56, s56, 23")
    a.i("s_max_u32 s56, s56, 1"); a.i("s_min_u32 s56, s56, 253")
    a.i("s_sub_u32 s57, 254, s56"); a.i("s_lshl_b32 s57, s57, 23")
    a.i("s_lshl_b32 s56, s56, 23")
    for r in (36, 37, 38, 39): a.i(f"v_mul_f32 v{r}, s57, v{r}")
    direct(32, 1)
    direct(40, 256)
    cm2(56, 36, 40, 44)
    cm2(60, 32, 32, 48)
    put(36, 0, 52)
    cm2(86, 60, 60, 48)
    put(56, 8 * 528, 54)
    cm2(94, 56, 60, 44)
    cm2(36, 36, 32, 48); put(94, 9 * 528, 90); put(36, 1 * 528, 52)
    cm2(94, 94, 60, 44); cm2(36, 36, 32, 48); put(94, 10 * 528, 90); put(36, 2 * 528, 52)
    cm2(94, 94, 60, 44); cm2(36, 36, 32, 48); put(94, 11 * 528, 90); put(36, 3 * 528, 52)
    cm2(56, 56, 40, 44); cm2(36, 36, 32, 48); put(56, 12 * 528, 90); put(36, 4 * 528, 52)
    cm2(94, 56, 86, 44); cm2(36, 36, 32, 48); put(94, 13 * 528, 90); put(36, 5 * 528, 52)
    cm2(56, 56, 40, 44); cm2(36, 36, 32, 48); put(56, 14 * 528, 90); put(36, 6 * 528, 52)
    cm2(94, 56, 86, 44); cm2(36, 36, 32, 48); put(94, 15 * 528, 90); put(36, 7 * 528, 52)
    for row in range(16, 21):
        cm2(56, 56, 40, 44); put(56, row * 528, 52 + 2 * (row & 1))
    a.i("v_mov_b32 v48, s56"); a.i(f"s_lshl_b32 s5, s22, 2"); a.i("v_mov_b32 v49, s5")
    a.i(f"ds_write_b32 v49, v48 offset:{0}") if False else None
    a.i(f"v_add_u32 v49, {SCL_OFF}, v49"); a.i("s_mov_b64 exec, 1"); a.i("ds_write_b32 v49, v48"); a.i("s_mov_b64 exec, -1")
    a.raw("kb_join:")
    a.i("s_waitcnt lgkmcnt(0)"); a.ds_done = a.ds
    a.i("s_barrier")
    dg.mark("tables")
    part(P_B)
    def fr(k):
        b = 96 + 12 * (k % 4)
        a.dsop(f"ds_read_b128 v[{b}:{b+3}], v153 offset:{k*64}")
        a.dsop(f"ds_read_b128 v[{b+4}:{b+7}], v153 offset:{k*64 + 16*528}")
        return a.dsop(f"ds_read_b128 v[{b+8}:{b+11}], v154 offset:{k*64}")
    ids = {k: fr(k) for k in range(4)}
    a.i("s_lshl_b32 s5, s22, 2"); a.i(f"s_add_u32 s5, s5, {SCL_OFF}"); a.i("v_mov_b32 v15, s5")
    a.dsop("ds_read_b32 v15, v15")
    XN = []
    pool = list(range(84, 96)) + list(range(60, 64))
    def unp(d, s_): XN.extend([f"v_lshlrev_b32 v{d}, 16, v{s_}", f"v_and_b32 v{d+1}, 0xffff0000, v{s_}"])
    for k in range(4): XN.append(f"v_rcp_f32 v{52+2*k}, v{181+2*k}")
    for pr in range(2):
        KH = [(k, h) for k in (2*pr, 2*pr+1) for h in range(2)]
        def e(k, h): return pool[8*(k % 2) + 2*h]
        def q(k, h): return pool[8*(k % 2) + 4 + 2*h]
        def P(r): return f"v[{r}:{r+1}]"
        for k, h in KH: unp(e(k, h), 172 + 2*k + h)
        for k, h in KH: XN.append(f"v_pk_add_f32 {P(e(k,h))}, {P(e(k,h))}, {P(180+2*k)} op_sel:[0,0] op_sel_hi:[1,0] neg_lo:[0,1] neg_hi:[0,1]")
        for k, h in KH: XN.append(f"v_cvt_pk_bf16_f32 v{18+4*k+h}, v{e(k,h)}, v{e(k,h)+1}")
        for k, h in KH: unp(e(k, h), 18 + 4*k + h)
        for k, h in KH: XN.append(f"v_pk_mul_f32 {P(q(k,h))}, {P(e(k,h))}, {P(52+2*k)} op_sel:[0,0] op_sel_hi:[1,0]")
        for k, h in KH: XN.append(f"v_pk_fma_f32 {P(e(k,h))}, {P(q(k,h))}, {P(180+2*k)}, {P(e(k,h))} op_sel:[0,1,0] op_sel_hi:[1,1,1] neg_lo:[1,0,0] neg_hi:[1,0,0]")
        for k, h in KH: XN.append(f"v_pk_fma_f32 {P(q(k,h))}, {P(e(k,h))}, {P(52+2*k)}, {P(q(k,h))} op_sel:[0,0,0] op_sel_hi:[1,0,1]")
        for k, h in KH: XN.append(f"v_cvt_pk_bf16_f32 v{18+4*k+h}, v{q(k,h)}, v{q(k,h)+1}")
        for k, h in KH: unp(e(k, h), 18 + 4*k + h)
        for c in range(4): XN.append(f"v_cvt_pk_f16_f32 v{32+4*pr+c}, v{e(2*pr, c//2) + c%2}, v{e(2*pr+1, c//2) + c%2}")
    def xn(n):
        for _ in range(n):
            if XN: a.i(XN.pop(0))
    a.wait_vm(xs)
    xn(XN0)
    for k in range(8):
        b = 96 + 12 * (k % 4)
        a.wait_ds(ids[k])
        c0 = "0" if k == 0 else "v[40:43]"; c1 = "0" if k == 0 else "v[44:47]"
        a.i(f"v_mfma_f32_16x16x32_f16 v[40:43], v[{b}:{b+3}], v[{b+8}:{b+11}], {c0}")
        a.i(f"v_mfma_f32_16x16x32_f16 v[44:47], v[{b+4}:{b+7}], v[{b+8}:{b+11}], {c1}")
        if len(XN) < 4: a.nop(4 - len(XN))
        xn(4)
        if k + 4 < 8: ids[k + 4] = fr(k + 4)
        if k == 3: xn(XN1)
        if GP + k < 5: gaddr(GP + k)
    if len(XN) < 10: a.nop(10 - len(XN))
    xn(10)
    a.i("v_cvt_pk_f16_f32 v48, v40, v41"); a.i("v_cvt_pk_f16_f32 v49, v42, v43")
    a.i("v_cvt_pk_f16_f32 v50, v44, v45"); a.i("v_cvt_pk_f16_f32 v51, v46, v47")
    a.dsop("ds_write_b32 v150, v48"); a.dsop("ds_write_b32 v151, v49")
    a.dsop("ds_write_b16 v152, v50"); a.dsop("ds_write_b16_d16_hi v152, v50 offset:64")
    a.dsop("ds_write_b16 v152, v51 offset:128"); a.dsop("ds_write_b16_d16_hi v152, v51 offset:192")
    xn(8)
    a.i("s_waitcnt lgkmcnt(0)"); a.ds_done = a.ds
    a.i("s_barrier")
    dg.mark("T")
    a.i("s_cmp_eq_u32 s23, 0"); a.i("s_cbranch_scc1 kb_g0")
    for e_ in range(19): a.i(f"ds_read_u16 v{96 + e_}, v{64+e_}")
    a.i("s_branch kb_g1")
    a.raw("kb_g0:")
    for e_ in range(3): a.i(f"ds_read_u16 v{96 + e_}, v64 offset:{2*e_}")
    a.i("ds_read_u16 v99, v65")
    a.raw("kb_g1:")
    a.ds += 1; gid = a.ds
    a.dsop("ds_write_b128 v161, v[144:147]"); a.dsop("ds_write_b128 v161, v[144:147] offset:1024")
    a.i("s_mov_b64 exec, 0xffff"); a.dsop("ds_write_b128 v162, v[144:147] offset:2048")
    a.i("s_mov_b64 exec, 1"); a.dsop("ds_write_b64 v163, v[144:145]")
    a.i("s_mov_b64 exec, 0x7f")
    a.dsop("ds_write_b128 v164, v[144:147] offset:4096"); a.dsop(f"ds_write_b128 v164, v[144:147] offset:{4096+CS}")
    a.i("s_mov_b64 exec, -1")
    part(P_C)
    xn(1000)
    for c in range(4):
        a.dsop(f"ds_write_b32 v165, v{32+c} offset:{c*UCH}"); a.dsop(f"ds_write_b32 v165, v{32+c} offset:{c*UCH + U1 + 8}")
    a.wait_ds(gid)
    a.i("s_cmp_eq_u32 s23, 0"); a.i("s_cbranch_scc1 kb_p0")
    for role in (1, 0):
        G = (lambda e: 96 + e) if role else (lambda e: 98 if e < 4 else 97 if e < 11 else 96 if e < 18 else 99)
        for c in range(4):
            for e_ in range(8): a.i(f"v_lshl_or_b32 v{64+8*c+e_}, v{G(2*e_+1+3-c)}, 16, v{G(2*e_+3-c)}")
            a.i(f"ds_write_b128 v160, v[{64+8*c}:{67+8*c}] offset:{c*CS}"); a.i(f"ds_write_b128 v160, v[{68+8*c}:{71+8*c}] offset:{c*CS+16}")
            a.i(f"ds_write_b32 v165, v{36+c} offset:{c*UCH + 64}"); a.i(f"ds_write_b32 v166, v{36+c} offset:{c*UCH + U1 + 8 + 64}")
        if role: a.i("s_branch kb_p1"); a.raw("kb_p0:")
    a.raw("kb_p1:")
    a.i("v_mov_b32 v12, v167"); a.i("v_mov_b32 v14, v168"); a.i("v_mov_b32 v13, v169"); a.i("v_mov_b32 v8, v170"); a.i("v_mov_b32 v5, v171")
    a.i("s_waitcnt lgkmcnt(0)"); a.ds_done = a.ds
    a.i("s_barrier")
    dg.mark("conv")
    def zoff(z): return (z // 64) * RS + (z % 64) * 2
    def loads(st):
        b = 64 + 16 * (st % 3)
        ya = (31 - st) * 32
        zb = 1024 + 56 - 16 * st
        a.dsop(f"ds_read_b128 v[{b}:{b+3}], v12 offset:{ya + 2048}")
        a.dsop(f"ds_read_b128 v[{b+4}:{b+7}], v14 offset:{zoff(zb)}")
        i1 = a.dsop(f"ds_read_b128 v[{b+8}:{b+11}], v14 offset:{zoff(zb + 1024)}")
        i2 = a.dsop(f"ds_read_b128 v[{b+12}:{b+15}], v12 offset:{ya}")
        return i1, i2
    F = []
    SU, TT_, XX = 112, 32, 48
    def rnd2(d0, d1, t, L=None):
        o = [f"v_cvt_pk_bf16_f32 v{t}, v{d0}, v{d1}", f"v_lshlrev_b32 v{d0}, 16, v{t}", f"v_and_b32 v{d1}, 0xffff0000, v{t}"]
        return o
    for k in range(2):
        F += [f"s_lshl_b32 s{56+2*k}, s{16+k}, 16", f"s_and_b32 s{57+2*k}, s{16+k}, 0xffff0000", f"s_lshl_b32 s{60+2*k}, s{18+k}, 16", f"s_and_b32 s{61+2*k}, s{18+k}, 0xffff0000"]
    for k in range(4):
        for c in range(4):
            sh = "v_lshlrev_b32 v{d}, 16, v{s}" if c % 2 == 0 else "v_and_b32 v{d}, 0xffff0000, v{s}"
            F.append(sh.format(d=TT_ + 4*k + c, s=18 + 4*k + c // 2))
            F.append(sh.format(d=XX + 4*k + c, s=172 + 2*k + c // 2))
    for k in range(16): F.append(f"v_mul_f32 v{TT_+k}, s{56 + k % 4}, v{TT_+k}")
    def rnd_all(base):
        o = []
        for g in range(2):
            tr_ = [rnd2(base + 8*g + 2*k, base + 8*g + 2*k + 1, 16 + k) for k in range(4)]
            for j in range(3): o += [t[j] for t in tr_]
        return o
    F += rnd_all(TT_)
    for s_ in range(1, 8):
        F.append(('vm', 2 * s_ + 1))
        for r in range(8):
            for hh in range(2):
                d = SU + 2*r + hh
                if s_ == 1: F.append(f"v_fma_mix_f32 v{d}, v{PB+r}, 1.0, v{PB+8+r} op_sel:[{hh},0,{hh}] op_sel_hi:[1,0,1]")
                else: F.append(f"v_fma_mix_f32 v{d}, v{PB+8*s_+r}, 1.0, v{d} op_sel:[{hh},0,0] op_sel_hi:[1,0,0]")
    F += rnd_all(SU)
    for k in range(16): F.append(f"v_add_f32 v{SU+k}, s{60 + k % 4}, v{SU+k}")
    F += rnd_all(SU)
    def fill(n):
        while n > 0 and F:
            f = F.pop(0)
            if isinstance(f, tuple): a.wait_vm(pid[f[1]])
            else: a.i(f); n -= 1
    ld = {0: loads(0), 1: loads(1)}
    for st in range(32):
        b = 64 + 16 * (st % 3)
        if st + 2 < 32: ld[st + 2] = loads(st + 2)
        a.wait_ds(ld[st][0])
        c0 = "0" if st == 0 else "v[128:143]"; c1 = "0" if st == 0 else "v[144:159]"
        nf = F_N if st >= F_S else (3 if any(isinstance(f, tuple) for f in F[12:]) and not any(isinstance(f, tuple) for f in F[:12]) else 0)
        a.i(f"v_mfma_f32_32x32x16_f16 v[128:143], v[{b}:{b+3}], v[{b+4}:{b+7}], {c0}")
        fill(nf)
        a.i(f"v_mfma_f32_32x32x16_f16 v[144:159], v[{b}:{b+3}], v[{b+8}:{b+11}], {c1}")
        part(P_D)
        fill(nf)
        a.wait_ds(ld[st][1])
        a.i(f"v_mfma_f32_32x32x16_f16 v[144:159], v[{b+12}:{b+15}], v[{b+4}:{b+7}], v[144:159]")
        fill(nf)
    dg.mark("convend")
    a.i(f"s_lshl_b32 s6, s20, 12"); a.i(f"s_add_u32 s6, s6, {SC_OFF}"); a.i("v_add_u32 v9, s6, v8")
    a.i("s_xor_b32 s7, s20, 4"); a.i("s_lshl_b32 s7, s7, 12"); a.i(f"s_add_u32 s7, s7, {SC_OFF}"); a.i("v_add_u32 v10, s7, v8")
    a.i("v_bfe_u32 v11, v2, 1, 4"); a.i("v_lshlrev_b32 v11, 7, v11")
    a.i("v_and_b32 v12, 1, v2"); a.i("v_lshl_add_u32 v11, v12, 3, v11")
    a.i("v_lshl_add_u32 v11, v13, 4, v11")
    a.i(f"s_mul_i32 s6, s22, {YS}"); a.i("s_lshl_b32 s7, s23, 11"); a.i("s_add_u32 s6, s6, s7"); a.i("v_add_u32 v11, s6, v11")
    a.i("v_lshlrev_b32 v12, 1, v5")
    a.i("v_mul_u32_u24 v13, 1152, v5"); a.i("s_lshl_b32 s6, s21, 3")
    a.i("v_mov_b32 v14, v15")
    a.nop(4)
    a.i("s_cmp_eq_u32 s23, 0"); a.i("s_cbranch_scc1 kb_mu0")
    def xch(send, keep):
        for k in range(4): a.i(f"ds_write_b128 v9, v[{send+4*k}:{send+3+4*k}] offset:{k*1024}")
        a.i("s_waitcnt lgkmcnt(0)")
        a.i("s_barrier")
        for k in range(4): a.i(f"ds_read_b128 v[{176+4*k}:{179+4*k}], v10 offset:{k*1024}")
        for k in range(4):
            a.i(f"s_waitcnt lgkmcnt({3-k})")
            for h in range(2): a.i(f"v_pk_add_f32 v[{160+4*k+2*h}:{161+4*k+2*h}], v[{keep+4*k+2*h}:{keep+1+4*k+2*h}], v[{176+4*k+2*h}:{177+4*k+2*h}]")
    xch(128, 144)
    a.i("s_branch kb_j")
    a.raw("kb_mu0:")
    xch(144, 128)
    a.raw("kb_j:")
    for k in range(8): a.i(f"v_pk_mul_f32 v[{160+2*k}:{161+2*k}], v[{160+2*k}:{161+2*k}], v[14:15]")
    for k in range(8): a.i(f"v_cvt_pk_bf16_f32 v{176+k}, v{160+2*k}, v{161+2*k}")
    for k in range(4): a.i(f"ds_write_b64 v11, v[{176+2*k}:{177+2*k}] offset:{32*k}")
    dg.mark("ywr")
    fill(1000)
    a.i("s_waitcnt lgkmcnt(0)")
    a.i("s_barrier")
    dg.mark("yb")
    for c in range(4):
        a.i(f"ds_read_b32 v{152+2*c}, v12 offset:{c*YS}")
        a.i(f"ds_read_b32 v{153+2*c}, v12 offset:{c*YS + 64}")
    a.i("s_waitcnt lgkmcnt(0)")
    Y = 128
    for pr in range(2):
        for u in range(2):
            for c in range(4):
                shy = "v_lshlrev_b32 v{d}, 16, v{s}" if u == 0 else "v_and_b32 v{d}, 0xffff0000, v{s}"
                a.i(shy.format(d=Y + 8*pr + 4*u + c, s=152 + 2*c + pr))
        def padd(src):
            for k in range(4*pr, 4*pr + 4): a.i(f"v_pk_add_f32 v[{Y+2*k}:{Y+2*k+1}], v[{Y+2*k}:{Y+2*k+1}], v[{src(k)}:{src(k)+1}]")
        padd(lambda k: TT_ + 2*k)
        for f in rnd_all(Y)[12*pr:12*pr+12]: a.i(f)
        padd(lambda k: XX + 2*k)
        for f in rnd_all(Y)[12*pr:12*pr+12]: a.i(f)
        padd(lambda k: SU + 8 * ((k // 2) % 2) + 4 * (k // 4) + 2 * (k % 2))
        for u in range(2):
            k = 2*pr + u
            a.i(f"v_cvt_pk_bf16_f32 v{172+2*k}, v{Y+4*k}, v{Y+4*k+1}"); a.i(f"v_cvt_pk_bf16_f32 v{173+2*k}, v{Y+4*k+2}, v{Y+4*k+3}")
            a.i(f"s_add_u32 s7, s6, {(32*pr + u) * 1152}")
            a.i(f"buffer_store_dwordx2 v[{172+2*k}:{173+2*k}], v13, s[{sOUT}:{sOUT+3}], s7 offen")
    a.raw("; SCOUTEND")
    dg.mark("st")
    dg.dump(48, 20, 8, 28)
    a.raw("kb_end:")
    a.i("s_endpgm")
    return a.text(), kd(name, 256, 256)
```

```python
from common import *
import math, os
NR = int(os.environ.get('NR', '10'))
RING = NR * 2048
XH = 73728
BIAS_OFF = XH + 4 * RING
K2_LDS = BIAS_OFF + 2304
R1, R2, R3 = 64, 128, 192
C0 = -2.0 * math.sqrt(2.0 / math.pi) * math.log2(math.e)
C1 = C0 * 0.044715
DP = int(os.environ.get('DP', '2')); DT = int(os.environ.get('DT', '4'))
ND0 = int(os.environ.get('ND0', '3'))
MAP2 = int(os.environ.get('MAP2', '1')); PF1AT = int(os.environ.get('PF1AT', '3')); PF2AT = int(os.environ.get('PF2AT', '3')); PF2S = int(os.environ.get('PF2S', '3'))
DM = int(os.environ.get('DM', '1')); XB = int(os.environ.get('XB', '3')); XE = int(os.environ.get('XE', '20'))
PT = int(os.environ.get('PT', '1'))
PPA = int(os.environ.get('PPA', '1'))
NB = int(os.environ.get('NB', '0'))
SW = int(os.environ.get('SW', '0'))
NA = int(os.environ.get('NA', '14'))
SLOTS = int(os.environ.get('SLOTS', '7'))
vW1 = {0: (4, 5), 1: (6, 7)}; vW2 = (8, 9)
vT = {1: (10, 11), 2: (12, 13)}
vX = (14, 15, 16, 17); vHo = (18, 19, 20, 21)
vS, vHw, vP = 22, 23, 25
vSt = (26, 30); vC0p = (0, 1); vC1p = (2, 24)
sSw, sSr = 62, 63
XT_OFF = XF_OFF; ST_OFF = XU_OFF
sX = 96 + 0; sDl = (97, 98, 99)
GT = 32
PK = 48
sW1, sW2, sWS, sB1 = 8, 12, 16, 20
sK1 = (24, 25, 26, 27); sA2 = {0: (28, 29, 30, 31), 1: (56, 57, 58, 59)}; sB2 = (32, 33, 34, 35)
sO1, sB2o, sP, sPo, sRing, sOff, sQ, sTmp = 36, 38, 39, 40, 41, 42, 43, 44
sA2o = {0: 37, 1: 60}; sBit = 61

def breg(phase, sigma, tt):
    if phase == 1:
        n = sigma * 2 + tt
        if n < 56: return f"a[{4*n}:{4*n+3}]"
        b = R3 + 4 * (n - 56); return f"v[{b}:{b+3}]"
    kind, k = sigma
    n = 2 * k + tt
    if kind == 's1': return f"a[{4*n}:{4*n+3}]"
    if n < 16: return f"a[{160+4*n}:{160+4*n+3}]"
    b = R2 + 4 * (n - 16); return f"v[{b}:{b+3}]"

class Item:
    __slots__ = ("cost", "fn", "deps", "key", "fence", "at")
    def __init__(s, cost, fn, deps, key, fence): s.cost, s.fn, s.deps, s.key, s.fence, s.at = cost, fn, deps, key, fence, None

def gen(code_pf_bytes):
    a = Asm(); name = "ka_kernel"
    header(a, name)
    a.i("s_cmp_ge_u32 s2, 256"); a.i("s_cbranch_scc1 ka_end")
    dg = Diag(a, 1); dg.start(); dg.mark("start")
    a.i("s_load_dwordx2 s[100:101], s[0:1], 0")
    a.i("s_load_dwordx4 s[48:51], s[0:1], 80")
    a.i("s_load_dwordx2 s[52:53], s[0:1], 96")
    a.i("s_load_dwordx2 s[54:55], s[0:1], 128")
    a.i("v_lshrrev_b32 v1, 6, v0"); a.i("v_and_b32 v2, 63, v0")
    a.i(f"v_readfirstlane_b32 s{sQ}, v1")
    a.i("s_getpc_b64 s[46:47]")
    a.raw("ka_pc:")
    a.i("s_lshr_b32 s5, s2, 3"); a.i("s_lshl_b32 s5, s5, 2"); a.i(f"s_add_u32 s5, s5, s{sQ}"); a.i("s_lshl_b32 s5, s5, 12")
    a.i("v_lshl_add_u32 v44, v2, 6, s5"); a.i("v_min_u32 v44, k_code_end-ka_pc, v44")
    a.i("v_mov_b32 v73, s47"); a.i("v_add_co_u32 v72, vcc, s46, v44"); a.i("s_nop 1"); a.i("v_addc_co_u32 v73, vcc, 0, v73, vcc")
    a.vmem("global_load_dword v68, v[72:73], off")
    if MAP2:
        a.i("s_and_b32 s3, s2, 3"); a.i("s_lshl_b32 s3, s3, 1"); a.i("s_bfe_u32 s4, s2, 0x10003"); a.i("s_add_u32 s3, s3, s4")
        a.i("s_bfe_u32 s4, s2, 0x10002"); a.i("s_lshl_b32 s4, s4, 4"); a.i("s_lshr_b32 s5, s2, 4"); a.i("s_add_u32 s4, s4, s5")
    else:
        a.i("s_and_b32 s3, s2, 7"); a.i("s_lshr_b32 s4, s2, 3")
    a.i(f"s_and_b32 s{sBit}, s4, {0 if NB else 1}"); a.i("s_and_b32 s96, s4, 15")
    if SW: a.i("s_and_b32 s96, s4, 3"); a.i(f"s_lshl_b32 s5, s{sQ}, 2"); a.i("s_add_u32 s96, s96, s5")
    a.i("v_lshlrev_b32 v3, 4, v2")
    RX = 128
    if PT & 1:
        a.i("s_lshr_b32 s5, s2, 3"); a.i("s_lshl_b32 s5, s5, 2"); a.i(f"s_add_u32 s5, s5, s{sQ}")
        a.i("s_mul_i32 s6, s5, 43"); a.i("s_lshr_b32 s6, s6, 8"); a.i("s_mul_i32 s7, s6, 6"); a.i("s_sub_u32 s5, s5, s7")
        a.i("s_lshl_b32 s5, s5, 3"); a.i("s_add_u32 s5, s5, 8"); a.i("s_load_dwordx2 s[94:95], s[0:1], s5")
        a.i("s_mul_i32 s7, s6, 86"); a.i("s_lshr_b32 s7, s7, 8"); a.i("s_mul_i32 s7, s7, 3"); a.i("s_sub_u32 s6, s6, s7"); a.i("s_mul_i32 s6, s6, 48")
        a.i("v_min_u32 v74, 47, v2"); a.i("v_add_u32 v74, s6, v74")
        a.i("s_and_b32 s5, s2, 7"); a.i("s_lshl_b32 s6, s5, 14"); a.i("s_lshl_b32 s5, s5, 11"); a.i(f"s_add_u32 s5, s5, {512*256 - 128*128}")
        a.i("v_cmp_gt_u32 vcc, 128, v74"); a.i("v_mov_b32 v75, s5"); a.i("v_mov_b32 v76, s6")
        a.i("v_cndmask_b32 v75, v75, v76, vcc"); a.i("v_lshl_add_u32 v74, v74, 7, v75")
    a.i(f"s_lshl_b32 s5, s4, 6"); a.i(f"s_lshl_b32 s6, s{sQ}, 4"); a.i("s_add_u32 s5, s5, s6"); a.i("s_mul_i32 s5, s5, 1152")
    a.i("v_lshrrev_b32 v32, 3, v2"); a.i("v_and_b32 v33, 7, v2")
    a.i("v_mul_u32_u24 v34, 1152, v32"); a.i("v_lshl_add_u32 v34, v33, 4, v34"); a.i("v_add_u32 v34, s5, v34"); a.i(f"v_add_u32 v35, {8*1152}, v34")
    a.i("s_waitcnt lgkmcnt(0)")
    xl = {}
    for p in range(2):
        for i in range(9):
            xl[(p, i)] = a.vmem(f"global_load_dwordx4 v[{RX+36*p+4*i}:{RX+36*p+4*i+3}], v{34+p}, s[100:101] offset:{128*i}")
    a.i("s_mul_i32 s7, s3, 1152")
    a.i(f"s_lshl_b32 s{sTmp}, s{sQ}, 8")
    a.i(f"s_lshl_b32 s46, s{sBit}, 7")
    a.i(f"s_mul_i32 s47, s{sBit}, {64*1152}")
    for g in range(4):
        a.i(f"s_add_u32 s5, s{sQ}, {g}"); a.i("s_and_b32 s5, s5, 3")
        a.i(f"s_mul_i32 s{sK1[g]}, s5, {144*9216}"); a.i(f"s_add_u32 s{sK1[g]}, s{sK1[g]}, s7")
        a.i("s_mul_i32 s6, s3, 663552")
        a.i(f"s_mul_i32 s{sA2[1][g]}, s5, {128*1152}"); a.i(f"s_add_u32 s{sA2[1][g]}, s{sA2[1][g]}, s6")
        a.i(f"s_add_u32 s{sA2[0][g]}, s{sA2[1][g]}, s47")
        a.i(f"s_sub_u32 s{sA2[1][g]}, s{sA2[1][g]}, s47"); a.i(f"s_add_u32 s{sA2[1][g]}, s{sA2[1][g]}, {64*1152}")
        a.i(f"s_mul_i32 s{sB2[g]}, s5, {16*1152}"); a.i(f"s_add_u32 s{sB2[g]}, s{sB2[g]}, s6"); a.i(f"s_add_u32 s{sB2[g]}, s{sB2[g]}, {512*1152}")
        if g > 0: a.i("s_cmp_eq_u32 s5, 0"); a.i(f"s_cselect_b32 s{sDl[g-1]}, -3, 1"); a.i(f"s_mul_i32 s{sDl[g-1]}, s{sDl[g-1]}, 9216")
        a.i("s_lshl_b32 s6, s5, 10"); a.i("s_add_u32 s6, s6, 32768"); a.i(f"v_add_u32 v{vHo[g]}, s6, v3")
    for d, s_ in ((sO1, sK1[0]), (sA2o[0], sA2[0][0]), (sA2o[1], sA2[1][0]), (sB2o, sB2[0])):
        a.i(f"s_add_u32 s{d}, s{s_}, 1024"); a.i(f"s_sub_u32 s{d}, s{d}, s{sTmp}")
    a.i(f"s_sub_u32 s{sO1}, s{sO1}, s46")
    a.i(f"s_mul_i32 s{sRing}, s{sQ}, {RING}"); a.i(f"s_add_u32 s{sRing}, s{sRing}, {XH}")
    a.i("v_lshrrev_b32 v32, 3, v2")
    a.i("v_bfe_u32 v33, v2, 4, 1"); a.i("v_lshlrev_b32 v33, 2, v33")
    a.i("v_and_b32 v34, 7, v2"); a.i("v_xor_b32 v33, v33, v34")
    a.i(f"v_lshl_add_u32 v33, v33, 4, s{sTmp}")
    a.i(f"v_mul_u32_u24 v34, 9216, v32"); a.i("v_add_u32 v34, v34, v33")
    a.i(f"v_add_u32 v{vW1[0][0]}, s46, v34"); a.i(f"v_add_u32 v{vW1[0][1]}, {8*9216-1024}, v{vW1[0][0]}")
    a.i(f"v_xor_b32 v{vW1[1][0]}, 128, v{vW1[0][0]}"); a.i(f"v_add_u32 v{vW1[1][1]}, {8*9216-1024}, v{vW1[1][0]}")
    a.i(f"v_mul_u32_u24 v{vW2[0]}, 1152, v32"); a.i(f"v_add_u32 v{vW2[0]}, v{vW2[0]}, v33")
    a.i(f"v_add_u32 v{vW2[1]}, {8*1152-1024}, v{vW2[0]}")
    srd(a, sWS, 54, WS_BYTES); srd(a, sW1, 48, 5308416); srd(a, sW2, 52, 5308416); srd(a, sB1, 50, 9216)

    steps = []
    def add(ph, vo, sbase, imm, sigma, acc, cinit, tag):
        steps.append(dict(ph=ph, vo=vo, sbase=sbase, imm=imm, sigma=sigma, acc=acc, cinit=cinit, tag=tag))
    for i in range(9): add(1, vW1[0], sO1, i * 16 * 9216, i, R2, None, ('O1', i))
    for p, acc in ((0, R1), (1, R2)):
        for sg in range(36):
            add(1, vW1[p], sK1[sg // 9], (sg % 9) * 16 * 9216, sg, acc, None, ('P%d' % p, sg))
    def gi2(n): return ((n % 8) // 2, 2 * (n // 8) + n % 2)
    def s1(n):
        g, i = divmod(n, 5)
        return (sA2[0][g], i * 16 * 1152) if i < 4 else (sB2[g], 0)
    def s2(n):
        g, i = gi2(n); return (sA2[1][g], i * 16 * 1152)
    def adds1(p, acc, rng):
        for n in rng:
            sb, im = s1(n); add(2, vW2, sb, im + 128 * p, ('s1', n), acc, 'zero' if n == 0 else None, ('D%ds1' % p, n))
    adds1(0, R1, range(20)); adds1(1, R3, range(NA))
    for n in range(16):
        sb, im = s2(n); add(2, vW2, sb, im, ('s2', n), R1, None, ('D0s2', n))
    adds1(1, R3, range(NA, 20))
    for n in range(16):
        sb, im = s2(n); add(2, vW2, sb, im + 128, ('s2', n), R3, None, ('D1s2', n))
    odd2 = [(sA2o[0], i * 16 * 1152, ('s1', i)) for i in range(4)] + [(sB2o, 0, ('s1', 4))] + [(sA2o[1], i * 16 * 1152, ('s2', (i // 2) * 8 + i % 2)) for i in range(4)]
    for i, (sb, im, sg) in enumerate(odd2): add(2, vW2, sb, im, sg, R1, 'zero' if i == 0 else None, ('O2', i))
    NS = len(steps); assert NS == 162
    dma_id = {}
    def dma(k):
        st = steps[k]
        srdr = sW1 if st['ph'] == 1 else sW2
        va, vb = st['vo']
        a.i(f"s_add_u32 m0, s{sRing}, {(k % NR) * 2048}")
        a.i(f"s_add_u32 s{sOff}, s{st['sbase']}, {st['imm']}")
        a.vmem(f"buffer_load_dwordx4 v{va}, s[{srdr}:{srdr+3}], s{sOff} offen lds")
        dma_id[k] = a.vmem(f"buffer_load_dwordx4 v{vb}, s[{srdr}:{srdr+3}], s{sOff} offen offset:1024 lds")
    a.i("v_lshrrev_b32 v36, 5, v2"); a.i("v_and_b32 v37, 31, v2"); a.i("v_lshlrev_b32 v37, 1, v37"); a.i("v_lshl_add_u32 v36, v36, 14, v37")
    a.i(f"s_lshl_b32 s5, s{sQ}, 14"); a.i("s_add_u32 s5, s5, 1024"); a.i("s_add_u32 s5, s5, s7"); a.i("v_add_u32 v53, s5, v36")
    a.i(f"s_add_u32 s5, s{sTmp}, s46"); a.i("v_add_u32 v54, s5, v36"); a.i("v_xor_b32 v55, 128, v54"); a.i("v_add_u32 v54, s7, v54"); a.i("v_add_u32 v55, s7, v55")
    ids = {}
    LATE = []
    for k in range(ND0): dma(k)
    a.raw('; SCOUT')
    for k in range(ND0, NR): LATE.append(lambda k=k: dma(k))
    for n in range(6):
        LATE.append(lambda n=n: ids.__setitem__('b', a.vmem(f"buffer_load_ushort v{228+n}, v{53 + n // 2}, s[{sB1}:{sB1+3}], 0 offen offset:{64 * (n % 2)}")))
    a.i("s_lshl_b32 s5, s4, 6"); a.i("v_add_u32 v52, s5, v2"); a.i("v_mul_u32_u24 v56, 1152, v52")
    a.i("s_mul_i32 s5, s3, 144"); a.i("v_add_u32 v56, s5, v56"); a.i(f"s_lshl_b32 s5, s{sQ}, 4"); a.i("v_add_u32 v57, s5, v56")
    XTL = [lambda: a.vmem("global_load_dwordx4 v[216:219], v57, s[100:101]"), lambda: a.vmem("global_load_dwordx4 v[220:223], v57, s[100:101] offset:64"),
           lambda: ids.__setitem__('xt', a.vmem("global_load_dwordx4 v[224:227], v56, s[100:101] offset:128"))]
    NPF = 2; CH = 81; assert MAP2
    a.i(f"s_and_b32 s5, s4, {15 if MAP2 else 31}"); a.i("s_lshl_b32 s5, s5, 2"); a.i(f"s_add_u32 s5, s5, s{sQ}"); a.i(f"s_mul_i32 s6, s5, {CH}")
    a.i("s_mul_i32 s45, s3, 663552")
    for j in range(NPF):
        a.i(f"v_add_u32 v43, {64*j}, v2"); a.i(f"v_min_u32 v43, {CH-1}, v43"); a.i("v_add_u32 v43, s6, v43")
        a.i("v_mul_u32_u24 v44, 7282, v43"); a.i("v_lshrrev_b32 v44, 16, v44")
        a.i(f"v_mul_u32_u24 v44, {9216 - 18*64}, v44"); a.i("v_lshlrev_b32 v43, 7, v43"); a.i(f"v_add3_u32 v{69+j}, v44, v43, s7"); a.i(f"v_add_u32 v{58+j}, s45, v43")
    if NB:
        a.i("s_mul_i32 s6, s5, 36"); a.i("v_min_u32 v43, 35, v2"); a.i("v_add_u32 v43, s6, v43")
        a.i("v_lshrrev_b32 v44, 2, v43"); a.i("v_mul_u32_u24 v44, 9216, v44"); a.i("v_and_b32 v43, 3, v43"); a.i("v_lshlrev_b32 v43, 8, v43")
        a.i("v_add3_u32 v60, v44, v43, s7"); a.i("v_mov_b32 v69, v60")
    PF1 = [lambda j=j: ids.__setitem__('pf', a.vmem(f"buffer_load_dword v{64+j}, v{69+j}, s[{sW1}:{sW1+3}], 0 offen")) for j in range(1 if NB else NPF)]
    nb = NR - ND0
    LATE = LATE[:nb] + [lambda k=k, L=LATE: (L[nb + 2*k](), L[nb + 2*k + 1]()) for k in range(3)]
    if PF1AT == 0: LATE = LATE + XTL + PF1
    elif PF1AT == 1: LATE = LATE + PF1 + XTL
    elif PF1AT == 2: LATE = PF1 + LATE + XTL
    else: LATE = LATE[:nb] + PF1 + LATE[nb:]
    if PF1AT < 3: XTL = []
    def pf2():
        for j in range(NPF): ids['pf2'] = a.vmem(f"buffer_load_dword v{61+j}, v{58+j}, s[{sW2}:{sW2+3}], 0 offen")
    PF2T = {0: 'sum', 1: 'ln1', 2: ('P0', 4), 3: None}[PF2AT]
    a.i("v_lshrrev_b32 v32, 5, v2")
    a.i("v_bfe_u32 v33, v2, 2, 2")
    a.i("v_bfe_u32 v34, v2, 4, 1"); a.i("v_lshlrev_b32 v34, 5, v34")
    a.i("v_and_b32 v36, 3, v2"); a.i("v_lshl_add_u32 v34, v36, 3, v34")
    a.i("v_lshl_add_u32 v34, v33, 7, v34"); a.i(f"v_add_u32 v34, s{sRing}, v34")
    a.i("v_bfe_u32 v36, v2, 3, 1"); a.i("v_lshlrev_b32 v36, 6, v36")
    a.i("v_xor_b32 v37, 64, v36")
    a.i("v_lshl_add_u32 v40, v32, 10, v34")
    a.i(f"v_add_u32 v{vT[1][0]}, v40, v36"); a.i(f"v_add_u32 v{vT[1][1]}, v40, v37")
    a.i("v_lshl_add_u32 v40, v32, 9, v34")
    a.i(f"v_add_u32 v{vT[2][0]}, v40, v36"); a.i(f"v_add_u32 v{vT[2][1]}, v40, v37")
    a.i(f"s_lshr_b32 s5, s{sQ}, 1"); a.i(f"s_lshl_b32 s6, s{sQ}, 4"); a.i("s_lshl_b32 s7, s5, 2"); a.i("s_add_u32 s6, s6, s7"); a.i("s_lshl_b32 s6, s6, 10")
    a.i(f"s_mov_b32 s{sSw}, s6")
    a.i(f"s_and_b32 s6, s{sQ}, 1"); a.i("s_lshl_b32 s6, s6, 1"); a.i("s_lshl_b32 s7, s5, 3"); a.i("s_add_u32 s6, s6, s7")
    a.i(f"s_lshl_b32 s{sSr}, s6, 10")
    a.i("v_bfe_u32 v33, v2, 1, 4"); a.i("v_and_b32 v36, 1, v2"); a.i("v_lshlrev_b32 v33, 4, v33"); a.i("v_lshl_add_u32 v33, v36, 8, v33"); a.i(f"v_lshl_add_u32 v{vP}, v32, 17, v33")
    a.i(f"s_lshl_b32 s7, s{sQ}, 13"); a.i(f"v_add_u32 v{vHw}, s7, v3")
    a.i(f"s_add_u32 s7, s{sTmp}, s3"); a.i("s_lshl_b32 s7, s7, 14"); a.i("s_lshl_b32 s45, s4, 9"); a.i(f"s_add_u32 s45, s45, {PART_OFF}")
    a.i(f"s_add_u32 s{sP}, s7, s45")
    a.i(f"s_lshl_b32 s7, s{sQ}, 2"); a.i("s_add_u32 s7, s7, 128"); a.i("s_lshl_b32 s7, s7, 3"); a.i("s_add_u32 s7, s7, s3"); a.i("s_lshl_b32 s7, s7, 14")
    a.i(f"s_add_u32 s{sPo}, s7, s45")
    a.i("v_and_b32 v33, 31, v2"); a.i(f"s_mul_i32 s7, s{sQ}, 9216"); a.i("v_lshl_add_u32 v34, v32, 9, s7")
    for c in range(4):
        a.i(f"s_add_u32 s5, s{sQ}, {c}"); a.i("s_and_b32 s5, s5, 3"); a.i("s_lshl_b32 s5, s5, 1")
        a.i("v_add_u32 v36, s5, v32"); a.i("v_xor_b32 v36, v36, v33"); a.i(f"v_lshl_add_u32 v{vX[c]}, v36, 4, v34")
    a.i(f"v_lshlrev_b32 v46, 2, v33"); a.i(f"v_add_u32 v46, {BIAS_OFF}, v46")
    a.i("v_lshrrev_b32 v32, 3, v2"); a.i("v_and_b32 v33, 7, v2")
    a.i(f"s_lshr_b32 s5, s{sQ}, 1"); a.i("s_mul_i32 s5, s5, 36864"); a.i(f"s_and_b32 s6, s{sQ}, 1"); a.i("s_lshl_b32 s6, s6, 8"); a.i("s_add_u32 s5, s5, s6")
    a.i("v_xor_b32 v34, v32, v33"); a.i("v_lshl_add_u32 v34, v34, 4, s5"); a.i("v_lshl_add_u32 v47, v33, 9, v34")
    a.i(f"s_lshl_b32 s5, s{sQ}, 6"); a.i(f"s_add_u32 s5, s5, {BIAS_OFF}"); a.i("v_lshl_add_u32 v48, v32, 2, s5")
    a.i("s_lshl_b32 s5, s4, 9"); a.i(f"s_lshl_b32 s6, s{sQ}, 7"); a.i("s_add_u32 s5, s5, s6"); a.i(f"s_add_u32 s5, s5, {ST_OFF}")
    a.i("v_lshl_add_u32 v49, v32, 3, s5")
    a.i("v_lshlrev_b32 v40, 3, v52"); a.i(f"s_mul_i32 s5, s3, {18*16384}"); a.i(f"s_add_u32 s5, s5, {XT_OFF}"); a.i("v_add_u32 v40, s5, v40")
    a.i(f"s_lshl_b32 s5, s{sQ}, 15"); a.i("v_add_u32 v41, s5, v40")
    for r in (27, 28, 29, 31): a.i(f"v_mov_b32 v{r}, 0")
    for r in range(240, 256):
        if r % 2 or r in (240, 254): a.i(f"v_accvgpr_write_b32 a{r}, 0")
    a.i("s_mov_b32 s5, 0x3f803f80"); a.i("s_mov_b32 s6, 0x00003f80"); a.i("s_mov_b32 s7, 0x3f800000")
    if PT & 1:
        ppf = lambda: ids.__setitem__('pf', a.vmem("global_load_dword v75, v74, s[94:95]"))
        if PPA == 0: LATE.append(ppf)
    if PT & 2:
        a.i("v_and_b32 v76, 31, v2"); a.i(f"v_lshl_add_u32 v76, v76, 17, s{sP}")
        a.i("v_and_b32 v77, 3, v2"); a.i(f"v_lshl_add_u32 v77, v77, 17, s{sPo}")
        a.i("v_cmp_gt_u32 vcc, 32, v2"); a.i("s_nop 1"); a.i("v_cndmask_b32 v76, v77, v76, vcc")
        PF1.append(0); LATE.insert(nb + NPF, lambda: ids.__setitem__('pf', a.vmem(f"buffer_load_dword v77, v76, s[{sWS}:{sWS+3}], 0 offen")))
    dg.mark("ln0")
    A = 32
    for p in range(2):
        for i in range(9):
            a.wait_vm(xl[(p, i)])
            for r in range(4):
                x = RX + 36*p + 4*i + r; h = r & 1
                c0 = "0" if (i == 0 and r < 2) else f"v{A+4*p+h}"; c1 = "0" if (i == 0 and r < 2) else f"v{A+4*p+2+h}"
                a.i(f"v_dot2_f32_bf16 v{A+4*p+h}, v{x}, s5, {c0}")
                a.i(f"v_dot2_f32_bf16 v{A+4*p+2+h}, v{x}, v{x}, {c1}")
            if LATE: LATE.pop(0)()
        if p == 1: dg.mark("sum")
        a.nop(3)
        a.i(f"v_add_f32 v{A+4*p}, v{A+4*p}, v{A+4*p+1}"); a.i(f"v_add_f32 v{A+4*p+2}, v{A+4*p+2}, v{A+4*p+3}")
        for dpp in ("quad_perm:[1,0,3,2]", "quad_perm:[2,3,0,1]", "row_half_mirror"):
            a.nop(1)
            for r in (A+4*p, A+4*p+2): a.i(f"v_add_f32_dpp v{r}, v{r}, v{r} {dpp} row_mask:0xf bank_mask:0xf")
        def both(f): a.i(f.format(m=A+4*p, s=A+4*p+1, v=A+4*p+2, t=A+4*p+3, u=50))
        both(f"v_mul_f32 v{{m}}, {fl(1.0/576)}, v{{m}}"); both(f"v_mul_f32 v{{v}}, {fl(1.0/576)}, v{{v}}")
        both("v_fma_f32 v{v}, -v{m}, v{m}, v{v}"); both("v_max_f32 v{v}, 0, v{v}")
        both("v_cvt_pk_bf16_f32 v{t}, v{m}, v{v}"); both("v_lshlrev_b32 v{m}, 16, v{t}"); both("v_and_b32 v{v}, 0xffff0000, v{t}")
        both("v_xor_b32 v{u}, 0x80000000, v{m}")
        ST = [f"v_add_f32 v{{v}}, {fl(1e-5)}, v{{v}}", "v_cvt_pk_bf16_f32 v{v}, v{v}, v{v}", "v_lshlrev_b32 v{v}, 16, v{v}", "v_sqrt_f32 v{s}, v{v}",
              "v_rcp_f32 v{t}, v{s}", "v_fma_f32 v{v}, -v{s}, v{s}, v{v}", "v_mul_f32 v{t}, 0.5, v{t}", "v_fmac_f32 v{s}, v{v}, v{t}",
              "v_cvt_pk_bf16_f32 v{s}, v{s}, v{s}", "v_lshlrev_b32 v{s}, 16, v{s}"]
        for i in range(9):
            t = 200 + 8 * (i & 1)
            for r in range(4):
                x = RX + 36*p + 4*i + r
                if DM == 0:
                    a.i(f"v_dot2_f32_bf16 v{t+2*r}, v{x}, s6, v50"); a.i(f"v_dot2_f32_bf16 v{t+2*r+1}, v{x}, s7, v50")
                else:
                    a.i(f"v_lshlrev_b32 v{t+2*r}, 16, v{x}"); a.i(f"v_and_b32 v{t+2*r+1}, 0xffff0000, v{x}")
            if DM:
                for r in range(4): a.i(f"v_pk_add_f32 v[{t+2*r}:{t+2*r+1}], v[{t+2*r}:{t+2*r+1}], v[50:51] op_sel_hi:[1,0]")
            both(ST.pop(0))
            if i == 8: both(ST.pop(0))
            if LATE: LATE.pop(0)()
            elif XTL and i % 3 == 2 and p == 1: XTL.pop(0)()
            for r in range(4):
                x = RX + 36*p + 4*i + r
                a.i(f"v_cvt_pk_bf16_f32 v{x}, v{t+2*r}, v{t+2*r+1}")
            a.dsop(f"ds_write_b128 v47, v[{RX+36*p+4*i}:{RX+36*p+4*i+3}] offset:{128*p + 4096*i}")
        a.dsop(f"ds_write_b32 v48, v{A+4*p+1} offset:{32*p}")
    assert not LATE and not XTL
    a.wait_vm(ids['b'])
    for n in range(6): a.i(f"v_lshlrev_b32 v{228+n}, 16, v{228+n}")
    for n in range(6): a.i(f"v_accvgpr_write_b32 a{242+2*n}, v{228+n}")
    if PF2T == 'ln1': pf2()
    if PPA == 1: ppf()
    a.wait_ds(a.ds); a.i("s_barrier")
    dg.mark("ln1")
    for tt in range(2): sid = a.dsop(f"ds_read_b32 v{vSt[tt]}, v46 offset:{128*tt}")

    Q = []
    bready = {}
    def push(cost, fn, deps=(), key=None, fence=False):
        it = Item(cost, fn, list(deps), key, fence); Q.append(it); return it
    def emit(it):
        for d, dist in it.deps:
            assert d.at is not None
            gap = a.n - d.at
            if gap < min(dist, 2): a.nop(min(dist, 2) - gap)
        Q.remove(it); it.fn(); it.at = a.n
    def ready(it): return all(d.at is not None and a.n - d.at >= dist for d, dist in it.deps)
    def fill(budget):
        while budget > 0 and Q:
            pick = None
            for idx, it in enumerate(Q[:64]):
                if it.fence:
                    if idx == 0 and it.cost <= budget: pick = it
                    break
                if it.cost <= budget and ready(it): pick = it; break
            if pick is None: return
            n0 = a.n; emit(pick); budget -= max(pick.cost, a.n - n0)
    def flush_until(key):
        if not any(it.key == key for it in Q): return
        while True:
            it = Q[0]
            for idx, c in enumerate(Q[:64]):
                if c.fence or c.key == key: break
                if ready(c): it = c; break
            emit(it)
            if it.key == key: break
    def push_bload(ph, sigma, tt, addr, imm, vmw=None):
        def fn():
            if vmw: a.wait_vm(vmw)
            bready[(ph, sigma, tt)] = a.dsop(f"ds_read_b128 {breg(ph, sigma, tt)}, v{addr} offset:{imm}")
        return push(1, fn, key=('B', ph, sigma, tt), fence=bool(vmw))
    def push_barrier(key=None, vmw=None):
        def fn():
            if vmw: a.wait_vm(vmw)
            a.wait_ds(a.ds); a.i("s_barrier")
        push(2, fn, key=key, fence=True)
    def push_fence(key=None): push(0, lambda: None, key=key, fence=True)
    gq = [0]; gp = [0]
    last_t = {}; last_pk = {}
    def push_gelu8(x, waddr, wimm, tt):
        ps = gp[0] % 4; pk = PK + 4 * ps; gp[0] += 1
        cv = []
        for hq in range(2):
            ts = gq[0] % 4; gq[0] += 1
            xs = x[4*hq:4*hq+4]; t = [GT + 4 * ts + e for e in range(4)]
            fin = []
            for e in range(4):
                d0 = [(z, 0) for z in last_t.get(ts, [])]
                def f1(e=e, xs=xs, t=t):
                    a.need_mfma([xs[e]]); a.i(f"v_mul_f32 v{t[e]}, v{xs[e]}, v{xs[e]}")
                i1 = push(1, f1, d0)
                i2 = push(1, lambda e=e, t=t: a.i(f"v_fma_f32 v{t[e]}, v{t[e]}, v{vC1p[tt]}, v{vC0p[tt]}"), [(i1, DP)])
                i3 = push(1, lambda e=e, t=t, xs=xs: a.i(f"v_mul_f32 v{t[e]}, v{xs[e]}, v{t[e]}"), [(i2, DP)])
                i4 = push(2, lambda e=e, t=t: a.i(f"v_exp_f32 v{t[e]}, v{t[e]}"), [(i3, DP)])
                i5 = push(1, lambda e=e, t=t: a.i(f"v_fma_f32 v{t[e]}, v{t[e]}, v{vSt[tt]}, v{vSt[tt]}"), [(i4, DT)])
                i6 = push(2, lambda e=e, t=t: a.i(f"v_rcp_f32 v{t[e]}, v{t[e]}"), [(i5, DP)])
                i7 = push(1, lambda e=e, t=t, xs=xs: a.i(f"v_mul_f32 v{t[e]}, v{xs[e]}, v{t[e]}"), [(i6, DT)])
                fin.append(i7)
            c = []
            for e in range(2):
                dd = [(fin[2*e], DP), (fin[2*e+1], DP)] + [(z, 2) for z in last_pk.get(ps, [])]
                c.append(push(1, lambda e=e, t=t, hq=hq: a.i(f"v_cvt_pk_bf16_f32 v{pk+2*hq+e}, v{t[2*e]}, v{t[2*e+1]}"), dd))
            last_t[ts] = c; cv += c
        w = push(1, lambda: a.dsop(f"ds_write_b128 v{waddr}, v[{pk}:{pk+3}] offset:{wimm}"), [(z, 0) for z in cv])
        last_pk[ps] = [w]
    def unit(acc, t, tt): return acc + 16 * (2 * t + tt)
    def push_gelu_pair(acc, p, ts=(0, 1)):
        for t in ts:
            for tt in range(2):
                for kp in range(2):
                    b = unit(acc, t, tt) + 8 * kp
                    push_gelu8(list(range(b, b + 8)), vHw, tt * 36864 + (4 * p + 2 * t + kp) * 1024, tt)
    SB = (0, 16, 36, 52)
    def push_odd_reduce(acc, first):
        first = False
        push(1, lambda: a.i(f"v_add_u32 v{vS}, s{sSw}, v3"), fence=True)
        push_fence()
        for n in range(16):
            def f(n=n):
                a.need_mfma(list(range(acc + 4*n, acc + 4*n + 4)))
                a.dsop(f"ds_write_b128 v{vS}, v[{acc+4*n}:{acc+4*n+3}] offset:{n*1024}")
            push(1, f)
        push_barrier()
        push(1, lambda: a.i(f"v_add_u32 v{vS}, s{sSr}, v3"), fence=True)
        push_fence()
        rid = {}
        for src in range(4):
            for tt in range(2):
                for jj in range(2):
                    b = acc + 16 * src + 8 * tt + 4 * jj
                    def f(b=b, src=src, tt=tt, jj=jj):
                        rid[(src, tt, jj)] = a.dsop(f"ds_read_b128 v[{b}:{b+3}], v{vS} offset:{(SB[src] + 4*tt + jj)*1024}")
                    push(1, f)
        if first:
            for jj in range(2):
                def f(jj=jj): rid[('b', jj)] = a.dsop(f"ds_read_b128 v[{GT+4*jj}:{GT+3+4*jj}], v{vBo} offset:{512 + jj*32}")
                push(1, f)
        push_fence()
        for src in range(1, 4):
            for tt in range(2):
                for jj in range(2):
                    for e in range(4):
                        def f(src=src, tt=tt, jj=jj, e=e):
                            a.wait_ds(rid[(src, tt, jj)])
                            d = acc + 8*tt + 4*jj + e
                            a.i(f"v_add_f32 v{d}, v{d}, v{d + 16*src}")
                        push(1, f)
        if first:
            for tt in range(2):
                for jj in range(2):
                    for e in range(4):
                        def f(tt=tt, jj=jj, e=e):
                            a.wait_ds(rid[('b', jj)])
                            d = acc + 8*tt + 4*jj + e
                            a.i(f"v_add_f32 v{d}, v{d}, v{GT+4*jj+e}")
                        push(1, f)
        push_fence()
    def push_store(x0, x1, sreg, imm, mod=os.environ.get('EPI2', 'sc1')):
        ps = gp[0] % 4; pk = PK + 4 * ps; gp[0] += 1
        c = []
        for k, xb in enumerate((x0, x0 + 2, x1, x1 + 2)):
            def f(k=k, xb=xb):
                a.need_mfma([xb, xb + 1]); a.i(f"v_cvt_pk_f16_f32 v{pk+k}, v{xb}, v{xb+1}")
            c.append(push(1, f, [(z, 2) for z in last_pk.get(ps, [])]))
        def f():
            a.i(f"s_add_u32 s{sTmp}, s{sreg}, {imm}")
            a.vmem(f"buffer_store_dwordx4 v[{pk}:{pk+3}], v{vP}, s[{sWS}:{sWS+3}], s{sTmp} offen {mod}")
        last_pk[ps] = [push(2, f, [(z, 0) for z in c])]
    def push_epi(acc, p):
        for t in range(2):
            for j in range(4):
                push_store(unit(acc, t, 0) + 4*j, unit(acc, t, 1) + 4*j, sP, (16*p + 8*t + 2*j) * 131072)

    def push_x(sg):
        g, i = divmod(sg, 9)
        if i == 0 and g > 0:
            for c in range(4): push(1, lambda c=c, g=g: a.i(f"v_add_u32 v{vX[c]}, s{sDl[g-1]}, v{vX[c]}"))
        for tt in range(2): push_bload(1, sg, tt, vX[(g + i) & 3], tt * 36864 + i * 1024)
    for sg in range(3): push_x(sg)
    def fst():
        a.wait_ds(sid)
        for tt in range(2): a.i(f"v_rcp_f32 v{vC0p[tt]}, v{vSt[tt]}")
        a.i(f"s_lshl_b32 s5, s{sQ}, 1"); a.i("s_sub_u32 s5, s5, s3")
        for tt in range(2): a.i(f"v_mul_f32 v{vC1p[tt]}, v{vC0p[tt]}, v{vC0p[tt]}")
        for tt in range(2): a.i(f"v_mul_f32 v{vC1p[tt]}, v{vC1p[tt]}, v{vC0p[tt]}")
        for tt in range(2): a.i(f"v_mul_f32 v{vC1p[tt]}, {fl(C1)}, v{vC1p[tt]}")
        for tt in range(2): a.i(f"v_mul_f32 v{vC0p[tt]}, {fl(C0)}, v{vC0p[tt]}")
    push(10, fst, fence=True, key=('st',))
    def exports():
        for p in range(2):
            def f(p=p):
                a.i(f"s_add_u32 s6, s5, {p}"); a.i("s_cmp_eq_u32 s6, 0"); a.i(f"s_cselect_b32 s6, {64*p}, {WS_BYTES}")
                a.i(f"v_add_u32 v{50+p}, s6, v49")
                a.vmem(f"buffer_store_dwordx2 v[{A+4*p}:{A+4*p+1}], v{50+p}, s[{sWS}:{sWS+3}], 0 offen")
            push(5, f)
        for k, (va, cgo) in enumerate(((41, 0), (41, 8), (40, 16))):
            for h in range(2):
                def f(k=k, h=h, va=va, cgo=cgo):
                    a.wait_vm(ids['xt']); a.i(f"s_mov_b32 s6, {(cgo + h) * 16384}")
                    a.vmem(f"buffer_store_dwordx2 v[{216+4*k+2*h}:{217+4*k+2*h}], v{va}, s[{sWS}:{sWS+3}], s6 offen")
                push(2, f)
    def bias_mfma(acc, n0):
        for t in range(2):
            for tt in range(2):
                d = unit(acc, t, tt); ab = 242 + 2 * (n0 + t) - 2 * tt; bb = 26 + 2 * tt
                a.i(f"v_mfma_f32_32x32x16_bf16 v[{d}:{d+15}], a[{ab}:{ab+3}], v[{bb}:{bb+3}], 0")
                a.mfma_wrote(d, 16); fill(SLOTS - 1)
    def areg(k, t): return 224 + 8 * (k % 2) + 4 * t
    tr_id = {}
    def tr(k, t):
        st = steps[k]; b = areg(k, t); jo = 512 if st['ph'] == 1 else 1024
        a.wait_vm(dma_id[k])
        a.dsop(f"ds_read_b64_tr_b16 a[{b}:{b+1}], v{vT[st['ph']][t]} offset:{(k % NR)*2048}")
        tr_id[(k, t)] = a.dsop(f"ds_read_b64_tr_b16 a[{b+2}:{b+3}], v{vT[st['ph']][t]} offset:{(k % NR)*2048 + jo}")
    tr(0, 0); tr(0, 1)
    flush_until(('st',))
    for sg in range(3, 9): push_x(sg)
    def event(tag):
        if tag == ('O1', 0): bias_mfma(R2, 0)
        if tag == ('P0', 0): a.raw('; SCOUTEND')
        if tag == ('P0', 0): a.wait_vm(ids['pf']); bias_mfma(R1, 2)
        if tag == PF2T: pf2()
        if PF2AT == 3 and tag[0] == 'P0':
            for j in range(16):
                if j * PF2S // 2 == tag[1]:
                    a.i(f"s_cmp_lg_u32 s96, {j}"); a.i(f"s_cbranch_scc1 ka_pf{j}")
                    if NB: a.i(f"buffer_load_dword v63, v60, s[{sW1}:{sW1+3}], 0 offen offset:128"); a.n -= 1
                    for jj in range(2): a.i(f"buffer_load_dword v{61+jj}, v{58+jj}, s[{sW2}:{sW2+3}], 0 offen")
                    a.raw(f"ka_pf{j}:"); a.n -= 2
        if tag == ('P0', XE - 9 + 1):
            push_barrier()
            push_odd_reduce(R2, True)
            for tt in range(2):
                push_gelu8(list(range(R2 + 8*tt, R2 + 8*tt + 8)), vHo[0], tt * 36864, tt)
            push_barrier(('B4',))
        if tag == ('P1', 0):
            flush_until(('B4',)); a.wait_vm(ids.get('pf2', 0))
            push_gelu_pair(R1, 0)
            bias_mfma(R2, 4)
            for g in range(4):
                i1 = push(1, lambda g=g: a.i(f"v_sub_u32 v{vX[g]}, v{vHo[g]}, v3"))
                i2 = push(1, lambda g=g: a.i(f"v_add_u32 v{vX[g]}, {(-32768) & 0xffffffff}, v{vX[g]}"), [(i1, 0)])
                push(1, lambda g=g: a.i(f"v_lshl_add_u32 v{vX[g]}, v{vX[g]}, 3, v3"), [(i2, 0)])
            push_barrier(('B5',))
        if tag == ('D0s1', 0):
            flush_until(('B5',))
            for n in range(20):
                g, i = divmod(n, 5)
                for tt in range(2):
                    if i < 4: push_bload(2, ('s1', n), tt, vX[g], tt * 36864 + i * 1024)
                    else: push_bload(2, ('s1', n), tt, vHo[g], tt * 36864)
            flush_until(('B', 2, ('s1', 1), 1))
            for th in range(2):
                push_gelu_pair(R2, 1, (th,))
                push_barrier(('B6', th))
                for n in range(8 * th, 8 * th + 8):
                    g, i = gi2(n)
                    for tt in range(2): push_bload(2, ('s2', n), tt, vX[g], tt * 36864 + (4 + i) * 1024)
            push_barrier(('B7',))
        def epi1(acc, p, n):
            t, j = divmod(n, 4)
            push_store(unit(acc, t, 0) + 4*j, unit(acc, t, 1) + 4*j, sP, (16*p + 8*t + 2*j) * 131072, os.environ.get('EPI%d' % p, 'nt'))
        pos = tag[1] - NA if (tag[0] == 'D1s1' and tag[1] >= NA) else (20 - NA + tag[1] if tag[0] == 'D1s2' else -1)
        for j in range(8):
            if pos == j * (36 - NA - 2) // 8: epi1(R1, 0, j)
        if tag == ('O2', 0):
            push_fence(('epi0',)); flush_until(('epi0',))
            if int(os.environ.get('KBPF', '0')):
                a.i("s_getpc_b64 s[46:47]")
                a.raw("ka_pc2:")
                a.i(f"s_lshl_b32 s45, s{sQ}, 12"); a.i("s_add_u32 s45, s45, kb_kernel-ka_pc2")
                a.i("v_and_b32 v34, 496, v3"); a.i("v_lshl_add_u32 v34, v34, 3, s45"); a.i("v_min_u32 v34, k_code_end-ka_pc2, v34")
                a.i("v_mov_b32 v35, s47"); a.i("v_add_co_u32 v34, vcc, s46, v34"); a.i("s_nop 1"); a.i("v_addc_co_u32 v35, vcc, 0, v35, vcc")
                a.vmem("global_load_dword v33, v[34:35], off")
        if tag[0] == 'O2' and tag[1] < 8: epi1(R3, 1, tag[1])
    for k, st in enumerate(steps):
        if st['tag'] in (('P0',0),('P1',0),('D0s1',0),('D1s1',0),('D0s2',0),('D1s2',0),('O2',0)): dg.mark(str(st['tag']))
        for sg in range(9, 36):
            if (sg - 9) * (XE - XB) // 26 + XB == k: push_x(sg)
        if k == 2: exports()
        event(st['tag'])
        ph, sg, acc = st['ph'], st['sigma'], st['acc']
        for m in range(4):
            t, tt = divmod(m, 2)
            if (ph, sg, tt) not in bready: flush_until(('B', ph, sg, tt))
            a.wait_ds(max(bready[(ph, sg, tt)], tr_id[(k, t)]))
            d = unit(acc, t, tt)
            if st['cinit'] == 'zero': c = "0"
            elif st['cinit'] == 'bias':
                flush_until(('bias', acc, t, 3)); a.wait_ds(bready[('bias', acc, t)])
                cb = unit(acc, t, 1); c = f"v[{cb}:{cb+15}]"
            else: c = f"v[{d}:{d+15}]"
            ab = areg(k, t)
            n0 = a.n
            a.i(f"v_mfma_f32_32x32x16_bf16 v[{d}:{d+15}], a[{ab}:{ab+3}], {breg(ph, sg, tt)}, {c}")
            a.mfma_wrote(d, 16)
            if m == 0 and k + 1 < NS: tr(k + 1, 0)
            if m == 1 and k + 1 < NS: tr(k + 1, 1)
            if m == 2 and k + NR < NS: dma(k + NR)
            used = a.n - n0 - 1
            fill(SLOTS - used - (1 if m in (1, 3) else 0))
    dg.mark("last")
    push_odd_reduce(R1, False)
    for jj in range(2):
        push_store(R1 + 4*jj, R1 + 8 + 4*jj, sPo, jj * 2 * 131072)
    push_fence(('fin',)); flush_until(('fin',))
    dg.dump(54, sQ, 4, 28)
    a.raw("ka_end:")
    a.i("s_endpgm")
    return a.text(), kd(name, 512, 256)
```

```python
from common import *
import math
CS = 4416; KCH = 4 * CS; RS = 144; U1 = 48 * RS + 128; UCH = 13968
U_OFF = 4 * KCH
SC_OFF = U_OFF + 4 * UCH
K3_LDS = SC_OFF + 32768
YS = 4096 + 64
CHB = 27984; BT = 11088; TS = 1808
T_OFF = SC_OFF + 16384
SCL_OFF = T_OFF + 4 * TS
ST_OFF = XU_OFF
L2E = math.log2(math.e)
L2E_hi = struct.unpack("<f", struct.pack("<f", L2E))[0]
L2E_lo = L2E - L2E_hi
sWS, sOUT = 8, 12
PB = 192
GP = int(os.environ.get('GP', '5'))
XN0, XN1 = [int(x) for x in os.environ.get('XNS', '24,24').split(',')]
P_EARLY, P_A, P_B, P_C, P_D, F_S, F_N = [int(x) for x in os.environ.get('PSCH', '0,2,4,4,1,12,4').split(',')]
def gen():
    a = Asm(); name = "kb_kernel"
    header(a, name)
    a.i("s_cmp_ge_u32 s2, 192"); a.i("s_cbranch_scc1 kb_end")
    a.i("s_and_b32 s3, s2, 6"); a.i("s_lshr_b32 s4, s2, 7"); a.i("s_mul_i32 s3, s3, s4"); a.i("s_cmp_lg_u32 s3, 0"); a.i("s_cbranch_scc1 kb_end")
    dg = Diag(a, 2); dg.start(); dg.mark("start")
    a.i("s_load_dwordx16 s[32:47], s[0:1], 0")
    a.i("s_load_dwordx2 s[48:49], s[0:1], 128")
    a.i("s_load_dwordx4 s[52:55], s[0:1], 104")
    a.i("s_load_dwordx2 s[50:51], s[0:1], 64")
    a.i("v_lshrrev_b32 v1, 6, v0"); a.i("v_and_b32 v2, 63, v0")
    a.i("v_readfirstlane_b32 s20, v1")
    a.i("s_and_b32 s3, s2, 7"); a.i("s_lshr_b32 s4, s2, 3")
    a.i("s_lshl_b32 s5, s3, 4"); a.i("s_add_u32 s5, s5, s4")
    a.i("s_lshl_b32 s6, s3, 3"); a.i("s_add_u32 s6, s6, s4"); a.i("s_add_u32 s6, s6, 112")
    a.i("s_cmp_lt_u32 s4, 16"); a.i("s_cselect_b32 s21, s5, s6")
    a.i("s_and_b32 s22, s20, 3"); a.i("s_lshr_b32 s23, s20, 2")
    a.i("s_lshl_b32 s24, s21, 2"); a.i("s_add_u32 s24, s24, s22")
    a.i("s_lshl_b32 s5, s24, 8"); a.i("v_lshl_add_u32 v3, v2, 2, s5")
    a.i("s_lshl_b32 s5, s24, 1"); a.i("v_mov_b32 v4, s5")
    a.i("v_lshrrev_b32 v156, 4, v0"); a.i("v_and_b32 v157, 15, v0")
    a.i("v_lshlrev_b32 v158, 6, v156"); a.i("v_lshl_add_u32 v158, v157, 1, v158")
    a.i("s_lshl_b32 s6, s21, 14"); a.i("v_lshl_add_u32 v190, v158, 3, s6")
    a.i(f"v_lshlrev_b32 v189, 3, v158"); a.i(f"v_add_u32 v189, {ST_OFF}, v189")
    a.i("v_lshlrev_b32 v188, 9, v156"); a.i("v_lshl_add_u32 v188, v157, 4, v188")
    a.i(f"s_mul_i32 s25, s22, {CHB}")
    a.i(f"s_mul_i32 s26, s22, {TS}"); a.i(f"s_add_u32 s26, s26, {T_OFF}")
    a.i("s_waitcnt lgkmcnt(0)")
    for k, sb in enumerate((34, 36, 38, 40, 42, 44)):
        a.vmem(f"global_load_dword v{10+k}, v3, s[{sb}:{sb+1}]")
    pm = a.vmem("global_load_ushort v16, v4, s[46:47]")
    a.vmem("global_load_dwordx4 v[172:175], v190, s[48:49]"); a.vmem("global_load_dwordx4 v[176:179], v190, s[48:49] offset:256")
    a.vmem("global_load_dwordx4 v[180:183], v189, s[48:49]"); xs = a.vmem("global_load_dwordx4 v[184:187], v189, s[48:49] offset:256")
    srd(a, sWS, 48, WS_BYTES); srd(a, sOUT, 54, 2359296)
    a.i("s_lshl_b32 s5, s21, 3")
    a.i("s_add_u32 s56, s50, s5"); a.i("s_addc_u32 s57, s51, 0")
    a.i("s_load_dwordx2 s[16:17], s[56:57], 0")
    a.i("s_add_u32 s56, s52, s5"); a.i("s_addc_u32 s57, s53, 0")
    a.i("s_load_dwordx2 s[18:19], s[56:57], 0")
    a.i("s_lshl_b32 s27, s21, 17"); a.i(f"s_add_u32 s27, s27, {PART_OFF}")
    pn = [0]; pid = {}
    def part(cnt):
        for _ in range(cnt):
            n = pn[0]
            if n >= 16: return
            pn[0] += 1
            s_, u = divmod(n, 2)
            if u == 0 and s_ > 0: a.i(f"s_add_u32 s27, s27, 16384")
            pid[n] = a.vmem(f"buffer_load_dwordx4 v[{PB+8*s_+4*u}:{PB+3+8*s_+4*u}], v188, s[{sWS}:{sWS+3}], s27 offen offset:{256*u}")
    part(P_EARLY)
    a.raw('; SCOUT')
    a.i("s_add_u32 s5, s26, 1276"); a.i("v_lshlrev_b32 v5, 2, v2"); a.i("v_sub_u32 v64, s5, v5")
    a.i("v_add_u32 v5, 1, v2"); a.i("v_lshrrev_b32 v5, 6, v5"); a.i("v_lshlrev_b32 v5, 1, v5"); a.i("v_sub_u32 v65, v64, v5")
    def gaddr(ch):
        a.i("s_cmp_eq_u32 s23, 0"); a.i(f"s_cbranch_scc1 kb_ga{ch}")
        if ch == 0:
            a.i("v_sub_u32 v5, 1023, v170"); a.i("v_sub_u32 v8, 1022, v170")
            a.i("v_cvt_f32_u32 v6, v5"); a.i("v_cvt_f32_u32 v7, v8"); a.i("v_lshl_or_b32 v5, v8, 16, v5")
            a.i("s_mov_b32 s28, 0xbd80bd80"); a.i("s_mov_b32 s29, 0x01000100"); a.i("s_mov_b32 s30, 0xfffefffe"); a.i("s_mov_b32 s31, 0x03800380")
        for e in range(4 * ch, 4 * ch + 4, 2):
            a.i("v_cvt_pk_bf16_f32 v8, v6, v7"); a.i("v_pk_min_u16 v9, v5, s29")
            a.i("v_pk_add_u16 v8, v8, s28"); a.i("v_pk_add_f32 v[6:7], v[6:7], -2.0 op_sel_hi:[1,0]")
            a.i("v_pk_max_i16 v8, v8, v9"); a.i("v_pk_add_u16 v5, v5, s30")
            if e >= 16: a.i("v_pk_min_u16 v8, v8, s31")
            a.i(f"v_mad_u32_u16 v{64+e}, v8, 2, s26"); a.i(f"v_mad_u32_u16 v{65+e}, v8, 2, s26 op_sel:[1,0,0,0]")
        a.raw(f"kb_ga{ch}:")
    a.i("v_mov_b32 v8, 0"); a.i("v_mov_b32 v9, s26")
    a.i("s_mov_b64 exec, 1"); a.dsop("ds_write_b32 v9, v8 offset:1792"); a.i("s_mov_b64 exec, -1")
    a.i("v_and_b32 v6, 15, v2")
    a.i("s_lshl_b32 s5, s23, 4")
    a.i("v_add_u32 v6, s5, v6")
    a.i("v_lshrrev_b32 v7, 4, v2")
    a.i("v_max_u32 v8, 1, v7")
    a.i("v_sub_u32 v8, 4, v8")
    a.i("v_lshlrev_b32 v8, v8, v6")
    a.i("v_lshlrev_b32 v9, 2, v7")
    a.i("v_lshlrev_b32 v17, 7, v7")
    a.i("v_cmp_gt_u32 vcc, 2, v7")
    a.i("s_nop 1")
    a.i("v_cndmask_b32 v9, v17, v9, vcc")
    a.i("v_add_u32 v8, v8, v9")
    a.i("v_lshl_add_u32 v150, v8, 1, s26")
    a.i("v_cmp_eq_u32 vcc, 3, v7")
    a.i("v_mov_b32 v9, 4")
    a.i("v_mov_b32 v17, 128")
    a.i("v_cndmask_b32 v9, v9, v17, vcc")
    a.i("v_add_u32 v151, v150, v9")
    a.i("v_min_u32 v9, 2, v7")
    a.i("v_lshlrev_b32 v9, 7, v9")
    a.i("v_add3_u32 v9, v9, v6, 0")
    a.i("v_add_u32 v9, 512, v9")
    a.i("v_lshl_add_u32 v152, v9, 1, s26")
    a.i("v_and_b32 v8, 15, v2")
    a.i("v_mul_u32_u24 v8, 528, v8")
    a.i("v_lshl_add_u32 v8, v7, 4, v8")
    a.i("v_add_u32 v153, s25, v8")
    a.i(f"s_mul_i32 s5, s23, {16*528}")
    a.i(f"s_add_u32 s5, s5, {BT}")
    a.i("v_add_u32 v154, s5, v153")
    a.i("v_lshl_add_u32 v155, v2, 3, s25")
    a.i("v_lshlrev_b32 v170, 4, v2"); a.i("v_lshrrev_b32 v169, 5, v2")
    a.i(f"s_mul_i32 s6, s22, {KCH}"); a.i("s_lshl_b32 s7, s23, 11"); a.i("s_add_u32 s6, s6, s7"); a.i("v_lshl_add_u32 v160, v2, 5, s6")
    for r in range(144, 148): a.i(f"v_mov_b32 v{r}, 0")
    a.i(f"s_mul_i32 s6, s22, {UCH}"); a.i(f"s_mul_i32 s7, s23, {U1}"); a.i("s_add_u32 s6, s6, s7"); a.i(f"s_add_u32 s6, s6, {U_OFF}")
    a.i("v_add_u32 v161, s6, v170"); a.i("v_min_u32 v162, 15, v2"); a.i("v_lshl_add_u32 v162, v162, 4, s6")
    a.i(f"s_mul_i32 s7, s23, {16*RS}"); a.i("s_add_u32 s6, s6, s7"); a.i("v_mov_b32 v163, s6")
    a.i(f"s_mul_i32 s6, s22, {KCH}"); a.i(f"s_mul_i32 s7, s23, {2*CS}"); a.i("s_add_u32 s6, s6, s7")
    a.i("v_min_u32 v164, 6, v2"); a.i("v_lshl_add_u32 v164, v164, 4, s6")
    a.i(f"v_mul_u32_u24 v165, {RS}, v156"); a.i("v_lshl_add_u32 v165, v157, 2, v165"); a.i(f"v_add_u32 v165, {U_OFF + 16*RS}, v165")
    a.i("v_cmp_lt_u32 vcc, 13, v157"); a.i("v_mov_b32 v166, 0"); a.i("v_mov_b32 v6, 16")
    a.i("v_cndmask_b32 v166, v166, v6, vcc"); a.i("v_add_u32 v166, v165, v166")
    a.i("v_and_b32 v167, 3, v2"); a.i(f"v_mul_u32_u24 v167, {CS}, v167")
    a.i("v_bfe_u32 v6, v2, 2, 3"); a.i("v_add_u32 v6, v6, v169"); a.i("v_lshlrev_b32 v6, 4, v6"); a.i("v_sub_u32 v167, v167, v6")
    a.i(f"s_mul_i32 s6, s22, {KCH}"); a.i("s_lshl_b32 s7, s23, 10"); a.i("s_sub_u32 s6, s6, s7"); a.i(f"s_add_u32 s6, s6, {576*2}")
    a.i("v_add_u32 v167, s6, v167")
    a.i("v_bfe_u32 v168, v2, 1, 4"); a.i(f"v_mul_u32_u24 v168, {RS}, v168")
    a.i("v_and_b32 v6, 1, v2"); a.i("v_xor_b32 v6, 1, v6"); a.i(f"v_mul_u32_u24 v6, {U1}, v6"); a.i("v_add_u32 v168, v168, v6")
    a.i("v_lshlrev_b32 v6, 4, v169"); a.i("v_sub_u32 v168, v168, v6")
    a.i(f"s_mul_i32 s6, s22, {UCH}"); a.i(f"s_mul_i32 s7, s23, {8*RS}"); a.i("s_sub_u32 s6, s6, s7"); a.i(f"s_add_u32 s6, s6, {U_OFF}")
    a.i("v_add_u32 v168, s6, v168"); a.i("v_mov_b32 v171, v158")
    for ch in range(GP): gaddr(ch)
    dg.mark("pre")
    a.wait_vm(pm)
    dg.mark("loaded")
    part(P_A)
    if int(os.environ.get('PT', '1')) & 4:
        a.i("v_mul_u32_u24 v148, 36864, v2"); a.vmem(f"buffer_load_dword v191, v148, s[{sOUT}:{sOUT+3}], 0 offen")
    a.i("v_lshlrev_b32 v16, 16, v16")
    a.i(f"v_mul_f32 v17, {fl(L2E_hi)}, v16")
    a.i(f"v_mov_b32 v18, {fl(L2E_hi)}")
    a.i("v_fma_f32 v18, v16, v18, -v17")
    a.i(f"v_fmac_f32 v18, {fl(L2E_lo)}, v16")
    a.i("v_exp_f32 v17, v17")
    a.i(f"v_mul_f32 v18, {fl(math.log(2.0))}, v18")
    a.i("v_fmac_f32 v17, v17, v18")
    a.i("v_cvt_pk_bf16_f32 v17, v17, v17")
    a.i("v_lshlrev_b32 v16, 16, v17")
    a.i("v_lshlrev_b32 v20, 16, v10"); a.i("v_and_b32 v21, 0xffff0000, v10")
    a.i("v_lshlrev_b32 v22, 16, v11"); a.i("v_and_b32 v23, 0xffff0000, v11")
    for r in (20, 21, 22, 23): a.i(f"v_mul_f32 v{r}, v16, v{r}")
    for r in (20, 21): a.i(f"v_mul_f32 v{r}, {fl(L2E)}, v{r}")
    for r in (22, 23): a.i(f"v_mul_f32 v{r}, 0.15915494, v{r}")
    def direct(dst, vv):
        for m in range(2):
            a.i(f"v_mul_f32 v{24+m}, {fl(float(vv))}, v{20+m}")
            a.i(f"v_mul_f32 v{26+m}, {fl(float(vv))}, v{22+m}")
        for m in range(2):
            a.i(f"v_exp_f32 v{24+m}, v{24+m}")
            a.i(f"v_fract_f32 v{26+m}, v{26+m}")
        for m in range(2):
            a.i(f"v_cos_f32 v{28+m}, v{26+m}")
            a.i(f"v_sin_f32 v{30+m}, v{26+m}")
        a.i("s_nop 0")
        for m in range(2):
            a.i(f"v_mul_f32 v{dst+2*m}, v{24+m}, v{28+m}")
            a.i(f"v_mul_f32 v{dst+2*m+1}, v{24+m}, v{30+m}")
    def put(z, off, t):
        a.i(f"v_cvt_pk_f16_f32 v{t}, v{z}, v{z+1}")
        a.i(f"v_cvt_pk_f16_f32 v{t+1}, v{z+2}, v{z+3}")
        a.dsop(f"ds_write_b64 v155, v[{t}:{t+1}] offset:{off}")
    def cm2(d, z, w, t):
        for m in range(2): a.i(f"v_pk_mul_f32 v[{t+2*m}:{t+2*m+1}], v[{z+2*m}:{z+2*m+1}], v[{w+2*m}:{w+2*m+1}] op_sel:[0,0] op_sel_hi:[0,1]")
        for m in range(2): a.i(f"v_pk_fma_f32 v[{d+2*m}:{d+2*m+1}], v[{z+2*m}:{z+2*m+1}], v[{w+2*m}:{w+2*m+1}], v[{t+2*m}:{t+2*m+1}] op_sel:[1,1,0] op_sel_hi:[1,0,1] neg_lo:[1,0,0]")
    a.i(f"s_cmp_eq_u32 s23, {os.environ.get('HR', '0')}")
    a.i("s_cbranch_scc1 kb_hi")
    direct(32, 8)
    direct(40, 128)
    a.i("v_mov_b32 v36, 1.0"); a.i("v_mov_b32 v37, 0"); a.i("v_mov_b32 v38, 1.0"); a.i("v_mov_b32 v39, 0")
    for r in range(16):
        put(36, BT + r * 528, 52 + 4 * (r & 1))
        put(40, BT + (16 + r) * 528, 54 + 4 * (r & 1))
        if r < 15:
            cm2(36, 36, 32, 44)
            cm2(40, 40, 32, 48)
    a.i("s_branch kb_join")
    a.raw("kb_hi:")
    a.i("v_xor_b32 v22, 0x80000000, v22"); a.i("v_xor_b32 v23, 0x80000000, v23")
    for k, src in enumerate((12, 13, 14, 15)):
        a.i(f"v_lshlrev_b32 v{40+2*k}, 16, v{src}"); a.i(f"v_and_b32 v{41+2*k}, 0xffff0000, v{src}")
    for r in (40, 41, 42, 43): a.i(f"v_mul_f32 v{r}, v16, v{r}")
    for m in range(2):
        a.i(f"v_mul_f32 v{36+2*m}, v{44+m}, v{40+m}")
        a.i(f"v_fma_f32 v{36+2*m}, -v{46+m}, v{42+m}, v{36+2*m}")
        a.i(f"v_mul_f32 v{37+2*m}, v{44+m}, v{42+m}")
        a.i(f"v_fma_f32 v{37+2*m}, -v{46+m}, v{40+m}, -v{37+2*m}")
    a.i("v_max3_f32 v48, abs(v36), abs(v37), abs(v38)")
    a.i("v_max_f32 v49, abs(v39), abs(v39)")
    a.i("v_max_f32 v48, v48, v49")
    for rr in (8, 4, 2, 1):
        a.i("s_nop 1")
        a.i(f"v_max_f32_dpp v48, v48, v48 row_ror:{rr} row_mask:0xf bank_mask:0xf")
    a.i("s_nop 1")
    for k, ln in enumerate((0, 16, 32, 48)): a.i(f"v_readlane_b32 s{56+k}, v48, {ln}")
    a.i("s_nop 3")
    a.i("s_max_u32 s56, s56, s57"); a.i("s_max_u32 s58, s58, s59"); a.i("s_max_u32 s56, s56, s58")
    a.i("s_lshr_b32 s56, s56, 23")
    a.i("s_max_u32 s56, s56, 1"); a.i("s_min_u32 s56, s56, 253")
    a.i("s_sub_u32 s57, 254, s56"); a.i("s_lshl_b32 s57, s57, 23")
    a.i("s_lshl_b32 s56, s56, 23")
    for r in (36, 37, 38, 39): a.i(f"v_mul_f32 v{r}, s57, v{r}")
    direct(32, 1)
    direct(40, 256)
    cm2(56, 36, 40, 44)
    cm2(60, 32, 32, 48)
    put(36, 0, 52)
    cm2(86, 60, 60, 48)
    put(56, 8 * 528, 54)
    cm2(94, 56, 60, 44)
    cm2(36, 36, 32, 48); put(94, 9 * 528, 90); put(36, 1 * 528, 52)
    cm2(94, 94, 60, 44); cm2(36, 36, 32, 48); put(94, 10 * 528, 90); put(36, 2 * 528, 52)
    cm2(94, 94, 60, 44); cm2(36, 36, 32, 48); put(94, 11 * 528, 90); put(36, 3 * 528, 52)
    cm2(56, 56, 40, 44); cm2(36, 36, 32, 48); put(56, 12 * 528, 90); put(36, 4 * 528, 52)
    cm2(94, 56, 86, 44); cm2(36, 36, 32, 48); put(94, 13 * 528, 90); put(36, 5 * 528, 52)
    cm2(56, 56, 40, 44); cm2(36, 36, 32, 48); put(56, 14 * 528, 90); put(36, 6 * 528, 52)
    cm2(94, 56, 86, 44); cm2(36, 36, 32, 48); put(94, 15 * 528, 90); put(36, 7 * 528, 52)
    for row in range(16, 21):
        cm2(56, 56, 40, 44); put(56, row * 528, 52 + 2 * (row & 1))
    a.i("v_mov_b32 v48, s56"); a.i(f"s_lshl_b32 s5, s22, 2"); a.i("v_mov_b32 v49, s5")
    a.i(f"ds_write_b32 v49, v48 offset:{0}") if False else None
    a.i(f"v_add_u32 v49, {SCL_OFF}, v49"); a.i("s_mov_b64 exec, 1"); a.i("ds_write_b32 v49, v48"); a.i("s_mov_b64 exec, -1")
    a.raw("kb_join:")
    a.i("s_waitcnt lgkmcnt(0)"); a.ds_done = a.ds
    a.i("s_barrier")
    dg.mark("tables")
    part(P_B)
    def fr(k):
        b = 96 + 12 * (k % 4)
        a.dsop(f"ds_read_b128 v[{b}:{b+3}], v153 offset:{k*64}")
        a.dsop(f"ds_read_b128 v[{b+4}:{b+7}], v153 offset:{k*64 + 16*528}")
        return a.dsop(f"ds_read_b128 v[{b+8}:{b+11}], v154 offset:{k*64}")
    ids = {k: fr(k) for k in range(4)}
    a.i("s_lshl_b32 s5, s22, 2"); a.i(f"s_add_u32 s5, s5, {SCL_OFF}"); a.i("v_mov_b32 v15, s5")
    a.dsop("ds_read_b32 v15, v15")
    XN = []
    pool = list(range(84, 96)) + list(range(60, 64))
    def unp(d, s_): XN.extend([f"v_lshlrev_b32 v{d}, 16, v{s_}", f"v_and_b32 v{d+1}, 0xffff0000, v{s_}"])
    for k in range(4): XN.append(f"v_rcp_f32 v{52+2*k}, v{181+2*k}")
    for pr in range(2):
        KH = [(k, h) for k in (2*pr, 2*pr+1) for h in range(2)]
        def e(k, h): return pool[8*(k % 2) + 2*h]
        def q(k, h): return pool[8*(k % 2) + 4 + 2*h]
        def P(r): return f"v[{r}:{r+1}]"
        for k, h in KH: unp(e(k, h), 172 + 2*k + h)
        for k, h in KH: XN.append(f"v_pk_add_f32 {P(e(k,h))}, {P(e(k,h))}, {P(180+2*k)} op_sel:[0,0] op_sel_hi:[1,0] neg_lo:[0,1] neg_hi:[0,1]")
        for k, h in KH: XN.append(f"v_cvt_pk_bf16_f32 v{18+4*k+h}, v{e(k,h)}, v{e(k,h)+1}")
        for k, h in KH: unp(e(k, h), 18 + 4*k + h)
        for k, h in KH: XN.append(f"v_pk_mul_f32 {P(q(k,h))}, {P(e(k,h))}, {P(52+2*k)} op_sel:[0,0] op_sel_hi:[1,0]")
        for k, h in KH: XN.append(f"v_pk_fma_f32 {P(e(k,h))}, {P(q(k,h))}, {P(180+2*k)}, {P(e(k,h))} op_sel:[0,1,0] op_sel_hi:[1,1,1] neg_lo:[1,0,0] neg_hi:[1,0,0]")
        for k, h in KH: XN.append(f"v_pk_fma_f32 {P(q(k,h))}, {P(e(k,h))}, {P(52+2*k)}, {P(q(k,h))} op_sel:[0,0,0] op_sel_hi:[1,0,1]")
        for k, h in KH: XN.append(f"v_cvt_pk_bf16_f32 v{18+4*k+h}, v{q(k,h)}, v{q(k,h)+1}")
        for k, h in KH: unp(e(k, h), 18 + 4*k + h)
        for c in range(4): XN.append(f"v_cvt_pk_f16_f32 v{32+4*pr+c}, v{e(2*pr, c//2) + c%2}, v{e(2*pr+1, c//2) + c%2}")
    def xn(n):
        for _ in range(n):
            if XN: a.i(XN.pop(0))
    a.wait_vm(xs)
    xn(XN0)
    for k in range(8):
        b = 96 + 12 * (k % 4)
        a.wait_ds(ids[k])
        c0 = "0" if k == 0 else "v[40:43]"; c1 = "0" if k == 0 else "v[44:47]"
        a.i(f"v_mfma_f32_16x16x32_f16 v[40:43], v[{b}:{b+3}], v[{b+8}:{b+11}], {c0}")
        a.i(f"v_mfma_f32_16x16x32_f16 v[44:47], v[{b+4}:{b+7}], v[{b+8}:{b+11}], {c1}")
        if len(XN) < 4: a.nop(4 - len(XN))
        xn(4)
        if k + 4 < 8: ids[k + 4] = fr(k + 4)
        if k == 3: xn(XN1)
        if GP + k < 5: gaddr(GP + k)
    if len(XN) < 10: a.nop(10 - len(XN))
    xn(10)
    a.i("v_cvt_pk_f16_f32 v48, v40, v41"); a.i("v_cvt_pk_f16_f32 v49, v42, v43")
    a.i("v_cvt_pk_f16_f32 v50, v44, v45"); a.i("v_cvt_pk_f16_f32 v51, v46, v47")
    a.dsop("ds_write_b32 v150, v48"); a.dsop("ds_write_b32 v151, v49")
    a.dsop("ds_write_b16 v152, v50"); a.dsop("ds_write_b16_d16_hi v152, v50 offset:64")
    a.dsop("ds_write_b16 v152, v51 offset:128"); a.dsop("ds_write_b16_d16_hi v152, v51 offset:192")
    xn(8)
    a.i("s_waitcnt lgkmcnt(0)"); a.ds_done = a.ds
    a.i("s_barrier")
    dg.mark("T")
    a.i("s_cmp_eq_u32 s23, 0"); a.i("s_cbranch_scc1 kb_g0")
    for e_ in range(19): a.i(f"ds_read_u16 v{96 + e_}, v{64+e_}")
    a.i("s_branch kb_g1")
    a.raw("kb_g0:")
    for e_ in range(3): a.i(f"ds_read_u16 v{96 + e_}, v64 offset:{2*e_}")
    a.i("ds_read_u16 v99, v65")
    a.raw("kb_g1:")
    a.ds += 1; gid = a.ds
    a.dsop("ds_write_b128 v161, v[144:147]"); a.dsop("ds_write_b128 v161, v[144:147] offset:1024")
    a.i("s_mov_b64 exec, 0xffff"); a.dsop("ds_write_b128 v162, v[144:147] offset:2048")
    a.i("s_mov_b64 exec, 1"); a.dsop("ds_write_b64 v163, v[144:145]")
    a.i("s_mov_b64 exec, 0x7f")
    a.dsop("ds_write_b128 v164, v[144:147] offset:4096"); a.dsop(f"ds_write_b128 v164, v[144:147] offset:{4096+CS}")
    a.i("s_mov_b64 exec, -1")
    part(P_C)
    xn(1000)
    for c in range(4):
        a.dsop(f"ds_write_b32 v165, v{32+c} offset:{c*UCH}"); a.dsop(f"ds_write_b32 v165, v{32+c} offset:{c*UCH + U1 + 8}")
    a.wait_ds(gid)
    a.i("s_cmp_eq_u32 s23, 0"); a.i("s_cbranch_scc1 kb_p0")
    for role in (1, 0):
        G = (lambda e: 96 + e) if role else (lambda e: 98 if e < 4 else 97 if e < 11 else 96 if e < 18 else 99)
        for c in range(4):
            for e_ in range(8): a.i(f"v_lshl_or_b32 v{64+8*c+e_}, v{G(2*e_+1+3-c)}, 16, v{G(2*e_+3-c)}")
            a.i(f"ds_write_b128 v160, v[{64+8*c}:{67+8*c}] offset:{c*CS}"); a.i(f"ds_write_b128 v160, v[{68+8*c}:{71+8*c}] offset:{c*CS+16}")
            a.i(f"ds_write_b32 v165, v{36+c} offset:{c*UCH + 64}"); a.i(f"ds_write_b32 v166, v{36+c} offset:{c*UCH + U1 + 8 + 64}")
        if role: a.i("s_branch kb_p1"); a.raw("kb_p0:")
    a.raw("kb_p1:")
    a.i("v_mov_b32 v12, v167"); a.i("v_mov_b32 v14, v168"); a.i("v_mov_b32 v13, v169"); a.i("v_mov_b32 v8, v170"); a.i("v_mov_b32 v5, v171")
    a.i("s_waitcnt lgkmcnt(0)"); a.ds_done = a.ds
    a.i("s_barrier")
    dg.mark("conv")
    def zoff(z): return (z // 64) * RS + (z % 64) * 2
    def loads(st):
        b = 64 + 16 * (st % 3)
        ya = (31 - st) * 32
        zb = 1024 + 56 - 16 * st
        a.dsop(f"ds_read_b128 v[{b}:{b+3}], v12 offset:{ya + 2048}")
        a.dsop(f"ds_read_b128 v[{b+4}:{b+7}], v14 offset:{zoff(zb)}")
        i1 = a.dsop(f"ds_read_b128 v[{b+8}:{b+11}], v14 offset:{zoff(zb + 1024)}")
        i2 = a.dsop(f"ds_read_b128 v[{b+12}:{b+15}], v12 offset:{ya}")
        return i1, i2
    F = []
    SU, TT_, XX = 112, 32, 48
    def rnd2(d0, d1, t, L=None):
        o = [f"v_cvt_pk_bf16_f32 v{t}, v{d0}, v{d1}", f"v_lshlrev_b32 v{d0}, 16, v{t}", f"v_and_b32 v{d1}, 0xffff0000, v{t}"]
        return o
    for k in range(2):
        F += [f"s_lshl_b32 s{56+2*k}, s{16+k}, 16", f"s_and_b32 s{57+2*k}, s{16+k}, 0xffff0000", f"s_lshl_b32 s{60+2*k}, s{18+k}, 16", f"s_and_b32 s{61+2*k}, s{18+k}, 0xffff0000"]
    for k in range(4):
        for c in range(4):
            sh = "v_lshlrev_b32 v{d}, 16, v{s}" if c % 2 == 0 else "v_and_b32 v{d}, 0xffff0000, v{s}"
            F.append(sh.format(d=TT_ + 4*k + c, s=18 + 4*k + c // 2))
            F.append(sh.format(d=XX + 4*k + c, s=172 + 2*k + c // 2))
    for k in range(16): F.append(f"v_mul_f32 v{TT_+k}, s{56 + k % 4}, v{TT_+k}")
    def rnd_all(base):
        o = []
        for g in range(2):
            tr_ = [rnd2(base + 8*g + 2*k, base + 8*g + 2*k + 1, 16 + k) for k in range(4)]
            for j in range(3): o += [t[j] for t in tr_]
        return o
    F += rnd_all(TT_)
    for s_ in range(1, 8):
        F.append(('vm', 2 * s_ + 1))
        for r in range(8):
            for hh in range(2):
                d = SU + 2*r + hh
                if s_ == 1: F.append(f"v_fma_mix_f32 v{d}, v{PB+r}, 1.0, v{PB+8+r} op_sel:[{hh},0,{hh}] op_sel_hi:[1,0,1]")
                else: F.append(f"v_fma_mix_f32 v{d}, v{PB+8*s_+r}, 1.0, v{d} op_sel:[{hh},0,0] op_sel_hi:[1,0,0]")
    F += rnd_all(SU)
    for k in range(16): F.append(f"v_add_f32 v{SU+k}, s{60 + k % 4}, v{SU+k}")
    F += rnd_all(SU)
    def fill(n):
        while n > 0 and F:
            f = F.pop(0)
            if isinstance(f, tuple): a.wait_vm(pid[f[1]])
            else: a.i(f); n -= 1
    ld = {0: loads(0), 1: loads(1)}
    for st in range(32):
        b = 64 + 16 * (st % 3)
        if st + 2 < 32: ld[st + 2] = loads(st + 2)
        a.wait_ds(ld[st][0])
        c0 = "0" if st == 0 else "v[128:143]"; c1 = "0" if st == 0 else "v[144:159]"
        nf = F_N if st >= F_S else (3 if any(isinstance(f, tuple) for f in F[12:]) and not any(isinstance(f, tuple) for f in F[:12]) else 0)
        a.i(f"v_mfma_f32_32x32x16_f16 v[128:143], v[{b}:{b+3}], v[{b+4}:{b+7}], {c0}")
        fill(nf)
        a.i(f"v_mfma_f32_32x32x16_f16 v[144:159], v[{b}:{b+3}], v[{b+8}:{b+11}], {c1}")
        part(P_D)
        fill(nf)
        a.wait_ds(ld[st][1])
        a.i(f"v_mfma_f32_32x32x16_f16 v[144:159], v[{b+12}:{b+15}], v[{b+4}:{b+7}], v[144:159]")
        fill(nf)
    dg.mark("convend")
    a.i(f"s_lshl_b32 s6, s20, 12"); a.i(f"s_add_u32 s6, s6, {SC_OFF}"); a.i("v_add_u32 v9, s6, v8")
    a.i("s_xor_b32 s7, s20, 4"); a.i("s_lshl_b32 s7, s7, 12"); a.i(f"s_add_u32 s7, s7, {SC_OFF}"); a.i("v_add_u32 v10, s7, v8")
    a.i("v_bfe_u32 v11, v2, 1, 4"); a.i("v_lshlrev_b32 v11, 7, v11")
    a.i("v_and_b32 v12, 1, v2"); a.i("v_lshl_add_u32 v11, v12, 3, v11")
    a.i("v_lshl_add_u32 v11, v13, 4, v11")
    a.i(f"s_mul_i32 s6, s22, {YS}"); a.i("s_lshl_b32 s7, s23, 11"); a.i("s_add_u32 s6, s6, s7"); a.i("v_add_u32 v11, s6, v11")
    a.i("v_lshlrev_b32 v12, 1, v5")
    a.i("v_mul_u32_u24 v13, 1152, v5"); a.i("s_lshl_b32 s6, s21, 3")
    a.i("v_mov_b32 v14, v15")
    a.nop(4)
    a.i("s_cmp_eq_u32 s23, 0"); a.i("s_cbranch_scc1 kb_mu0")
    def xch(send, keep):
        for k in range(4): a.i(f"ds_write_b128 v9, v[{send+4*k}:{send+3+4*k}] offset:{k*1024}")
        a.i("s_waitcnt lgkmcnt(0)")
        a.i("s_barrier")
        for k in range(4): a.i(f"ds_read_b128 v[{176+4*k}:{179+4*k}], v10 offset:{k*1024}")
        for k in range(4):
            a.i(f"s_waitcnt lgkmcnt({3-k})")
            for h in range(2): a.i(f"v_pk_add_f32 v[{160+4*k+2*h}:{161+4*k+2*h}], v[{keep+4*k+2*h}:{keep+1+4*k+2*h}], v[{176+4*k+2*h}:{177+4*k+2*h}]")
    xch(128, 144)
    a.i("s_branch kb_j")
    a.raw("kb_mu0:")
    xch(144, 128)
    a.raw("kb_j:")
    for k in range(8): a.i(f"v_pk_mul_f32 v[{160+2*k}:{161+2*k}], v[{160+2*k}:{161+2*k}], v[14:15]")
    for k in range(8): a.i(f"v_cvt_pk_bf16_f32 v{176+k}, v{160+2*k}, v{161+2*k}")
    for k in range(4): a.i(f"ds_write_b64 v11, v[{176+2*k}:{177+2*k}] offset:{32*k}")
    dg.mark("ywr")
    fill(1000)
    a.i("s_waitcnt lgkmcnt(0)")
    a.i("s_barrier")
    dg.mark("yb")
    for c in range(4):
        a.i(f"ds_read_b32 v{152+2*c}, v12 offset:{c*YS}")
        a.i(f"ds_read_b32 v{153+2*c}, v12 offset:{c*YS + 64}")
    a.i("s_waitcnt lgkmcnt(0)")
    Y = 128
    for pr in range(2):
        for u in range(2):
            for c in range(4):
                shy = "v_lshlrev_b32 v{d}, 16, v{s}" if u == 0 else "v_and_b32 v{d}, 0xffff0000, v{s}"
                a.i(shy.format(d=Y + 8*pr + 4*u + c, s=152 + 2*c + pr))
        def padd(src):
            for k in range(4*pr, 4*pr + 4): a.i(f"v_pk_add_f32 v[{Y+2*k}:{Y+2*k+1}], v[{Y+2*k}:{Y+2*k+1}], v[{src(k)}:{src(k)+1}]")
        padd(lambda k: TT_ + 2*k)
        for f in rnd_all(Y)[12*pr:12*pr+12]: a.i(f)
        padd(lambda k: XX + 2*k)
        for f in rnd_all(Y)[12*pr:12*pr+12]: a.i(f)
        padd(lambda k: SU + 8 * ((k // 2) % 2) + 4 * (k // 4) + 2 * (k % 2))
        for u in range(2):
            k = 2*pr + u
            a.i(f"v_cvt_pk_bf16_f32 v{172+2*k}, v{Y+4*k}, v{Y+4*k+1}"); a.i(f"v_cvt_pk_bf16_f32 v{173+2*k}, v{Y+4*k+2}, v{Y+4*k+3}")
            a.i(f"s_add_u32 s7, s6, {(32*pr + u) * 1152}")
            a.i(f"buffer_store_dwordx2 v[{172+2*k}:{173+2*k}], v13, s[{sOUT}:{sOUT+3}], s7 offen")
    a.raw("; SCOUTEND")
    dg.mark("st")
    dg.dump(48, 20, 8, 28)
    a.raw("kb_end:")
    a.i("s_endpgm")
    return a.text(), kd(name, 256, 256)
```

```python
import sys, os
sys.path.insert(0, os.path.dirname(__file__))
import ka, kb7 as kb
ref = open("parallel_sum__ssm_conv_s4__dense_activation_gelu__prompt.s.ref").read().split("\n")
head = [l for l in ref if l.startswith(";") and "@launch" not in l and "Override" not in l and "grid=ceil" not in l]
t2, d2 = ka.gen(0); t3, d3 = kb.gen()
import scout
t2 = scout.add(t2, 'ka', 43, 4, int(os.environ.get('SPA', '0')), extra='\nk_code_end:\n')
out = head + [
 f"; @launch kernel=ka_kernel grid=(256,1,1) block=(256,1,1) lds={ka.K2_LDS}",
 f"; @launch kernel=kb_kernel grid=(192,1,1) block=(512,1,1) lds={kb.K3_LDS}",
 '.amdgcn_target "amdgcn-amd-amdhsa--gfx950"', ".text", t2, t3, "k_code_end:", "  s_endpgm", '.section .rodata,"a"', d2, d3]
dst = sys.argv[1] if len(sys.argv) > 1 else "c.s"
open(dst, "w").write("\n".join(out))
print("wrote", dst)
```
